```python
import torch

def _softmax(x, axis=-1):
    return torch.softmax(x, dim=axis)
def _gelu(x):
    return torch.nn.functional.gelu(x, approximate="tanh")
def _silu(x):
    return torch.nn.functional.silu(x)
def _sigmoid(x):
    return torch.sigmoid(x)
def _layernorm(x, axis=-1, eps=1e-5):
    m = x.mean(dim=axis, keepdim=True)
    v = x.var(dim=axis, keepdim=True, unbiased=False)
    return (x - m) / torch.sqrt(v + eps)
def _scatter_add(tgt, idx, src, axis=0):
    return tgt.clone().index_add_(axis, idx, src)
def _segment_sum(src, seg, n):
    out = torch.zeros((n,) + src.shape[1:], dtype=src.dtype)
    return out.index_add_(0, seg, src)
def _pad(x, pw):
    flat = tuple(v for pair in reversed(pw) for v in pair)
    return torch.nn.functional.pad(x, flat)

kernel_name = 'interleave_layers__ssm_conv_h3__dense_activation_relu__prompt'

def setup_inputs():

    _w = (lambda a: (lambda t: t.to(torch.bfloat16) if t.is_floating_point() else t)(torch.as_tensor(a)))
    def _A_setup():
        B, S, D = 1, 2048, 448
        ks = 4
        return {
            "q": _w((lambda *s: torch.randn(*s, dtype=torch.bfloat16) * 0.05)(B, S, D)),
            "k": _w((lambda *s: torch.randn(*s, dtype=torch.bfloat16) * 0.8)(B, S, D)),
            "v": _w((lambda *s: torch.randn(*s, dtype=torch.bfloat16) * 0.8)(B, S, D)),
            "shift_k": _w((lambda *s: torch.randn(*s, dtype=torch.bfloat16) * 0.8)(D, ks) * 0.5),
            "ssm_k": _w((lambda *s: torch.randn(*s, dtype=torch.bfloat16) * 0.8)(D, S) * (1.0 / S ** 0.5)),
            "ssm_D": _w((lambda *s: torch.randn(*s, dtype=torch.bfloat16) * 0.8)(D)),
        }
    _A_in = _A_setup()

    def _B_setup():
        B, S, D, Dff = 1, 2048, 448, 1792
        return {
            "x": _w((lambda *s: torch.randn(*s, dtype=torch.bfloat16) * 0.05)(B, S, D)),
            "w1": _w((lambda *s: torch.randn(*s, dtype=torch.bfloat16) * 0.1)(D, Dff)),
            "w2": _w((lambda *s: torch.randn(*s, dtype=torch.bfloat16) * 0.1)(Dff, D)),
        }
    _B_in = _B_setup()

    return {
        "A_q": _A_in["q"],
        "A_k": _A_in["k"],
        "A_v": _A_in["v"],
        "A_shift_k": _A_in["shift_k"],
        "A_ssm_k": _A_in["ssm_k"],
        "A_ssm_D": _A_in["ssm_D"],
        "B_x": _B_in["x"],
        "B_w1": _B_in["w1"],
        "B_w2": _B_in["w2"],
    }

def reference(A_q, A_k, A_v, A_shift_k, A_ssm_k, A_ssm_D, B_x, B_w1, B_w2):
    def _A_ref(q, k, v, shift_k, ssm_k, ssm_D):
        B, S, D = q.shape
        ks = shift_k.shape[-1]
        k_pad = _pad(k, ((0, 0), (ks - 1, 0), (0, 0)))
        k_shift = torch.zeros_like(k)
        for t in range(ks):
            k_shift = k_shift + k_pad[:, t:t + S, :] * shift_k[:, ks - 1 - t][None, None, :]
        kv = k_shift * v
        L = 2 * S
        kv_pad = _pad(kv, ((0, 0), (0, S), (0, 0)))
        kf_pad = _pad(ssm_k, ((0, 0), (0, S)))
        kv_f = (lambda x, axes=(-2,-1): torch.fft.rfft2(x.float(), dim=axes))(kv_pad[:, None, :, :], axes=(1, 2))
        kf_f = (lambda x, axes=(-2,-1): torch.fft.rfft2(x.float(), dim=axes))(kf_pad[:, None, :], axes=(1, 2))
        kf_f = (lambda x, *d: x.permute(*d))(kf_f, 1, 2, 0)
        y_f = kv_f * kf_f[None, :, :, :]
        y = (lambda x, s, axes=(-2,-1): torch.fft.irfft2(x, s=s, dim=axes).to(torch.bfloat16))(y_f, (1, L), axes=(1, 2))[:, 0, :S, :]
        y = y + kv * ssm_D[None, None, :]
        return q * y

    def _B_ref(x, w1, w2):
        h = torch.einsum("bsd,df->bsf", x, w1)
        zero = torch.zeros_like(h)
        h = torch.maximum(h, zero)
        return torch.einsum("bsf,fd->bsd", h, w2)

    x = A_q
    x = x + _A_ref(_layernorm(x, axis=-1), A_k, A_v, A_shift_k, A_ssm_k, A_ssm_D)
    x = x + _B_ref(_layernorm(x, axis=-1), B_w1, B_w2)
    x = x + _A_ref(_layernorm(x, axis=-1), A_k, A_v, A_shift_k, A_ssm_k, A_ssm_D)
    x = x + _B_ref(_layernorm(x, axis=-1), B_w1, B_w2)
    return x
```

```python
import re

REG_RE = re.compile(r'(?<![\w.])(-?)(?:abs\()?([vas])(?:(\d+)|\[(\d+):(\d+)\])')

def regs_of(op):
    op = op.strip()
    out = []
    if op in ('vcc',): return [('s', 106), ('s', 107)]
    if op == 'vcc_lo': return [('s', 106)]
    if op == 'vcc_hi': return [('s', 107)]
    if op == 'exec': return [('s', 126), ('s', 127)]
    if op == 'm0': return [('s', 124)]
    m = re.fullmatch(r'-?(?:abs\()?\|?([vas])(?:(\d+)|\[(\d+):(\d+)\])\)?\|?', op)
    if m:
        k = m.group(1)
        if m.group(2) is not None: return [(k, int(m.group(2)))]
        return [(k, i) for i in range(int(m.group(3)), int(m.group(4)) + 1)]
    return out

TRANS = ('v_exp_f32', 'v_log_f32', 'v_rcp_f32', 'v_rsq_f32', 'v_sqrt_f32', 'v_sin_f32', 'v_cos_f32', 'v_rcp_iflag_f32')

class Ins:
    __slots__ = ('text', 'mn', 'ops', 'mods', 'kind', 'wr', 'rd', 'passes', 'srcc', 'srcab', 'storedata', 'states')

def split_ops(rest):
    ops, depth, cur = [], 0, ''
    for ch in rest:
        if ch in '[(': depth += 1
        if ch in '])': depth -= 1
        if ch == ',' and depth == 0:
            ops.append(cur.strip()); cur = ''
        else:
            cur += ch
    if cur.strip(): ops.append(cur.strip())
    return ops

def parse(text):
    t = text.split(';')[0].strip()
    I = Ins(); I.text = text; I.wr = []; I.rd = []; I.passes = 0; I.srcc = []; I.srcab = []; I.storedata = []; I.states = 1
    if not t or t.endswith(':') or t.startswith('.'):
        I.kind = 'label' if t.endswith(':') else 'none'; I.mn = ''; return I
    parts = t.split(None, 1)
    mn = parts[0]; rest = parts[1] if len(parts) > 1 else ''
    ops = split_ops(rest)
    mods = ''
    if ops:
        last = ops[-1].split(None, 1)
        if len(last) > 1:
            ops[-1] = last[0]; mods = last[1]
    I.mn = mn; I.ops = ops; I.mods = mods
    R = [regs_of(o) for o in ops]
    flat = lambda L: [r for x in L for r in x]
    base = re.sub(r'_(e32|e64|dpp|sdwa)$', '', mn)
    if mn.startswith('v_mfma') or mn.startswith('v_smfmac'):
        I.kind = 'mfma'
        I.passes = 8 if '32x32' in mn else 4
        I.wr = R[0]; I.srcab = R[1] + R[2]; I.srcc = R[3]; I.rd = I.srcab + I.srcc
    elif mn.startswith('v_cmpx'):
        I.kind = 'valu'; I.wr = R[0] + [('s', 126), ('s', 127)]; I.rd = flat(R[1:])
    elif mn.startswith('v_cmp'):
        I.kind = 'valu'; I.wr = R[0]; I.rd = flat(R[1:])
    elif base in ('v_permlane16_swap_b32', 'v_permlane32_swap_b32'):
        I.kind = 'valu'; I.wr = R[0] + R[1]; I.rd = R[0] + R[1]
    elif base in ('v_add_co_u32', 'v_sub_co_u32', 'v_addc_co_u32', 'v_subb_co_u32', 'v_subrev_co_u32', 'v_div_scale_f32', 'v_mad_u64_u32'):
        I.kind = 'valu'; I.wr = R[0] + R[1]; I.rd = flat(R[2:])
    elif mn.startswith('v_'):
        I.kind = 'valu'; I.wr = R[0]; I.rd = flat(R[1:])
        if base in ('v_fmac_f32', 'v_dot2c_f32_bf16', 'v_pk_fmac_f16', 'v_writelane_b32') or 'UNUSED_PRESERVE' in mods: I.rd += R[0]
        if 'row_' in mods or 'quad_perm' in mods or 'wave_' in mods or mn.endswith('_dpp'): I.rd += R[0]
    elif mn.startswith('buffer_') or mn.startswith('global_') or mn.startswith('flat_'):
        I.kind = 'vmem'
        if mn in ('buffer_wbl2', 'buffer_inv'):
            pass
        elif '_store' in mn:
            I.rd = flat(R)
            d = R[0] if mn.startswith('buffer_') else R[1]
            if 'x3' in mn or 'x4' in mn: I.storedata = d
        elif '_atomic' in mn:
            I.rd = flat(R)
            if 'sc0' in mods.split(): I.wr = R[0]
        elif 'lds' in mods.split() or '_lds_' in mn:
            I.rd = flat(R) + [('s', 124)]
        else:
            I.wr = R[0]; I.rd = flat(R[1:])
    elif mn.startswith('ds_'):
        I.kind = 'ds'
        if mn.startswith('ds_read') or mn.startswith('ds_bpermute') or mn.startswith('ds_permute') or mn.startswith('ds_swizzle') or '_rtn' in mn:
            I.wr = R[0]; I.rd = flat(R[1:])
        else:
            I.rd = flat(R)
    elif mn.startswith('s_'):
        if mn == 's_nop':
            I.kind = 'nop'; I.states = int(ops[0], 0) + 1
        elif mn.startswith('s_load') or mn.startswith('s_buffer_load') or mn in ('s_memtime', 's_memrealtime') or mn.startswith('s_atomic'):
            I.kind = 'smem'; I.wr = R[0]; I.rd = flat(R[1:])
        elif mn.startswith('s_cbranch') or mn in ('s_branch', 's_endpgm', 's_setpc_b64', 's_swappc_b64'):
            I.kind = 'branch'; I.rd = flat(R)
        elif mn.startswith('s_cmp') or mn in ('s_waitcnt', 's_barrier', 's_sleep', 's_setprio', 's_bitcmp0_b32', 's_bitcmp1_b32', 's_set_gpr_idx_off', 's_set_gpr_idx_on', 's_set_gpr_idx_idx'):
            I.kind = 'salu'; I.rd = flat(R)
            if mn in ('s_set_gpr_idx_on', 's_set_gpr_idx_idx'): I.wr = [('s', 124)]
        elif 'saveexec' in mn:
            I.kind = 'salu'; I.wr = R[0] + [('s', 126), ('s', 127)]; I.rd = flat(R[1:])
        else:
            I.kind = 'salu'; I.wr = R[0]; I.rd = flat(R[1:])
    else:
        raise ValueError('unknown instruction: ' + text)
    return I

def need(prod, cons):
    n = 0
    pw = set(prod.wr);
    crd = set(cons.rd); cwr = set(cons.wr)
    vw = {r for r in pw if r[0] in 'va'}; sw = {r for r in pw if r[0] == 's'}
    cbase = re.sub(r'_(e32|e64|dpp|sdwa)$', '', cons.mn)
    pbase = re.sub(r'_(e32|e64|dpp|sdwa)$', '', prod.mn)
    if prod.kind == 'valu':
        isdot = pbase.startswith('v_dot')
        if cons.kind == 'mfma' and vw & crd: n = max(n, 3 if isdot else 2)
        if cons.kind == 'mfma' and (('s', 126) in sw): n = max(n, 4)
        if cons.kind == 'vmem' and sw & crd: n = max(n, 5)
        if cons.kind == 'valu':
            if sw & crd: n = max(n, 2)
            if cbase in ('v_readlane_b32', 'v_writelane_b32') and sw & crd: n = max(n, 4)
            if cbase == 'v_div_fmas_f32' and ('s', 106) in sw: n = max(n, 4)
            if cbase in ('v_readlane_b32', 'v_readfirstlane_b32') and vw & crd: n = max(n, 1)
            if (cbase in ('v_readlane_b32', 'v_readfirstlane_b32', 'v_writelane_b32') or cbase.startswith('v_permlane')) and ('s', 126) in sw: n = max(n, 4)
            isdpp = ('row_' in cons.mods or 'quad_perm' in cons.mods or 'wave_' in cons.mods or cons.mn.endswith('_dpp'))
            if isdpp and vw & crd: n = max(n, 2)
            if isdpp and ('s', 126) in sw: n = max(n, 5)
            if cbase.startswith('v_permlane') and vw & crd: n = max(n, 2)
            if pbase in TRANS and cbase not in TRANS and vw & crd: n = max(n, 1)
            if ('sdwa' in prod.mn or 'op_sel' in prod.mods) and vw & (crd | cwr): n = max(n, 1)
            if isdot:
                if cbase == pbase:
                    ab = set()
                    for o in cons.ops[1:3]: ab |= set(regs_of(o))
                    if vw & ab: n = max(n, 3)
                    elif vw & cwr and not (vw & crd): n = max(n, 3)
                elif vw & (crd | cwr): n = max(n, 3)
        if isdot and cons.kind in ('vmem', 'ds') and vw & (crd | cwr): n = max(n, 3)
        if cons.kind in ('salu', 'branch', 'smem') and sw & crd: n = max(n, 1)
        if cons.kind == 'branch' and cons.mn in ('s_cbranch_vccz', 's_cbranch_vccnz', 's_cbranch_execz', 's_cbranch_execnz') and sw & {('s',106),('s',126)}: n = max(n, 5) if False else max(n, 1)
    if prod.kind == 'mfma':
        p = prod.passes
        D = set(prod.wr)
        if cons.kind == 'mfma':
            if D & set(cons.srcab): n = max(n, {4: 8, 8: 12}[p])
            if D & set(cons.srcc):
                if set(cons.srcc) == D and cons.passes == p: pass
                else: n = max(n, {4: 6, 8: 10}[p])
            elif D & cwr: n = max(n, {4: 6, 8: 10}[p])
        elif cons.kind in ('valu', 'vmem', 'ds'):
            if D & (crd | cwr): n = max(n, {4: 8, 8: 12}[p])
        if cons.kind == 'valu' and set(prod.srcc) & cwr: n = max(n, {4: 3, 8: 7}[p])
    if prod.kind == 'vmem' and prod.storedata:
        if set(prod.storedata) & cwr: n = max(n, 2 if cons.kind == 'valu' else 1)
    if prod.kind == 'salu':
        if ('s', 124) in sw and (cons.kind in ('vmem', 'ds') and ('s', 124) in crd): n = max(n, 1)
        if ('s', 124) in sw and cons.mn.startswith('s_movrel'): n = max(n, 1)
    return n

MAXD = 13

def fix_hazards(lines):
    snaps = {}
    for _iter in range(4):
        out = []
        alts = [[]]
        newsnaps = {}
        for text in lines:
            I = parse(text)
            if I.kind == 'none':
                out.append(text); continue
            if I.kind == 'label':
                name = text.strip()[:-1]
                alts = alts + [list(h) for h in snaps.get(name, [])] + [list(h) for h in newsnaps.get(name, [])]
                out.append(text); continue
            req = 0
            for hist in alts:
                dist = 0
                for P in reversed(hist):
                    if dist > MAXD: break
                    n = need(P, I)
                    if n - dist > req: req = n - dist
                    dist += P.states
            if req > 0:
                nop = parse(f'  s_nop {req-1}')
                out.append(nop.text)
                for h in alts: h.append(nop)
            out.append(text)
            for h in alts: h.append(I)
            alts = [h[-20:] for h in alts]
            uniq = {}
            for h in alts:
                uniq[tuple(id(x) for x in h[-(MAXD + 2):])] = h
            alts = list(uniq.values())
            if I.kind == 'branch':
                if I.mn.startswith('s_cbranch') or I.mn == 's_branch':
                    newsnaps.setdefault(I.ops[0], []).extend(list(h) for h in alts)
                if I.mn in ('s_branch', 's_endpgm', 's_setpc_b64'):
                    alts = [[]]
        key = lambda d: {k: [[x.text for x in h] for h in v] for k, v in d.items()}
        if key(newsnaps) == key(snaps): break
        snaps = newsnaps
    return out

class Asm:
    def __init__(self):
        self.lines = []
        self.nlab = 0
    def __call__(self, s):
        for l in s.split('\n'):
            if l.strip(): self.lines.append('  ' + l.strip() if not l.strip().endswith(':') and not l.strip().startswith('.') else l.strip())
    def label(self, name, pad=0):
        self.lines.append(name + ':')
    def newlabel(self, stem='L'):
        self.nlab += 1
        return f'{stem}_{self.nlab}'
    def text(self):
        return '\n'.join(fix_hazards(self.lines)) + '\n'

def kernel_header(name):
    return f""".globl {name}
.p2align 8
.type {name},@function
{name}:"""

def kernel_desc(name, vgpr, sgpr=96, accum=None):
    if accum is None: accum = (vgpr + 3) // 4 * 4
    return f""".p2align 6
.amdhsa_kernel {name}
  .amdhsa_next_free_vgpr {vgpr}
  .amdhsa_next_free_sgpr {sgpr}
  .amdhsa_accum_offset {accum}
  .amdhsa_group_segment_fixed_size 0
  .amdhsa_kernarg_size 96
  .amdhsa_user_sgpr_count 2
  .amdhsa_user_sgpr_kernarg_segment_ptr 1
  .amdhsa_system_sgpr_workgroup_id_x 1
.end_amdhsa_kernel
"""
```

```python
import sys
from asmlib import *

NAME = 'interleave_layers__ssm_conv_h3__dense_activation_relu__prompt'
S, D, DFF = 2048, 448, 1792
XBYTES = S * D * 2
WBYTES = D * DFF * 2
WS_KVR = 0x000000
WS_W1F = 0x200000
WS_W2F = 0x400000
WS_YB = 0x600000
WS_XA = 0x800000
WS_X2 = 0xA00000
WS_HB = 0x1000000
HBYTES = S * DFF * 2

P_Q, P_K, P_V, P_SHK, P_SSMK, P_SSMD, P_BX, P_W1, P_W2, P_OUT, P_DBG, P_WS = [16 + 2 * i for i in range(12)]


def load_args(a):
    a('s_load_dwordx16 s[16:31], s[0:1], 0')
    a('s_load_dwordx8 s[32:39], s[0:1], 64')


def srd(a, d, p, off, size):
    if off == 0:
        a(f's_mov_b32 s{d}, s{p}')
        a(f's_mov_b32 s{d+1}, s{p+1}')
    else:
        o = off if isinstance(off, str) else hex(off)
        a(f's_add_u32 s{d}, s{p}, {o}')
        a(f's_addc_u32 s{d+1}, s{p+1}, 0')
    a(f's_mov_b32 s{d+2}, {hex(size)}')
    a(f's_mov_b32 s{d+3}, 0x20000')


def magic(n):
    return hex(-(-(1 << 32) // n))


def k1_prep(a):
    a(kernel_header('prep_kernel'))
    load_args(a)
    a('s_cmp_ge_u32 s2, 644')
    a('s_cbranch_scc1 K1_END')
    a('v_and_b32 v1, 63, v0')
    a('v_lshrrev_b32 v2, 6, v0')
    a('v_readfirstlane_b32 s3, v2')
    a('v_lshrrev_b32 v3, 4, v1')
    a('v_bfe_u32 v4, v1, 2, 2')
    a('v_and_b32 v5, 3, v1')
    a('s_cmp_ge_u32 s2, 448')
    a('s_cbranch_scc1 K1_W')
    a(f's_mul_hi_u32 s4, s2, {magic(14)}')
    a('s_mul_i32 s5, s4, 14')
    a('s_sub_u32 s5, s2, s5')
    a('v_and_b32 v6, 3, v0')
    a('v_lshrrev_b32 v7, 2, v0')
    a('s_lshl_b32 s6, s4, 6')
    a('v_add_u32 v8, s6, v7')
    a('s_movk_i32 s7, 896')
    a('v_mul_lo_u32 v8, v8, s7')
    a('s_lshl_b32 s6, s5, 6')
    a('v_lshl_add_u32 v9, v6, 4, s6')
    a('v_add_u32 v8, v8, v9')
    a('v_add_u32 v10, -896, v8')
    a('v_add_u32 v11, -1792, v8')
    a('v_add_u32 v12, -2688, v8')
    a('v_lshlrev_b32 v13, 2, v9')
    a('s_waitcnt lgkmcnt(0)')
    srd(a, 40, P_K, 0, XBYTES)
    srd(a, 44, P_V, 0, XBYTES)
    srd(a, 48, P_SHK, 0, D * 8)
    srd(a, 52, P_WS, WS_KVR, XBYTES)
    a('buffer_load_dwordx4 v[36:39], v13, s[48:51], 0 offen')
    a('buffer_load_dwordx4 v[40:43], v13, s[48:51], 0 offen offset:16')
    a('buffer_load_dwordx4 v[44:47], v13, s[48:51], 0 offen offset:32')
    a('buffer_load_dwordx4 v[48:51], v13, s[48:51], 0 offen offset:48')
    a('buffer_load_dwordx4 v[28:31], v12, s[40:43], 0 offen')
    a('buffer_load_dwordx4 v[24:27], v11, s[40:43], 0 offen')
    a('buffer_load_dwordx4 v[20:23], v10, s[40:43], 0 offen')
    a('buffer_load_dwordx4 v[16:19], v8, s[40:43], 0 offen')
    a('buffer_load_dwordx4 v[32:35], v8, s[44:47], 0 offen')
    a('s_mov_b32 s8, 0xffff')
    a('s_mov_b32 s9, 0xffff0000')
    a('s_mov_b32 s10, 0x3f803f80')
    a('v_sub_u32 v14, 63, v7')
    a('v_mul_u32_u24 v14, 80, v14')
    a('v_lshl_add_u32 v14, v6, 4, v14')
    a('s_waitcnt vmcnt(5)')
    for e in range(8):
        A, B = 36 + 2 * e, 37 + 2 * e
        if e % 2 == 0:
            a(f'v_and_b32 v{64+e}, s8, v{A}')
            a(f'v_lshrrev_b32 v{72+e}, 16, v{A}')
            a(f'v_and_b32 v{80+e}, s8, v{B}')
            a(f'v_lshrrev_b32 v{88+e}, 16, v{B}')
        else:
            a(f'v_lshlrev_b32 v{64+e}, 16, v{A}')
            a(f'v_and_b32 v{72+e}, s9, v{A}')
            a(f'v_lshlrev_b32 v{80+e}, 16, v{B}')
            a(f'v_and_b32 v{88+e}, s9, v{B}')
    a('s_waitcnt vmcnt(3)')
    for e in range(8): a(f'v_dot2_f32_bf16 v{96+e}, v{28+e//2}, v{88+e}, 0')
    for e in range(8): a(f'v_dot2_f32_bf16 v{104+e}, v{24+e//2}, v{80+e}, 0')
    for e in range(8): a(f'v_cvt_pk_bf16_f32 v{96+e}, v{96+e}, v{104+e}')
    for e in range(8): a(f'v_dot2_f32_bf16 v{96+e}, v{96+e}, s10, 0')
    a('s_waitcnt vmcnt(2)')
    for e in range(8): a(f'v_dot2_f32_bf16 v{104+e}, v{20+e//2}, v{72+e}, 0')
    for e in range(8): a(f'v_cvt_pk_bf16_f32 v{96+e}, v{96+e}, v{104+e}')
    for e in range(8): a(f'v_dot2_f32_bf16 v{96+e}, v{96+e}, s10, 0')
    a('s_waitcnt vmcnt(1)')
    for e in range(8): a(f'v_dot2_f32_bf16 v{104+e}, v{16+e//2}, v{64+e}, 0')
    for e in range(8): a(f'v_cvt_pk_bf16_f32 v{96+e}, v{96+e}, v{104+e}')
    for e in range(8): a(f'v_dot2_f32_bf16 v{96+e}, v{96+e}, s10, 0')
    for p in range(4): a(f'v_cvt_pk_bf16_f32 v{104+p}, v{96+2*p}, v{97+2*p}')
    a('s_waitcnt vmcnt(0)')
    for p in range(4):
        a(f'v_and_b32 v{64+2*p}, s8, v{32+p}')
        a(f'v_and_b32 v{65+2*p}, s9, v{32+p}')
    for e in range(8): a(f'v_dot2_f32_bf16 v{96+e}, v{104+e//2}, v{64+e}, 0')
    for p in range(4): a(f'v_cvt_pk_bf16_f32 v{108+p}, v{96+2*p}, v{97+2*p}')
    a('ds_write_b128 v14, v[108:111]')
    a('s_lshr_b32 s11, s3, 1')
    a('s_and_b32 s12, s3, 1')
    a('v_lshl_add_u32 v15, v3, 3, v4')
    a('s_lshl_b32 s13, s11, 5')
    a('v_add_u32 v15, s13, v15')
    a('v_mul_u32_u24 v15, 80, v15')
    a('s_lshl_b32 s13, s12, 5')
    a('v_lshl_add_u32 v15, v5, 3, v15')
    a('v_add_u32 v15, s13, v15')
    a('v_and_b32 v16, 15, v1')
    a('s_lshl_b32 s13, s5, 5')
    a('s_lshl_b32 s14, s12, 4')
    a('s_add_u32 s13, s13, s14')
    a('v_add_u32 v16, s13, v16')
    a('v_lshlrev_b32 v16, 12, v16')
    a('s_lshl_b32 s13, s4, 7')
    a('s_sub_u32 s13, 3968, s13')
    a('s_lshl_b32 s14, s11, 6')
    a('s_add_u32 s13, s13, s14')
    a('v_lshl_add_u32 v16, v3, 4, v16')
    a('v_add_u32 v16, s13, v16')
    a('s_waitcnt lgkmcnt(0)')
    a('s_barrier')
    a('ds_read_b64_tr_b16 v[20:21], v15')
    a('ds_read_b64_tr_b16 v[22:23], v15 offset:320')
    a('s_waitcnt lgkmcnt(0)')
    a('buffer_store_dwordx4 v[20:23], v16, s[52:55], 0 offen')
    a('s_endpgm')
    a.label('K1_W')
    a('s_cmp_ge_u32 s2, 546')
    a('s_cbranch_scc1 K1_W2')
    a('s_sub_u32 s4, s2, 448')
    a(f's_mul_hi_u32 s5, s4, {magic(14)}')
    a('s_mul_i32 s6, s5, 14')
    a('s_sub_u32 s6, s4, s6')
    a('v_lshrrev_b32 v6, 4, v0')
    a('v_and_b32 v7, 15, v0')
    a('s_lshl_b32 s7, s5, 6')
    a('v_add_u32 v8, s7, v6')
    a('s_movk_i32 s7, 3584')
    a('v_mul_lo_u32 v8, v8, s7')
    a('s_lshl_b32 s7, s6, 8')
    a('v_lshl_add_u32 v8, v7, 4, v8')
    a('v_add_u32 v8, s7, v8')
    a('s_waitcnt lgkmcnt(0)')
    srd(a, 40, P_W1, 0, WBYTES)
    srd(a, 44, P_WS, WS_W1F, WBYTES)
    for i in range(4):
        a(f's_mov_b32 s8, {16*3584*i}')
        a(f'buffer_load_dwordx4 v[{16+4*i}:{19+4*i}], v8, s[40:43], s8 offen')
    a('v_mul_u32_u24 v9, 320, v6')
    a('v_lshl_add_u32 v9, v7, 4, v9')
    a('v_lshrrev_b32 v10, 1, v3')
    a('v_lshl_add_u32 v10, v10, 3, v4')
    a('v_mul_u32_u24 v10, 320, v10')
    a('v_and_b32 v11, 1, v3')
    a('v_lshl_add_u32 v10, v11, 5, v10')
    a('v_lshl_add_u32 v10, v5, 3, v10')
    a('s_lshl_b32 s7, s3, 6')
    a('v_add_u32 v10, s7, v10')
    a('s_lshl_b32 s7, s6, 2')
    a('s_add_u32 s7, s7, s3')
    a('s_mul_i32 s7, s7, 28')
    a('s_lshl_b32 s8, s5, 2')
    a('s_add_u32 s7, s7, s8')
    a('s_lshl_b32 s7, s7, 10')
    a('v_lshl_add_u32 v11, v1, 4, s7')
    for i in range(4):
        a(f's_waitcnt vmcnt({3-i})')
        a(f'ds_write_b128 v9, v[{16+4*i}:{19+4*i}] offset:{16*320*i}')
    a('s_waitcnt lgkmcnt(0)')
    a('s_barrier')
    for kl in range(4):
        for hh in range(2):
            a(f'ds_read_b64_tr_b16 v[{32+4*kl+2*hh}:{33+4*kl+2*hh}], v10 offset:{(16*kl+4*hh)*320}')
    for kl in range(4):
        a(f's_waitcnt lgkmcnt({6-2*kl})')
        a(f'buffer_store_dwordx4 v[{32+4*kl}:{35+4*kl}], v11, s[44:47], 0 offen offset:{1024*kl}')
    a('s_endpgm')
    a.label('K1_W2')
    a('s_sub_u32 s4, s2, 546')
    a(f's_mul_hi_u32 s5, s4, {magic(7)}')
    a('s_mul_i32 s6, s5, 7')
    a('s_sub_u32 s6, s4, s6')
    a('v_lshrrev_b32 v6, 3, v0')
    a('v_and_b32 v7, 7, v0')
    a('s_lshl_b32 s7, s5, 7')
    a('v_add_u32 v8, s7, v6')
    a('s_movk_i32 s7, 896')
    a('v_mul_lo_u32 v8, v8, s7')
    a('s_lshl_b32 s7, s6, 7')
    a('v_lshl_add_u32 v8, v7, 4, v8')
    a('v_add_u32 v8, s7, v8')
    a('s_waitcnt lgkmcnt(0)')
    srd(a, 40, P_W2, 0, WBYTES)
    srd(a, 44, P_WS, WS_W2F, WBYTES)
    for i in range(4):
        a(f's_mov_b32 s8, {32*896*i}')
        a(f'buffer_load_dwordx4 v[{16+4*i}:{19+4*i}], v8, s[40:43], s8 offen')
    a('v_mul_u32_u24 v9, 192, v6')
    a('v_lshl_add_u32 v9, v7, 4, v9')
    a('v_lshrrev_b32 v10, 1, v3')
    a('v_lshl_add_u32 v10, v10, 2, v4')
    a('s_lshl_b32 s7, s3, 5')
    a('v_add_u32 v10, s7, v10')
    a('v_mul_u32_u24 v10, 192, v10')
    a('v_and_b32 v11, 1, v3')
    a('v_lshl_add_u32 v10, v11, 5, v10')
    a('v_lshl_add_u32 v10, v5, 3, v10')
    a('s_mul_i32 s7, s6, 224')
    a('s_lshl_b32 s8, s5, 3')
    a('s_add_u32 s7, s7, s8')
    a('s_lshl_b32 s8, s3, 1')
    a('s_add_u32 s7, s7, s8')
    a('s_lshl_b32 s7, s7, 10')
    a('v_lshl_add_u32 v11, v1, 4, s7')
    a(f's_mov_b32 s9, {112*1024}')
    for i in range(4):
        a(f's_waitcnt vmcnt({3-i})')
        a(f'ds_write_b128 v9, v[{16+4*i}:{19+4*i}] offset:{32*192*i}')
    a('s_waitcnt lgkmcnt(0)')
    a('s_barrier')
    n = 0
    for dtl in range(2):
        for k1 in range(2):
            for hh in range(2):
                a(f'ds_read_b64_tr_b16 v[{32+4*n+2*hh}:{33+4*n+2*hh}], v10 offset:{(16*k1+8*hh)*192+64*dtl}')
            n += 1
    n = 0
    for dtl in range(2):
        for k1 in range(2):
            a(f's_waitcnt lgkmcnt({6-2*n})')
            a(f'buffer_store_dwordx4 v[{32+4*n}:{35+4*n}], v11, s[44:47], {"s9" if dtl else "0"} offen offset:{1024*k1}')
            n += 1
    a.label('K1_END')
    a('s_endpgm')


FC = [1, 4, 5, 8, 8, 11, 12, 1]
K2_CB = 39936
K2_G = 34816
K2_SCR = 2 * K2_CB
K2_LDS = K2_SCR + 16384


def k2_conv(a):
    a(kernel_header('conv_kernel'))
    load_args(a)
    a('s_cmp_ge_u32 s2, 224')
    a('s_cbranch_scc1 K2_END')
    a('v_and_b32 v1, 63, v0')
    a('v_lshrrev_b32 v2, 6, v0')
    a('v_readfirstlane_b32 s3, v2')
    a('s_lshr_b32 s4, s3, 1')
    a('s_and_b32 s5, s3, 1')
    a('s_lshl_b32 s6, s2, 1')
    a('s_add_u32 s6, s6, s4')
    a('s_lshl_b32 s7, s6, 12')
    a(f's_mul_i32 s8, s4, {K2_CB}')
    a('s_lshl_b32 s9, s5, 11')
    a('v_lshl_add_u32 v2, v1, 4, s9')
    a('v_add_u32 v3, -16, v2')
    a('s_waitcnt lgkmcnt(0)')
    srd(a, 40, P_SSMK, 's7', 4096)
    a(f's_add_u32 s10, s7, {WS_KVR}')
    srd(a, 44, P_WS, 's10', 4096)
    srd(a, 48, P_WS, WS_YB, XBYTES)
    a('s_lshl_b32 s10, s2, 2')
    a('s_load_dword s11, s[26:27], s10')
    a('buffer_load_dwordx4 v[16:19], v3, s[40:43], 0 offen')
    a('buffer_load_dwordx4 v[20:23], v2, s[40:43], 0 offen')
    a('buffer_load_dwordx4 v[24:27], v2, s[40:43], 0 offen offset:1008')
    a('buffer_load_dwordx4 v[28:31], v2, s[40:43], 0 offen offset:1024')
    a('buffer_load_dwordx4 v[32:35], v2, s[44:47], 0 offen')
    a('buffer_load_dwordx4 v[36:39], v2, s[44:47], 0 offen offset:1024')
    a('v_add_u32 v4, s8, v2')
    a('v_mov_b32 v40, 0')
    a('v_mov_b32 v41, 0')
    a('v_mov_b32 v42, 0')
    a('v_mov_b32 v43, 0')
    a('v_and_b32 v5, 7, v1')
    a('v_lshlrev_b32 v6, 2, v5')
    a('s_mov_b32 s12, 0x1cb88541')
    a('v_lshrrev_b32 v6, v6, s12')
    a('v_and_b32 v6, 15, v6')
    a('v_mul_u32_u24 v7, 272, v5')
    a('v_add_u32 v6, v6, v7')
    a('v_lshl_add_u32 v8, v6, 4, s8')
    a('s_cmp_eq_u32 s5, 0')
    a('s_cbranch_scc0 K2_Z1')
    a('s_mov_b64 exec, 0xff')
    a('ds_write_b128 v8, v[40:43]')
    a('s_mov_b64 exec, -1')
    a('s_branch K2_Z2')
    a.label('K2_Z1')
    a('v_lshl_add_u32 v9, v1, 4, s8')
    a(f'ds_write_b128 v9, v[40:43] offset:{K2_G+4096}')
    a.label('K2_Z2')
    a('v_bfe_u32 v9, v1, 3, 1')
    a('v_lshrrev_b32 v10, 4, v1')
    a('v_add_u32 v9, v9, v10')
    a('v_lshl_add_u32 v8, v9, 4, v8')
    a('s_lshl_b32 s12, s5, 8')
    a('v_add_u32 v8, s12, v8')
    a('v_and_b32 v11, 15, v1')
    a('v_lshlrev_b32 v12, 5, v11')
    a('v_lshlrev_b32 v13, 4, v10')
    a('v_sub_u32 v12, v13, v12')
    a('s_add_u32 s13, s8, s12')
    a(f's_add_u32 s13, s13, {K2_G+480}')
    a('v_add_u32 v12, s13, v12')
    for p in range(2):
        d = 16 + 8 * p
        a(f's_waitcnt vmcnt({4-2*p})')
        for k in range(6): a(f'v_mov_b32 v{44+k}, v{d+1+k}')
        for k in range(6): a(f'v_alignbyte_b32 v{50+k}, v{d+k+1}, v{d+k}, 2')
        for k in range(6): a(f'v_alignbyte_b32 v{56+k}, v{d+k+2}, v{d+k+1}, 2')
        src = {1: 50, 2: 44, 3: 56, 4: d + 2, 5: 52, 6: 46, 7: 58, 8: d + 4}
        for r in range(1, 9):
            off = ((r - 1) * 272 + FC[r - 1] + 1) * 16 + 1024 * p
            a(f'ds_write_b128 v4, v[{src[r]}:{src[r]+3}] offset:{off}')
        a('s_waitcnt lgkmcnt(0)')
    a('s_waitcnt vmcnt(1)')
    a(f'ds_write_b128 v4, v[32:35] offset:{K2_G}')
    a('s_waitcnt vmcnt(0)')
    a(f'ds_write_b128 v4, v[36:39] offset:{K2_G+1024}')
    a('s_waitcnt lgkmcnt(0)')
    a('s_barrier')
    ACC = 16
    def Fr(b, s): return 48 + 64 * b + 4 * s
    def Gr(b, t): return 80 + 64 * b + 4 * t
    def reads(qq):
        b = qq & 1
        L = []
        for t in range(8):
            L.append(f'ds_read_b128 v[{Fr(b,t)}:{Fr(b,t)+3}], v8 offset:{512*t+64*qq}')
            L.append(f'ds_read_b128 v[{Gr(b,t)}:{Gr(b,t)+3}], v12 offset:{512*(7-t)+64*qq}')
        return L
    for l in reads(0): a(l)
    started = set()
    for qq in range(4):
        b = qq & 1
        nxt = reads(qq + 1) if qq < 3 else []
        cnt = 0
        for m in range(8):
            pairs = [(s, t) for s in range(m + 1) for t in range(m + 1) if max(s, t) == m and s + t <= 7]
            if qq == 0:
                a(f's_waitcnt lgkmcnt({min(15, 14-2*m + cnt)})')
            elif m == 0:
                a('s_waitcnt lgkmcnt(0)')
            for (s, t) in pairs:
                o = ACC + 4 * (s + t)
                c = f'v[{o}:{o+3}]' if (s + t) in started else '0'
                started.add(s + t)
                a(f'v_mfma_f32_16x16x32_bf16 v[{o}:{o+3}], v[{Fr(b,s)}:{Fr(b,s)+3}], v[{Gr(b,t)}:{Gr(b,t)+3}], {c}')
                if nxt and (qq > 0 or m >= 7):
                    for _ in range(2 if qq == 0 else 1):
                        if nxt: a(nxt.pop(0))
        for l in nxt: a(l)
    a('s_lshl_b32 s12, s3, 12')
    a(f's_add_u32 s12, s12, {K2_SCR}')
    a('v_lshl_add_u32 v2, v1, 4, s12')
    a('s_xor_b32 s13, s3, 1')
    a('s_lshl_b32 s13, s13, 12')
    a(f's_add_u32 s13, s13, {K2_SCR}')
    a('v_lshl_add_u32 v3, v1, 4, s13')
    a('s_cmp_eq_u32 s5, 0')
    a('s_cbranch_scc0 K2_R1')
    for j in range(4):
        a(f'ds_write_b128 v2, v[{ACC+16+4*j}:{ACC+19+4*j}] offset:{1024*j}')
    a('s_branch K2_R2')
    a.label('K2_R1')
    for j in range(4):
        a(f'ds_write_b128 v2, v[{ACC+4*j}:{ACC+3+4*j}] offset:{1024*j}')
    for j in range(16):
        a(f'v_mov_b32 v{ACC+j}, v{ACC+16+j}')
    a.label('K2_R2')
    a('v_lshlrev_b32 v4, 5, v11')
    a('v_lshl_add_u32 v4, v10, 3, v4')
    a('s_lshl_b32 s12, s5, 11')
    a(f's_sub_u32 s12, {K2_G + 4088 - 3*512}, s12')
    a('s_add_u32 s12, s12, s8')
    a('v_sub_u32 v4, s12, v4')
    for j in range(4):
        a(f'ds_read_b64 v[{64+2*j}:{65+2*j}], v4 offset:{(3-j)*512}')
    a('s_waitcnt lgkmcnt(0)')
    a('s_lshl_b32 s12, s11, 16')
    a('s_and_b32 s13, s11, 0xffff0000')
    a('s_cmp_eq_u32 s4, 0')
    a('s_cselect_b32 s11, s12, s13')
    a('s_barrier')
    for j in range(4):
        a(f'ds_read_b128 v[{48+4*j}:{51+4*j}], v3 offset:{1024*j}')
    a('v_lshrrev_b32 v5, 2, v11')
    a('s_lshl_b32 s12, s5, 4')
    a('v_add_u32 v5, s12, v5')
    a('v_mul_u32_u24 v5, 448, v5')
    a('v_add_u32 v5, s6, v5')
    a('v_lshlrev_b32 v5, 7, v5')
    a('v_and_b32 v6, 3, v11')
    a('v_lshl_add_u32 v5, v6, 5, v5')
    a('v_lshl_add_u32 v5, v10, 3, v5')
    a('s_mov_b32 s14, 0xffff0000')
    a('s_mov_b32 s15, 0x3f803f80')
    for j in range(4):
        a(f's_waitcnt lgkmcnt({3-j})')
        for r in range(4): a(f'v_add_f32 v{ACC+4*j+r}, v{ACC+4*j+r}, v{48+4*j+r}')
        k0, k1 = 64 + 2 * j, 65 + 2 * j
        a(f'v_and_b32 v80, s14, v{k1}')
        a(f'v_lshlrev_b32 v81, 16, v{k1}')
        a(f'v_and_b32 v82, s14, v{k0}')
        a(f'v_lshlrev_b32 v83, 16, v{k0}')
        for r in range(4): a(f'v_mul_f32 v{80+r}, s11, v{80+r}')
        for r in range(4): a(f'v_cvt_pk_bf16_f32 v{80+r}, v{80+r}, v{ACC+4*j+r}')
        for r in range(4): a(f'v_dot2_f32_bf16 v{80+r}, v{80+r}, s15, 0')
        a(f'v_cvt_pk_bf16_f32 v{84+2*j}, v80, v81')
        a(f'v_cvt_pk_bf16_f32 v{85+2*j}, v82, v83')
        a(f's_mov_b32 s12, {j*4*448*128}')
        a(f'buffer_store_dwordx2 v[{84+2*j}:{85+2*j}], v5, s[48:51], s12 offen')
    a.label('K2_END')
    a('s_endpgm')


K3_YP = 7168 + 16
K3_XN = 8 * K3_YP
K3_LDS = K3_XN + 57344


def wg_map(a):
    a('s_and_b32 s6, s2, 7')
    a('s_lshr_b32 s7, s2, 3')
    a(f's_mul_hi_u32 s4, s7, {magic(7)}')
    a('s_mul_i32 s5, s4, 7')
    a('s_sub_u32 s5, s7, s5')
    a('s_lshl_b32 s6, s6, 2')
    a('s_add_u32 s4, s4, s6')


def reduce8(a, s, t):
    a(f'v_add_f32 v{s}, v{s}, v{s} row_ror:8')
    a(f'v_mov_b32 v{t}, v{s}')
    a(f'v_permlane16_swap_b32 v{s}, v{t}')
    a(f'v_add_f32 v{s}, v{s}, v{t}')
    a(f'v_mov_b32 v{t}, v{s}')
    a(f'v_permlane32_swap_b32 v{s}, v{t}')
    a(f'v_add_f32 v{s}, v{s}, v{t}')


def rnd(a, d, s):
    a(f'v_cvt_pk_bf16_f32 v{d}, v{s}, v{s}')
    a(f'v_lshlrev_b32 v{d}, 16, v{d}')


def ln_stats(a, X, DP, T):
    acc, tmp, mb, dm, s0, s1 = T, T + 1, T + 2, T + 3, T + 4, T + 5
    a(f'v_dot2_f32_bf16 v{acc}, v{X}, s62, 0')
    a(f'v_dot2_f32_bf16 v{s0}, v{X+1}, s62, 0')
    for p in range(2, 28, 2):
        a(f'v_dot2_f32_bf16 v{acc}, v{X+p}, s62, v{acc}')
        a(f'v_dot2_f32_bf16 v{s0}, v{X+p+1}, s62, v{s0}')
    a(f'v_add_f32 v{acc}, v{acc}, v{s0}')
    reduce8(a, acc, tmp)
    a(f'v_mul_f32 v{acc}, s63, v{acc}')
    rnd(a, mb, acc)
    a(f'v_sub_f32 v{dm}, v{acc}, v{mb}')
    a(f'v_sub_f32 v{mb}, 0, v{mb}')
    a(f'v_mov_b32 v{s0}, 0')
    a(f'v_mov_b32 v{s1}, 0')
    for p0 in range(0, 28, 4):
        for p in range(4):
            a(f'v_dot2_f32_bf16 v{T+8+2*p}, v{X+p0+p}, s60, v{mb}')
            a(f'v_dot2_f32_bf16 v{T+9+2*p}, v{X+p0+p}, s61, v{mb}')
        for p in range(4):
            a(f'v_fmac_f32 v{s0}, v{T+8+2*p}, v{T+8+2*p}')
            a(f'v_fmac_f32 v{s1}, v{T+9+2*p}, v{T+9+2*p}')
        for p in range(4):
            a(f'v_cvt_pk_bf16_f32 v{DP+p0+p}, v{T+8+2*p}, v{T+9+2*p}')
    a(f'v_add_f32 v{acc}, v{s0}, v{s1}')
    reduce8(a, acc, tmp)
    a(f'v_mul_f32 v{dm}, v{dm}, v{dm}')
    a(f'v_fma_f32 v{acc}, s63, v{acc}, -v{dm}')
    a(f'v_max_f32 v{acc}, 0, v{acc}')
    rnd(a, acc, acc)
    a(f'v_add_f32 v{acc}, 0x3727c5ac, v{acc}')
    rnd(a, acc, acc)
    a(f'v_sqrt_f32 v{acc}, v{acc}')
    rnd(a, acc, acc)
    a(f'v_rcp_f32 v{acc}, v{acc}')


def k3_gemm1(a, name, first):
    a(kernel_header(name))
    load_args(a)
    a('s_cmp_ge_u32 s2, 224')
    a(f's_cbranch_scc1 {name}_END')
    wg_map(a)
    a('v_and_b32 v1, 63, v0')
    a('v_lshrrev_b32 v2, 6, v0')
    a('v_readfirstlane_b32 s3, v2')
    a('v_lshlrev_b32 v2, 4, v1')
    a('v_and_b32 v3, 7, v1')
    a('v_lshrrev_b32 v4, 3, v1')
    a('s_lshl_b32 s8, s4, 3')
    a('s_add_u32 s8, s8, s3')
    a('s_mul_i32 s9, s8, 7168')
    if first:
        a('v_mul_u32_u24 v5, 896, v3')
        a('v_lshl_add_u32 v5, v4, 4, v5')
    a('s_mul_i32 s10, s4, 57344')
    a('s_mul_i32 s11, s3, 7168')
    a('s_add_u32 s10, s10, s11')
    a('s_lshl_b32 s11, s5, 3')
    a('s_add_u32 s11, s11, s3')
    a(f's_mul_i32 s11, s11, {28*1024}')
    a('s_waitcnt lgkmcnt(0)')
    if first:
        srd(a, 40, P_Q, 0, XBYTES)
    else:
        srd(a, 40, P_WS, WS_X2, XBYTES)
    srd(a, 44, P_WS, WS_YB, XBYTES)
    srd(a, 48, P_WS, WS_W1F, WBYTES)
    srd(a, 52, P_WS, WS_XA, XBYTES)
    srd(a, 56, P_WS, WS_HB, HBYTES)
    X, YR, YT, ACC, W = 8, 36, 64, 96, 128
    a('s_add_u32 s12, s10, 4096')
    for i in range(7):
        so, off = ('s10', 1024 * i) if i < 4 else ('s12', 1024 * (i - 4))
        a(f'buffer_load_dwordx4 v[{YR+4*i}:{YR+4*i+3}], v2, s[44:47], {so} offen offset:{off}')
    a('s_add_u32 s12, s9, 4096')
    for i in range(7):
        if first:
            a(f'buffer_load_dwordx4 v[{X+4*i}:{X+4*i+3}], v5, s[40:43], s9 offen offset:{128*i}')
        else:
            so, off = ('s9', 1024 * i) if i < 4 else ('s12', 1024 * (i - 4))
            a(f'buffer_load_dwordx4 v[{X+4*i}:{X+4*i+3}], v2, s[40:43], {so} offen offset:{off}')
    for k in range(28):
        a(f'buffer_load_dwordx4 v[{W+4*k}:{W+4*k+3}], v2, s[48:51], s11 offen offset:{1024*(k%4)}')
        if k % 4 == 3: a('s_add_u32 s11, s11, 4096')
    a('s_mov_b32 s60, 0x00003f80')
    a('s_mov_b32 s61, 0x3f800000')
    a('s_mov_b32 s62, 0x3f803f80')
    a(f's_mov_b32 s63, {hex(0x3b124925)}')
    a('s_mov_b32 s64, 0xffff0000')
    a(f'v_mul_u32_u24 v6, {K3_YP}, v3')
    a('v_lshl_add_u32 v6, v4, 4, v6')
    a('s_mul_i32 s12, s3, 896')
    a('v_add_u32 v6, s12, v6')
    a('v_xor_b32 v7, 64, v4') if False else None
    a('v_xor_b32 v7, 4, v4')
    a(f'v_mul_u32_u24 v92, {K3_YP}, v3')
    a('v_lshl_add_u32 v7, v7, 4, v92')
    a('v_add_u32 v7, s12, v7')
    a('v_sub_u32 v7, v7, v6')
    a('s_mul_i32 s13, s3, 7')
    for i in range(7):
        a(f's_add_u32 s14, s13, {i}')
        a('s_bfe_i32 s14, s14, 0x10001')
        a(f'v_and_b32 v{240+i}, s14, v7')
        a(f'v_add_u32 v{240+i}, v{240+i}, v6')
    for i in range(7):
        a(f's_waitcnt vmcnt({28+7+6-i})')
        a(f'ds_write_b128 v{240+i}, v[{YR+4*i}:{YR+4*i+3}] offset:{128*i}')
    a('v_lshrrev_b32 v6, 4, v1')
    a('v_bfe_u32 v7, v1, 1, 1')
    a('v_lshl_add_u32 v7, v6, 1, v7')
    a('v_lshlrev_b32 v7, 7, v7')
    a('v_bfe_u32 v92, v1, 2, 2')
    a('v_lshl_add_u32 v7, v92, 4, v7')
    a('v_and_b32 v92, 1, v1')
    a('v_lshl_add_u32 v7, v92, 3, v7')
    a(f's_mul_i32 s12, s3, {K3_YP}')
    a('v_add_u32 v7, s12, v7')
    a('v_and_b32 v6, 1, v6')
    a('v_lshlrev_b32 v6, 6, v6')
    a('v_add_u32 v92, v7, v6')
    a('v_xor_b32 v6, 64, v6')
    a('v_add_u32 v93, v7, v6')
    a('s_waitcnt lgkmcnt(0)')
    a('s_barrier')
    for i in range(7):
        a(f'ds_read_b64_tr_b16 v[{YT+4*i}:{YT+4*i+1}], v92 offset:{1024*i}')
        a(f'ds_read_b64_tr_b16 v[{YT+4*i+2}:{YT+4*i+3}], v93 offset:{1024*i}')
    T = 96
    DP = YR
    a('s_waitcnt vmcnt(28)')
    ln_stats(a, X, DP, T)
    a('s_waitcnt lgkmcnt(0)')
    for p0 in range(0, 28, 4):
        t = T + 8
        for p in range(4):
            a(f'v_lshlrev_b32 v{t+2*p}, 16, v{DP+p0+p}')
            a(f'v_and_b32 v{t+2*p+1}, s64, v{DP+p0+p}')
        for e in range(8): a(f'v_mul_f32 v{t+e}, v{t+e}, v{T}')
        for p in range(4):
            a(f'v_cvt_pk_bf16_f32 v{t+2*p}, v{t+2*p}, 0')
            a(f'v_cvt_pk_bf16_f32 v{t+2*p+1}, 0, v{t+2*p+1}')
        for e in range(8): a(f'v_dot2_f32_bf16 v{t+e}, v{t+e}, v{YT+p0+e//2}, 0')
        for p in range(4): a(f'v_cvt_pk_bf16_f32 v{t+8+p}, v{t+2*p}, v{t+2*p+1}')
        for p in range(4):
            a(f'v_lshlrev_b32 v{t+2*p}, 16, v{t+8+p}')
            a(f'v_and_b32 v{t+2*p+1}, s64, v{t+8+p}')
        for p in range(4):
            a(f'v_dot2_f32_bf16 v{t+2*p}, v{X+p0+p}, s60, v{t+2*p}')
            a(f'v_dot2_f32_bf16 v{t+2*p+1}, v{X+p0+p}, s61, v{t+2*p+1}')
        for p in range(4): a(f'v_cvt_pk_bf16_f32 v{X+p0+p}, v{t+2*p}, v{t+2*p+1}')
    a('s_lshl_b32 s12, s5, 10')
    a('s_add_u32 s12, s12, s9')
    for i in range(7):
        a(f's_cmp_lg_u32 s5, {i}')
        a(f's_cbranch_scc1 {name}_XA{i}')
        a(f'buffer_store_dwordx4 v[{X+4*i}:{X+4*i+3}], v2, s[52:55], s12 offen')
        a.label(f'{name}_XA{i}')
    ln_stats(a, X, DP, T)
    a('v_lshrrev_b32 v6, 1, v4')
    a('v_lshlrev_b32 v6, 10, v6')
    a('v_and_b32 v7, 1, v4')
    a('v_lshl_add_u32 v6, v7, 9, v6')
    a('v_lshl_add_u32 v6, v3, 4, v6')
    a('s_lshr_b32 s12, s3, 2')
    a(f's_mul_i32 s12, s12, {28*1024}')
    a('s_and_b32 s13, s3, 3')
    a('s_lshl_b32 s13, s13, 7')
    a('s_add_u32 s12, s12, s13')
    a(f's_add_u32 s12, s12, {K3_XN}')
    a('v_add_u32 v6, s12, v6')
    for i in range(7):
        t = T + 8
        p0 = 4 * i
        for p in range(4):
            a(f'v_lshlrev_b32 v{t+2*p}, 16, v{DP+p0+p}')
            a(f'v_and_b32 v{t+2*p+1}, s64, v{DP+p0+p}')
        for e in range(8): a(f'v_mul_f32 v{t+e}, v{t+e}, v{T}')
        for p in range(4): a(f'v_cvt_pk_bf16_f32 v{YT+p0+p}, v{t+2*p}, v{t+2*p+1}')
        a(f'ds_write_b128 v6, v[{YT+p0}:{YT+p0+3}] offset:{4096*i}')
    a(f'v_add_u32 v7, {K3_XN}, v2')
    a('s_waitcnt lgkmcnt(0)')
    a('s_barrier')
    def rd(k):
        sl = 8 + 8 * (k % 4)
        a(f'ds_read_b128 v[{sl}:{sl+3}], v7 offset:{1024*k}')
        a(f'ds_read_b128 v[{sl+4}:{sl+7}], v7 offset:{1024*(28+k)}')
    for k in range(3): rd(k)
    for k in range(28):
        if k + 3 < 28: rd(k + 3)
        nl = 2 * min(3, 27 - k)
        a(f's_waitcnt vmcnt({27-k}) lgkmcnt({nl})')
        sl = 8 + 8 * (k % 4)
        for st in range(2):
            o = ACC + 16 * st
            c = f'v[{o}:{o+15}]' if k else '0'
            a(f'v_mfma_f32_32x32x16_bf16 v[{o}:{o+15}], v[{W+4*k}:{W+4*k+3}], v[{sl+4*st}:{sl+4*st+3}], {c}')
    a('s_mul_i32 s12, s4, 224')
    a('s_lshl_b32 s13, s5, 4')
    a('s_add_u32 s12, s12, s13')
    a('s_lshl_b32 s13, s3, 1')
    a('s_add_u32 s12, s12, s13')
    a('s_lshl_b32 s12, s12, 10')
    a(f's_add_u32 s13, s12, {112*1024}')
    for st in range(2):
        o = ACC + 16 * st
        for p in range(8):
            a(f'v_cvt_pk_bf16_f32 v{40+8*st+p}, v{o+2*p}, v{o+2*p+1}')
        for p in range(8):
            a(f'v_pk_max_i16 v{40+8*st+p}, v{40+8*st+p}, 0')
        for hf in range(2):
            r = 40 + 8 * st + 4 * hf
            a(f'buffer_store_dwordx4 v[{r}:{r+3}], v2, s[56:59], {"s13" if st else "s12"} offen offset:{1024*hf}')
    a.label(f'{name}_END')
    a('s_endpgm')


K4_P = 272
K4_LDS = 4 * 64 * K4_P


def k4_gemm2(a, name, last):
    a(kernel_header(name))
    load_args(a)
    a('s_cmp_ge_u32 s2, 224')
    a(f's_cbranch_scc1 {name}_END')
    wg_map(a)
    a('v_and_b32 v1, 63, v0')
    a('v_lshrrev_b32 v2, 6, v0')
    a('v_readfirstlane_b32 s3, v2')
    a('v_lshlrev_b32 v2, 4, v1')
    a('s_mul_i32 s8, s3, 28')
    a('s_mul_i32 s9, s5, 224')
    a('s_add_u32 s9, s9, s8')
    a('s_lshl_b32 s9, s9, 10')
    a(f's_add_u32 s10, s9, {112*1024}')
    a('s_mul_i32 s11, s4, 224')
    a('s_add_u32 s11, s11, s8')
    a('s_lshl_b32 s11, s11, 10')
    a(f's_add_u32 s12, s11, {112*1024}')
    a('s_lshl_b32 s13, s4, 3')
    a('s_lshl_b32 s14, s3, 1')
    a('s_add_u32 s13, s13, s14')
    a('s_mul_i32 s14, s13, 7168')
    a('s_lshl_b32 s15, s5, 10')
    a('s_add_u32 s60, s14, s15')
    a('s_add_u32 s61, s60, 7168')
    a('s_waitcnt lgkmcnt(0)')
    srd(a, 40, P_WS, WS_W2F, WBYTES)
    srd(a, 44, P_WS, WS_HB, HBYTES)
    srd(a, 48, P_WS, WS_XA, XBYTES)
    if last:
        srd(a, 52, P_OUT, 0, XBYTES)
    else:
        srd(a, 52, P_WS, WS_X2, XBYTES)
    ACC = 16
    NS = 14
    def ld(k):
        sl = 16 * (k % NS)
        off = 1024 * (k % 4)
        a(f'buffer_load_dwordx4 a[{sl}:{sl+3}], v2, s[40:43], s9 offen offset:{off}')
        a(f'buffer_load_dwordx4 a[{sl+8}:{sl+11}], v2, s[44:47], s11 offen offset:{off}')
        a(f'buffer_load_dwordx4 a[{sl+4}:{sl+7}], v2, s[40:43], s10 offen offset:{off}')
        a(f'buffer_load_dwordx4 a[{sl+12}:{sl+15}], v2, s[44:47], s12 offen offset:{off}')
        if k % 4 == 3:
            for s in (9, 10, 11, 12): a(f's_add_u32 s{s}, s{s}, 4096')
    for k in range(NS): ld(k)
    a('buffer_load_dwordx4 v[8:11], v2, s[48:51], s60 offen')
    a('buffer_load_dwordx4 v[12:15], v2, s[48:51], s61 offen')
    a('v_and_b32 v3, 31, v1')
    a(f'v_mul_u32_u24 v3, {K4_P}, v3')
    a('v_lshrrev_b32 v4, 5, v1')
    a('v_lshl_add_u32 v3, v4, 4, v3')
    a(f's_mul_i32 s8, s3, {64*K4_P}')
    a('v_add_u32 v3, s8, v3')
    a('v_and_b32 v4, 7, v1')
    a('s_lshl_b32 s8, s3, 4')
    a('v_add_u32 v5, s8, v4')
    a(f'v_mul_u32_u24 v5, {K4_P}, v5')
    a('v_lshrrev_b32 v6, 3, v1')
    a('v_lshl_add_u32 v5, v6, 5, v5')
    if last:
        a('v_mul_u32_u24 v7, 896, v4')
        a('v_lshl_add_u32 v7, v6, 4, v7')
        a('s_lshl_b32 s15, s5, 7')
        a('s_add_u32 s60, s14, s15')
        a('s_add_u32 s61, s60, 7168')
    for k in range(28):
        issued_after = min(27, k + NS - 1) - k
        xa_after = 2 if k < NS else 0
        a(f's_waitcnt vmcnt({4*issued_after + xa_after})')
        sl = 16 * (k % NS)
        for dt in range(2):
            for st in range(2):
                o = ACC + 16 * (2 * dt + st)
                c = f'v[{o}:{o+15}]' if k else '0'
                a(f'v_mfma_f32_32x32x16_bf16 v[{o}:{o+15}], a[{sl+4*dt}:{sl+4*dt+3}], a[{sl+8+4*st}:{sl+8+4*st+3}], {c}')
        if k + NS < 28: ld(k + NS)
    for dt in range(2):
        for st in range(2):
            o = ACC + 16 * (2 * dt + st)
            for rg in range(4):
                a(f'ds_write_b128 v3, v[{o+4*rg}:{o+4*rg+3}] offset:{st*32*K4_P + dt*128 + rg*32}')
    a('s_mov_b32 s64, 0xffff0000')
    a('s_mov_b32 s62, 0x00003f80')
    a('s_mov_b32 s63, 0x3f800000')
    a('s_waitcnt lgkmcnt(0)')
    a('s_barrier')
    for u in range(2):
        for kq in range(4):
            for h in range(2):
                r = 16 + 32 * u + 8 * kq + 4 * h
                a(f'ds_read_b128 v[{r}:{r+3}], v5 offset:{kq*64*K4_P + u*8*K4_P + 16*h}')
    for u in range(2):
        a(f's_waitcnt lgkmcnt({8-8*u})')
        r = 16 + 32 * u
        for e in range(8): a(f'v_add_f32 v{r+e}, v{r+e}, v{r+8+e}')
        for e in range(8): a(f'v_add_f32 v{r+16+e}, v{r+16+e}, v{r+24+e}')
        for e in range(8): a(f'v_add_f32 v{r+e}, v{r+e}, v{r+16+e}')
        for p in range(4): a(f'v_cvt_pk_bf16_f32 v{r+8+p}, v{r+2*p}, v{r+2*p+1}')
        for p in range(4):
            a(f'v_lshlrev_b32 v{r+2*p}, 16, v{r+8+p}')
            a(f'v_and_b32 v{r+2*p+1}, s64, v{r+8+p}')
        for p in range(4):
            a(f'v_dot2_f32_bf16 v{r+2*p}, v{8+4*u+p}, s62, v{r+2*p}')
            a(f'v_dot2_f32_bf16 v{r+2*p+1}, v{8+4*u+p}, s63, v{r+2*p+1}')
        for p in range(4): a(f'v_cvt_pk_bf16_f32 v{r+8+p}, v{r+2*p}, v{r+2*p+1}')
        a(f'buffer_store_dwordx4 v[{r+8}:{r+11}], {"v7" if last else "v2"}, s[52:55], {"s61" if u else "s60"} offen')
    a.label(f'{name}_END')
    a('s_endpgm')


def main(out):
    a = Asm()
    k1_prep(a)
    k2_conv(a)
    k3_gemm1(a, 'g1a_kernel', True)
    k4_gemm2(a, 'g2a_kernel', False)
    k3_gemm1(a, 'g1b_kernel', False)
    k4_gemm2(a, 'g2b_kernel', True)
    hdr = open(f'cdna_kernels/{NAME}.s.ref').read().split('; Override launch')[0]
    hdr += f"""; @launch kernel=prep_kernel grid=(644,1,1) block=(256,1,1) lds=24576
; @launch kernel=conv_kernel grid=(224,1,1) block=(256,1,1) lds={K2_LDS}
; @launch kernel=g1a_kernel grid=(224,1,1) block=(512,1,1) lds={K3_LDS}
; @launch kernel=g2a_kernel grid=(224,1,1) block=(256,1,1) lds={K4_LDS}
; @launch kernel=g1b_kernel grid=(224,1,1) block=(512,1,1) lds={K3_LDS}
; @launch kernel=g2b_kernel grid=(224,1,1) block=(256,1,1) lds={K4_LDS}
.amdgcn_target "amdgcn-amd-amdhsa--gfx950"
.text
"""
    body = a.text()
    tail = '.section .rodata,"a"\n'
    tail += kernel_desc('prep_kernel', 112)
    tail += kernel_desc('conv_kernel', 176)
    tail += kernel_desc('g1a_kernel', 256)
    tail += kernel_desc('g2a_kernel', 80 + 224, accum=80)
    tail += kernel_desc('g1b_kernel', 256)
    tail += kernel_desc('g2b_kernel', 80 + 224, accum=80)
    open(out, 'w').write(hdr + body + tail)


if __name__ == '__main__':
    main(sys.argv[1] if len(sys.argv) > 1 else f'cdna_kernels/{NAME}.s')
```

```python
import sys
from asmlib import *

NAME = 'interleave_layers__ssm_conv_h3__dense_activation_relu__prompt'
S, D, DFF = 2048, 448, 1792
XBYTES = S * D * 2
WBYTES = D * DFF * 2
WS_KVR = 0x000000
WS_W1F = 0x200000
WS_W2F = 0x400000
WS_YB = 0x600000
WS_XA = 0x800000
WS_X2 = 0xA00000
WS_HB = 0x1000000
HBYTES = S * DFF * 2

P_Q, P_K, P_V, P_SHK, P_SSMK, P_SSMD, P_BX, P_W1, P_W2, P_OUT, P_DBG, P_WS = [16 + 2 * i for i in range(12)]


def load_args(a):
    a('s_load_dwordx16 s[16:31], s[0:1], 0')
    a('s_load_dwordx8 s[32:39], s[0:1], 64')


def srd(a, d, p, off, size):
    if off == 0:
        a(f's_mov_b32 s{d}, s{p}')
        a(f's_mov_b32 s{d+1}, s{p+1}')
    else:
        o = off if isinstance(off, str) else hex(off)
        a(f's_add_u32 s{d}, s{p}, {o}')
        a(f's_addc_u32 s{d+1}, s{p+1}, 0')
    a(f's_mov_b32 s{d+2}, {hex(size)}')
    a(f's_mov_b32 s{d+3}, 0x20000')


PROF = False
WS_PROF = 0x2000000
def stamp(a, k):
    if not PROF: return
    a('s_memtime s[92:93]')
    a('s_waitcnt lgkmcnt(0)')
    a(f's_mov_b32 s{70+k}, s92')

def stamp_begin(a):
    if not PROF: return
    a('s_memrealtime s[94:95]')
    a('s_memtime s[92:93]')
    a('s_waitcnt lgkmcnt(0)')
    a('s_mov_b32 s70, s92')
    for k in range(1, 14): a(f's_mov_b32 s{70+k}, 0')

def stamp_end(a, kid, n=13):
    if not PROF: return
    lab = a.newlabel('PE')
    a('s_waitcnt vmcnt(0)')
    stamp(a, 13)
    a('s_memrealtime s[92:93]')
    a('s_cmp_lg_u32 s3, 0')
    a(f's_cbranch_scc1 {lab}')
    srd(a, 88, P_WS, WS_PROF + kid * 0x10000, 0x10000)
    a('s_lshl_b32 s86, s2, 6')
    a('v_mov_b32 v0, s86')
    a('s_waitcnt lgkmcnt(0)')
    a('s_mov_b64 exec, 1')
    a('v_mov_b32 v1, s94')
    a('buffer_store_dword v1, v0, s[88:91], 0 offen')
    a('v_mov_b32 v1, s92')
    a('buffer_store_dword v1, v0, s[88:91], 0 offen offset:4')
    for k in range(14):
        a(f'v_mov_b32 v1, s{70+k}')
        a(f'buffer_store_dword v1, v0, s[88:91], 0 offen offset:{8+4*k}')
    a.label(lab)

def magic(n):
    return hex(-(-(1 << 32) // n))


def k1_prep(a):
    a(kernel_header('prep_kernel'))
    stamp_begin(a)
    load_args(a)
    a('s_cmp_ge_u32 s2, 644')
    a('s_cbranch_scc1 K1_END')
    a('v_and_b32 v1, 63, v0')
    a('v_lshrrev_b32 v2, 6, v0')
    a('v_readfirstlane_b32 s3, v2')
    a('v_lshrrev_b32 v3, 4, v1')
    a('v_bfe_u32 v4, v1, 2, 2')
    a('v_and_b32 v5, 3, v1')
    a('s_cmp_ge_u32 s2, 448')
    a('s_cbranch_scc1 K1_W')
    a(f's_mul_hi_u32 s4, s2, {magic(14)}')
    a('s_mul_i32 s5, s4, 14')
    a('s_sub_u32 s5, s2, s5')
    a('v_and_b32 v6, 3, v0')
    a('v_lshrrev_b32 v7, 2, v0')
    a('s_lshl_b32 s6, s4, 6')
    a('v_add_u32 v8, s6, v7')
    a('s_movk_i32 s7, 896')
    a('v_mul_lo_u32 v8, v8, s7')
    a('s_lshl_b32 s6, s5, 6')
    a('v_lshl_add_u32 v9, v6, 4, s6')
    a('v_add_u32 v8, v8, v9')
    a('v_add_u32 v10, -896, v8')
    a('v_add_u32 v11, -1792, v8')
    a('v_add_u32 v12, -2688, v8')
    a('v_lshlrev_b32 v13, 2, v9')
    a('s_waitcnt lgkmcnt(0)')
    srd(a, 40, P_K, 0, XBYTES)
    srd(a, 44, P_V, 0, XBYTES)
    srd(a, 48, P_SHK, 0, D * 8)
    srd(a, 52, P_WS, WS_KVR, XBYTES)
    a('buffer_load_dwordx4 v[36:39], v13, s[48:51], 0 offen')
    a('buffer_load_dwordx4 v[40:43], v13, s[48:51], 0 offen offset:16')
    a('buffer_load_dwordx4 v[44:47], v13, s[48:51], 0 offen offset:32')
    a('buffer_load_dwordx4 v[48:51], v13, s[48:51], 0 offen offset:48')
    a('buffer_load_dwordx4 v[28:31], v12, s[40:43], 0 offen')
    a('buffer_load_dwordx4 v[24:27], v11, s[40:43], 0 offen')
    a('buffer_load_dwordx4 v[20:23], v10, s[40:43], 0 offen')
    a('buffer_load_dwordx4 v[16:19], v8, s[40:43], 0 offen')
    a('buffer_load_dwordx4 v[32:35], v8, s[44:47], 0 offen')
    a('s_mov_b32 s8, 0xffff')
    a('s_mov_b32 s9, 0xffff0000')
    a('s_mov_b32 s10, 0x3f803f80')
    a('v_sub_u32 v14, 63, v7')
    a('v_mul_u32_u24 v14, 80, v14')
    a('v_lshl_add_u32 v14, v6, 4, v14')
    a('s_waitcnt vmcnt(5)')
    for e in range(8):
        A, B = 36 + 2 * e, 37 + 2 * e
        if e % 2 == 0:
            a(f'v_and_b32 v{64+e}, s8, v{A}')
            a(f'v_lshrrev_b32 v{72+e}, 16, v{A}')
            a(f'v_and_b32 v{80+e}, s8, v{B}')
            a(f'v_lshrrev_b32 v{88+e}, 16, v{B}')
        else:
            a(f'v_lshlrev_b32 v{64+e}, 16, v{A}')
            a(f'v_and_b32 v{72+e}, s9, v{A}')
            a(f'v_lshlrev_b32 v{80+e}, 16, v{B}')
            a(f'v_and_b32 v{88+e}, s9, v{B}')
    a('s_waitcnt vmcnt(3)')
    for e in range(8): a(f'v_dot2_f32_bf16 v{96+e}, v{28+e//2}, v{88+e}, 0')
    for e in range(8): a(f'v_dot2_f32_bf16 v{104+e}, v{24+e//2}, v{80+e}, 0')
    for e in range(8): a(f'v_cvt_pk_bf16_f32 v{96+e}, v{96+e}, v{104+e}')
    for e in range(8): a(f'v_dot2_f32_bf16 v{96+e}, v{96+e}, s10, 0')
    a('s_waitcnt vmcnt(2)')
    for e in range(8): a(f'v_dot2_f32_bf16 v{104+e}, v{20+e//2}, v{72+e}, 0')
    for e in range(8): a(f'v_cvt_pk_bf16_f32 v{96+e}, v{96+e}, v{104+e}')
    for e in range(8): a(f'v_dot2_f32_bf16 v{96+e}, v{96+e}, s10, 0')
    a('s_waitcnt vmcnt(1)')
    for e in range(8): a(f'v_dot2_f32_bf16 v{104+e}, v{16+e//2}, v{64+e}, 0')
    for e in range(8): a(f'v_cvt_pk_bf16_f32 v{96+e}, v{96+e}, v{104+e}')
    for e in range(8): a(f'v_dot2_f32_bf16 v{96+e}, v{96+e}, s10, 0')
    for p in range(4): a(f'v_cvt_pk_bf16_f32 v{104+p}, v{96+2*p}, v{97+2*p}')
    a('s_waitcnt vmcnt(0)')
    stamp(a, 1)
    for p in range(4):
        a(f'v_and_b32 v{64+2*p}, s8, v{32+p}')
        a(f'v_and_b32 v{65+2*p}, s9, v{32+p}')
    for e in range(8): a(f'v_dot2_f32_bf16 v{96+e}, v{104+e//2}, v{64+e}, 0')
    for p in range(4): a(f'v_cvt_pk_bf16_f32 v{108+p}, v{96+2*p}, v{97+2*p}')
    a('ds_write_b128 v14, v[108:111]')
    a('s_lshr_b32 s11, s3, 1')
    a('s_and_b32 s12, s3, 1')
    a('v_lshl_add_u32 v15, v3, 3, v4')
    a('s_lshl_b32 s13, s11, 5')
    a('v_add_u32 v15, s13, v15')
    a('v_mul_u32_u24 v15, 80, v15')
    a('s_lshl_b32 s13, s12, 5')
    a('v_lshl_add_u32 v15, v5, 3, v15')
    a('v_add_u32 v15, s13, v15')
    a('v_and_b32 v16, 15, v1')
    a('s_lshl_b32 s13, s5, 5')
    a('s_lshl_b32 s14, s12, 4')
    a('s_add_u32 s13, s13, s14')
    a('v_add_u32 v16, s13, v16')
    a('v_lshlrev_b32 v16, 12, v16')
    a('s_lshl_b32 s13, s4, 7')
    a('s_sub_u32 s13, 3968, s13')
    a('s_lshl_b32 s14, s11, 6')
    a('s_add_u32 s13, s13, s14')
    a('v_lshl_add_u32 v16, v3, 4, v16')
    a('v_add_u32 v16, s13, v16')
    a('s_waitcnt lgkmcnt(0)')
    a('s_barrier')
    a('ds_read_b64_tr_b16 v[20:21], v15')
    a('ds_read_b64_tr_b16 v[22:23], v15 offset:320')
    a('s_waitcnt lgkmcnt(0)')
    a('buffer_store_dwordx4 v[20:23], v16, s[52:55], 0 offen')
    stamp(a, 2)
    stamp_end(a, 0)
    a('s_endpgm')
    a.label('K1_W')
    a('s_cmp_ge_u32 s2, 546')
    a('s_cbranch_scc1 K1_W2')
    a('s_sub_u32 s4, s2, 448')
    a(f's_mul_hi_u32 s5, s4, {magic(14)}')
    a('s_mul_i32 s6, s5, 14')
    a('s_sub_u32 s6, s4, s6')
    a('v_lshrrev_b32 v6, 4, v0')
    a('v_and_b32 v7, 15, v0')
    a('s_lshl_b32 s7, s5, 6')
    a('v_add_u32 v8, s7, v6')
    a('s_movk_i32 s7, 3584')
    a('v_mul_lo_u32 v8, v8, s7')
    a('s_lshl_b32 s7, s6, 8')
    a('v_lshl_add_u32 v8, v7, 4, v8')
    a('v_add_u32 v8, s7, v8')
    a('s_waitcnt lgkmcnt(0)')
    srd(a, 40, P_W1, 0, WBYTES)
    srd(a, 44, P_WS, WS_W1F, WBYTES)
    for i in range(4):
        a(f's_mov_b32 s8, {16*3584*i}')
        a(f'buffer_load_dwordx4 v[{16+4*i}:{19+4*i}], v8, s[40:43], s8 offen')
    a('v_mul_u32_u24 v9, 320, v6')
    a('v_lshl_add_u32 v9, v7, 4, v9')
    a('v_lshrrev_b32 v10, 1, v3')
    a('v_lshl_add_u32 v10, v10, 3, v4')
    a('v_mul_u32_u24 v10, 320, v10')
    a('v_and_b32 v11, 1, v3')
    a('v_lshl_add_u32 v10, v11, 5, v10')
    a('v_lshl_add_u32 v10, v5, 3, v10')
    a('s_lshl_b32 s7, s3, 6')
    a('v_add_u32 v10, s7, v10')
    a('s_lshl_b32 s7, s6, 2')
    a('s_add_u32 s7, s7, s3')
    a('s_mul_i32 s7, s7, 28')
    a('s_lshl_b32 s8, s5, 2')
    a('s_add_u32 s7, s7, s8')
    a('s_lshl_b32 s7, s7, 10')
    a('v_lshl_add_u32 v11, v1, 4, s7')
    for i in range(4):
        a(f's_waitcnt vmcnt({3-i})')
        a(f'ds_write_b128 v9, v[{16+4*i}:{19+4*i}] offset:{16*320*i}')
    a('s_waitcnt lgkmcnt(0)')
    a('s_barrier')
    for kl in range(4):
        for hh in range(2):
            a(f'ds_read_b64_tr_b16 v[{32+4*kl+2*hh}:{33+4*kl+2*hh}], v10 offset:{(16*kl+4*hh)*320}')
    for kl in range(4):
        a(f's_waitcnt lgkmcnt({6-2*kl})')
        a(f'buffer_store_dwordx4 v[{32+4*kl}:{35+4*kl}], v11, s[44:47], 0 offen offset:{1024*kl}')
    a('s_endpgm')
    a.label('K1_W2')
    a('s_sub_u32 s4, s2, 546')
    a(f's_mul_hi_u32 s5, s4, {magic(7)}')
    a('s_mul_i32 s6, s5, 7')
    a('s_sub_u32 s6, s4, s6')
    a('v_lshrrev_b32 v6, 3, v0')
    a('v_and_b32 v7, 7, v0')
    a('s_lshl_b32 s7, s5, 7')
    a('v_add_u32 v8, s7, v6')
    a('s_movk_i32 s7, 896')
    a('v_mul_lo_u32 v8, v8, s7')
    a('s_lshl_b32 s7, s6, 7')
    a('v_lshl_add_u32 v8, v7, 4, v8')
    a('v_add_u32 v8, s7, v8')
    a('s_waitcnt lgkmcnt(0)')
    srd(a, 40, P_W2, 0, WBYTES)
    srd(a, 44, P_WS, WS_W2F, WBYTES)
    for i in range(4):
        a(f's_mov_b32 s8, {32*896*i}')
        a(f'buffer_load_dwordx4 v[{16+4*i}:{19+4*i}], v8, s[40:43], s8 offen')
    a('v_mul_u32_u24 v9, 192, v6')
    a('v_lshl_add_u32 v9, v7, 4, v9')
    a('v_lshrrev_b32 v10, 1, v3')
    a('v_lshl_add_u32 v10, v10, 2, v4')
    a('s_lshl_b32 s7, s3, 5')
    a('v_add_u32 v10, s7, v10')
    a('v_mul_u32_u24 v10, 192, v10')
    a('v_and_b32 v11, 1, v3')
    a('v_lshl_add_u32 v10, v11, 5, v10')
    a('v_lshl_add_u32 v10, v5, 3, v10')
    a('s_mul_i32 s7, s6, 224')
    a('s_lshl_b32 s8, s5, 3')
    a('s_add_u32 s7, s7, s8')
    a('s_lshl_b32 s8, s3, 1')
    a('s_add_u32 s7, s7, s8')
    a('s_lshl_b32 s7, s7, 10')
    a('v_lshl_add_u32 v11, v1, 4, s7')
    a(f's_mov_b32 s9, {112*1024}')
    for i in range(4):
        a(f's_waitcnt vmcnt({3-i})')
        a(f'ds_write_b128 v9, v[{16+4*i}:{19+4*i}] offset:{32*192*i}')
    a('s_waitcnt lgkmcnt(0)')
    a('s_barrier')
    n = 0
    for dtl in range(2):
        for k1 in range(2):
            for hh in range(2):
                a(f'ds_read_b64_tr_b16 v[{32+4*n+2*hh}:{33+4*n+2*hh}], v10 offset:{(16*k1+8*hh)*192+64*dtl}')
            n += 1
    n = 0
    for dtl in range(2):
        for k1 in range(2):
            a(f's_waitcnt lgkmcnt({6-2*n})')
            a(f'buffer_store_dwordx4 v[{32+4*n}:{35+4*n}], v11, s[44:47], {"s9" if dtl else "0"} offen offset:{1024*k1}')
            n += 1
    a.label('K1_END')
    a('s_endpgm')


FC = [1, 4, 5, 8, 8, 11, 12, 1]
K2_CB = 39936
K2_G = 34816
K2_SCR = 2 * K2_CB
K2_LDS = K2_SCR + 16384


def k2_conv(a):
    a(kernel_header('conv_kernel'))
    stamp_begin(a)
    load_args(a)
    a('s_cmp_ge_u32 s2, 224')
    a('s_cbranch_scc1 K2_END')
    a('v_and_b32 v1, 63, v0')
    a('v_lshrrev_b32 v2, 6, v0')
    a('v_readfirstlane_b32 s3, v2')
    a('s_lshr_b32 s4, s3, 1')
    a('s_and_b32 s5, s3, 1')
    a('s_lshl_b32 s6, s2, 1')
    a('s_add_u32 s6, s6, s4')
    a('s_lshl_b32 s7, s6, 12')
    a(f's_mul_i32 s8, s4, {K2_CB}')
    a('s_lshl_b32 s9, s5, 11')
    a('v_lshl_add_u32 v2, v1, 4, s9')
    a('v_add_u32 v3, -16, v2')
    a('s_waitcnt lgkmcnt(0)')
    srd(a, 40, P_SSMK, 's7', 4096)
    a(f's_add_u32 s10, s7, {WS_KVR}')
    srd(a, 44, P_WS, 's10', 4096)
    srd(a, 48, P_WS, WS_YB, XBYTES)
    a('s_lshl_b32 s10, s2, 2')
    a('s_load_dword s11, s[26:27], s10')
    a('buffer_load_dwordx4 v[16:19], v3, s[40:43], 0 offen')
    a('buffer_load_dwordx4 v[20:23], v2, s[40:43], 0 offen')
    a('buffer_load_dwordx4 v[24:27], v2, s[40:43], 0 offen offset:1008')
    a('buffer_load_dwordx4 v[28:31], v2, s[40:43], 0 offen offset:1024')
    a('buffer_load_dwordx4 v[32:35], v2, s[44:47], 0 offen')
    a('buffer_load_dwordx4 v[36:39], v2, s[44:47], 0 offen offset:1024')
    a('v_add_u32 v4, s8, v2')
    a('v_mov_b32 v40, 0')
    a('v_mov_b32 v41, 0')
    a('v_mov_b32 v42, 0')
    a('v_mov_b32 v43, 0')
    a('v_and_b32 v5, 7, v1')
    a('v_lshlrev_b32 v6, 2, v5')
    a('s_mov_b32 s12, 0x1cb88541')
    a('v_lshrrev_b32 v6, v6, s12')
    a('v_and_b32 v6, 15, v6')
    a('v_mul_u32_u24 v7, 272, v5')
    a('v_add_u32 v6, v6, v7')
    a('v_lshl_add_u32 v8, v6, 4, s8')
    a('s_cmp_eq_u32 s5, 0')
    a('s_cbranch_scc0 K2_Z1')
    a('s_mov_b64 exec, 0xff')
    a('ds_write_b128 v8, v[40:43]')
    a('s_mov_b64 exec, -1')
    a('s_branch K2_Z2')
    a.label('K2_Z1')
    a('v_lshl_add_u32 v9, v1, 4, s8')
    a(f'ds_write_b128 v9, v[40:43] offset:{K2_G+4096}')
    a.label('K2_Z2')
    a('v_bfe_u32 v9, v1, 3, 1')
    a('v_lshrrev_b32 v10, 4, v1')
    a('v_add_u32 v9, v9, v10')
    a('v_lshl_add_u32 v8, v9, 4, v8')
    a('s_lshl_b32 s12, s5, 8')
    a('v_add_u32 v8, s12, v8')
    a('v_and_b32 v11, 15, v1')
    a('v_lshlrev_b32 v12, 5, v11')
    a('v_lshlrev_b32 v13, 4, v10')
    a('v_sub_u32 v12, v13, v12')
    a('s_add_u32 s13, s8, s12')
    a(f's_add_u32 s13, s13, {K2_G+480}')
    a('v_add_u32 v12, s13, v12')
    for p in range(2):
        d = 16 + 8 * p
        a(f's_waitcnt vmcnt({4-2*p})')
        stamp(a, 1 + p)
        for k in range(6): a(f'v_mov_b32 v{44+k}, v{d+1+k}')
        for k in range(6): a(f'v_alignbyte_b32 v{50+k}, v{d+k+1}, v{d+k}, 2')
        for k in range(6): a(f'v_alignbyte_b32 v{56+k}, v{d+k+2}, v{d+k+1}, 2')
        src = {1: 50, 2: 44, 3: 56, 4: d + 2, 5: 52, 6: 46, 7: 58, 8: d + 4}
        for r in range(1, 9):
            off = ((r - 1) * 272 + FC[r - 1] + 1) * 16 + 1024 * p
            a(f'ds_write_b128 v4, v[{src[r]}:{src[r]+3}] offset:{off}')
        a('s_waitcnt lgkmcnt(0)')
    a('s_waitcnt vmcnt(1)')
    a(f'ds_write_b128 v4, v[32:35] offset:{K2_G}')
    a('s_waitcnt vmcnt(0)')
    a(f'ds_write_b128 v4, v[36:39] offset:{K2_G+1024}')
    a('s_waitcnt lgkmcnt(0)')
    a('s_barrier')
    stamp(a, 3)
    ACC = 16
    def Fr(b, s): return 48 + 64 * b + 4 * s
    def Gr(b, t): return 80 + 64 * b + 4 * t
    def reads(qq):
        b = qq & 1
        L = []
        for t in range(8):
            L.append(f'ds_read_b128 v[{Fr(b,t)}:{Fr(b,t)+3}], v8 offset:{512*t+64*qq}')
            L.append(f'ds_read_b128 v[{Gr(b,t)}:{Gr(b,t)+3}], v12 offset:{512*(7-t)+64*qq}')
        return L
    for l in reads(0): a(l)
    started = set()
    for qq in range(4):
        b = qq & 1
        nxt = reads(qq + 1) if qq < 3 else []
        cnt = 0
        for m in range(8):
            pairs = [(s, t) for s in range(m + 1) for t in range(m + 1) if max(s, t) == m and s + t <= 7]
            if qq == 0:
                a(f's_waitcnt lgkmcnt({min(15, 14-2*m + cnt)})')
            elif m == 0:
                a('s_waitcnt lgkmcnt(0)')
            for (s, t) in pairs:
                o = ACC + 4 * (s + t)
                c = f'v[{o}:{o+3}]' if (s + t) in started else '0'
                started.add(s + t)
                a(f'v_mfma_f32_16x16x32_bf16 v[{o}:{o+3}], v[{Fr(b,s)}:{Fr(b,s)+3}], v[{Gr(b,t)}:{Gr(b,t)+3}], {c}')
                if nxt and (qq > 0 or m >= 7):
                    for _ in range(2 if qq == 0 else 1):
                        if nxt: a(nxt.pop(0))
        for l in nxt: a(l)
    stamp(a, 4)
    a('s_lshl_b32 s12, s3, 12')
    a(f's_add_u32 s12, s12, {K2_SCR}')
    a('v_lshl_add_u32 v2, v1, 4, s12')
    a('s_xor_b32 s13, s3, 1')
    a('s_lshl_b32 s13, s13, 12')
    a(f's_add_u32 s13, s13, {K2_SCR}')
    a('v_lshl_add_u32 v3, v1, 4, s13')
    a('s_cmp_eq_u32 s5, 0')
    a('s_cbranch_scc0 K2_R1')
    for j in range(4):
        a(f'ds_write_b128 v2, v[{ACC+16+4*j}:{ACC+19+4*j}] offset:{1024*j}')
    a('s_branch K2_R2')
    a.label('K2_R1')
    for j in range(4):
        a(f'ds_write_b128 v2, v[{ACC+4*j}:{ACC+3+4*j}] offset:{1024*j}')
    for j in range(16):
        a(f'v_mov_b32 v{ACC+j}, v{ACC+16+j}')
    a.label('K2_R2')
    a('v_lshlrev_b32 v4, 5, v11')
    a('v_lshl_add_u32 v4, v10, 3, v4')
    a('s_lshl_b32 s12, s5, 11')
    a(f's_sub_u32 s12, {K2_G + 4088 - 3*512}, s12')
    a('s_add_u32 s12, s12, s8')
    a('v_sub_u32 v4, s12, v4')
    for j in range(4):
        a(f'ds_read_b64 v[{64+2*j}:{65+2*j}], v4 offset:{(3-j)*512}')
    a('s_waitcnt lgkmcnt(0)')
    a('s_lshl_b32 s12, s11, 16')
    a('s_and_b32 s13, s11, 0xffff0000')
    a('s_cmp_eq_u32 s4, 0')
    a('s_cselect_b32 s11, s12, s13')
    a('s_barrier')
    stamp(a, 5)
    for j in range(4):
        a(f'ds_read_b128 v[{48+4*j}:{51+4*j}], v3 offset:{1024*j}')
    a('v_lshrrev_b32 v5, 2, v11')
    a('s_lshl_b32 s12, s5, 4')
    a('v_add_u32 v5, s12, v5')
    a('v_mul_u32_u24 v5, 448, v5')
    a('v_add_u32 v5, s6, v5')
    a('v_lshlrev_b32 v5, 7, v5')
    a('v_and_b32 v6, 3, v11')
    a('v_lshl_add_u32 v5, v6, 5, v5')
    a('v_lshl_add_u32 v5, v10, 3, v5')
    a('s_mov_b32 s14, 0xffff0000')
    a('s_mov_b32 s15, 0x3f803f80')
    for j in range(4):
        a(f's_waitcnt lgkmcnt({3-j})')
        for r in range(4): a(f'v_add_f32 v{ACC+4*j+r}, v{ACC+4*j+r}, v{48+4*j+r}')
        k0, k1 = 64 + 2 * j, 65 + 2 * j
        a(f'v_and_b32 v80, s14, v{k1}')
        a(f'v_lshlrev_b32 v81, 16, v{k1}')
        a(f'v_and_b32 v82, s14, v{k0}')
        a(f'v_lshlrev_b32 v83, 16, v{k0}')
        for r in range(4): a(f'v_mul_f32 v{80+r}, s11, v{80+r}')
        for r in range(4): a(f'v_cvt_pk_bf16_f32 v{80+r}, v{80+r}, v{ACC+4*j+r}')
        for r in range(4): a(f'v_dot2_f32_bf16 v{80+r}, v{80+r}, s15, 0')
        a(f'v_cvt_pk_bf16_f32 v{84+2*j}, v80, v81')
        a(f'v_cvt_pk_bf16_f32 v{85+2*j}, v82, v83')
        a(f's_mov_b32 s12, {j*4*448*128}')
        a(f'buffer_store_dwordx2 v[{84+2*j}:{85+2*j}], v5, s[48:51], s12 offen')
    stamp_end(a, 1)
    a.label('K2_END')
    a('s_endpgm')


K3_YP = 7168 + 16
K3_XN = 8 * K3_YP
K3_LDS = K3_XN + 57344


def wg_map(a):
    a('s_and_b32 s6, s2, 7')
    a('s_lshr_b32 s7, s2, 3')
    a(f's_mul_hi_u32 s4, s7, {magic(7)}')
    a('s_mul_i32 s5, s4, 7')
    a('s_sub_u32 s5, s7, s5')
    a('s_lshl_b32 s6, s6, 2')
    a('s_add_u32 s4, s4, s6')


def reduce8(a, s, t):
    a(f'v_add_f32 v{s}, v{s}, v{s} row_ror:8')
    a(f'v_mov_b32 v{t}, v{s}')
    a(f'v_permlane16_swap_b32 v{s}, v{t}')
    a(f'v_add_f32 v{s}, v{s}, v{t}')
    a(f'v_mov_b32 v{t}, v{s}')
    a(f'v_permlane32_swap_b32 v{s}, v{t}')
    a(f'v_add_f32 v{s}, v{s}, v{t}')


def rnd(a, d, s):
    a(f'v_cvt_pk_bf16_f32 v{d}, v{s}, v{s}')
    a(f'v_lshlrev_b32 v{d}, 16, v{d}')


def ln_stats(a, X, DP, T):
    acc, tmp, mb, dm, s0, s1 = T, T + 1, T + 2, T + 3, T + 4, T + 5
    a(f'v_dot2_f32_bf16 v{acc}, v{X}, s62, 0')
    a(f'v_dot2_f32_bf16 v{s0}, v{X+1}, s62, 0')
    for p in range(2, 28, 2):
        a(f'v_dot2_f32_bf16 v{acc}, v{X+p}, s62, v{acc}')
        a(f'v_dot2_f32_bf16 v{s0}, v{X+p+1}, s62, v{s0}')
    a(f'v_add_f32 v{acc}, v{acc}, v{s0}')
    reduce8(a, acc, tmp)
    a(f'v_mul_f32 v{acc}, s63, v{acc}')
    rnd(a, mb, acc)
    a(f'v_sub_f32 v{dm}, v{acc}, v{mb}')
    a(f'v_sub_f32 v{mb}, 0, v{mb}')
    a(f'v_mov_b32 v{s0}, 0')
    a(f'v_mov_b32 v{s1}, 0')
    for p0 in range(0, 28, 4):
        for p in range(4):
            a(f'v_dot2_f32_bf16 v{T+8+2*p}, v{X+p0+p}, s60, v{mb}')
            a(f'v_dot2_f32_bf16 v{T+9+2*p}, v{X+p0+p}, s61, v{mb}')
        for p in range(4):
            a(f'v_fmac_f32 v{s0}, v{T+8+2*p}, v{T+8+2*p}')
            a(f'v_fmac_f32 v{s1}, v{T+9+2*p}, v{T+9+2*p}')
        for p in range(4):
            a(f'v_cvt_pk_bf16_f32 v{DP+p0+p}, v{T+8+2*p}, v{T+9+2*p}')
    a(f'v_add_f32 v{acc}, v{s0}, v{s1}')
    reduce8(a, acc, tmp)
    a(f'v_mul_f32 v{dm}, v{dm}, v{dm}')
    a(f'v_fma_f32 v{acc}, s63, v{acc}, -v{dm}')
    a(f'v_max_f32 v{acc}, 0, v{acc}')
    rnd(a, acc, acc)
    a(f'v_add_f32 v{acc}, 0x3727c5ac, v{acc}')
    rnd(a, acc, acc)
    a(f'v_sqrt_f32 v{acc}, v{acc}')
    rnd(a, acc, acc)
    a(f'v_rcp_f32 v{acc}, v{acc}')


def k3_gemm1(a, name, first):
    a(kernel_header(name))
    stamp_begin(a)
    load_args(a)
    a('s_cmp_ge_u32 s2, 224')
    a(f's_cbranch_scc1 {name}_END')
    wg_map(a)
    a('v_and_b32 v1, 63, v0')
    a('v_lshrrev_b32 v2, 6, v0')
    a('v_readfirstlane_b32 s3, v2')
    a('v_lshlrev_b32 v2, 4, v1')
    a('v_and_b32 v3, 7, v1')
    a('v_lshrrev_b32 v4, 3, v1')
    a('s_lshl_b32 s8, s4, 3')
    a('s_add_u32 s8, s8, s3')
    a('s_mul_i32 s9, s8, 7168')
    if first:
        a('v_mul_u32_u24 v5, 896, v3')
        a('v_lshl_add_u32 v5, v4, 4, v5')
    a('s_mul_i32 s10, s4, 57344')
    a('s_mul_i32 s11, s3, 7168')
    a('s_add_u32 s10, s10, s11')
    a('s_lshl_b32 s11, s5, 3')
    a('s_add_u32 s11, s11, s3')
    a(f's_mul_i32 s11, s11, {28*1024}')
    a('s_waitcnt lgkmcnt(0)')
    if first:
        srd(a, 40, P_Q, 0, XBYTES)
    else:
        srd(a, 40, P_WS, WS_X2, XBYTES)
    srd(a, 44, P_WS, WS_YB, XBYTES)
    srd(a, 48, P_WS, WS_W1F, WBYTES)
    srd(a, 52, P_WS, WS_XA, XBYTES)
    srd(a, 56, P_WS, WS_HB, HBYTES)
    X, YR, YT, ACC, W = 8, 36, 64, 96, 128
    a('s_add_u32 s12, s10, 4096')
    for i in range(7):
        so, off = ('s10', 1024 * i) if i < 4 else ('s12', 1024 * (i - 4))
        a(f'buffer_load_dwordx4 v[{YR+4*i}:{YR+4*i+3}], v2, s[44:47], {so} offen offset:{off}')
    a('s_add_u32 s12, s9, 4096')
    for i in range(7):
        if first:
            a(f'buffer_load_dwordx4 v[{X+4*i}:{X+4*i+3}], v5, s[40:43], s9 offen offset:{128*i}')
        else:
            so, off = ('s9', 1024 * i) if i < 4 else ('s12', 1024 * (i - 4))
            a(f'buffer_load_dwordx4 v[{X+4*i}:{X+4*i+3}], v2, s[40:43], {so} offen offset:{off}')
    for k in range(28):
        a(f'buffer_load_dwordx4 v[{W+4*k}:{W+4*k+3}], v2, s[48:51], s11 offen offset:{1024*(k%4)}')
        if k % 4 == 3: a('s_add_u32 s11, s11, 4096')
    stamp(a, 1)
    a('s_mov_b32 s60, 0x00003f80')
    a('s_mov_b32 s61, 0x3f800000')
    a('s_mov_b32 s62, 0x3f803f80')
    a(f's_mov_b32 s63, {hex(0x3b124925)}')
    a('s_mov_b32 s64, 0xffff0000')
    a(f'v_mul_u32_u24 v6, {K3_YP}, v3')
    a('v_lshl_add_u32 v6, v4, 4, v6')
    a('s_mul_i32 s12, s3, 896')
    a('v_add_u32 v6, s12, v6')
    a('v_xor_b32 v7, 64, v4') if False else None
    a('v_xor_b32 v7, 4, v4')
    a(f'v_mul_u32_u24 v92, {K3_YP}, v3')
    a('v_lshl_add_u32 v7, v7, 4, v92')
    a('v_add_u32 v7, s12, v7')
    a('v_sub_u32 v7, v7, v6')
    a('s_mul_i32 s13, s3, 7')
    for i in range(7):
        a(f's_add_u32 s14, s13, {i}')
        a('s_bfe_i32 s14, s14, 0x10001')
        a(f'v_and_b32 v{240+i}, s14, v7')
        a(f'v_add_u32 v{240+i}, v{240+i}, v6')
    for i in range(7):
        a(f's_waitcnt vmcnt({28+7+6-i})')
        a(f'ds_write_b128 v{240+i}, v[{YR+4*i}:{YR+4*i+3}] offset:{128*i}')
    a('v_lshrrev_b32 v6, 4, v1')
    a('v_bfe_u32 v7, v1, 1, 1')
    a('v_lshl_add_u32 v7, v6, 1, v7')
    a('v_lshlrev_b32 v7, 7, v7')
    a('v_bfe_u32 v92, v1, 2, 2')
    a('v_lshl_add_u32 v7, v92, 4, v7')
    a('v_and_b32 v92, 1, v1')
    a('v_lshl_add_u32 v7, v92, 3, v7')
    a(f's_mul_i32 s12, s3, {K3_YP}')
    a('v_add_u32 v7, s12, v7')
    a('v_and_b32 v6, 1, v6')
    a('v_lshlrev_b32 v6, 6, v6')
    a('v_add_u32 v92, v7, v6')
    a('v_xor_b32 v6, 64, v6')
    a('v_add_u32 v93, v7, v6')
    a('s_waitcnt lgkmcnt(0)')
    a('s_barrier')
    stamp(a, 2)
    for i in range(7):
        a(f'ds_read_b64_tr_b16 v[{YT+4*i}:{YT+4*i+1}], v92 offset:{1024*i}')
        a(f'ds_read_b64_tr_b16 v[{YT+4*i+2}:{YT+4*i+3}], v93 offset:{1024*i}')
    T = 96
    DP = YR
    a('s_waitcnt vmcnt(28)')
    ln_stats(a, X, DP, T)
    a('s_waitcnt lgkmcnt(0)')
    stamp(a, 3)
    for p0 in range(0, 28, 4):
        t = T + 8
        for p in range(4):
            a(f'v_dot2_f32_bf16 v{t+2*p}, v{X+p0+p}, s60, v{T+2}')
            a(f'v_dot2_f32_bf16 v{t+2*p+1}, v{X+p0+p}, s61, v{T+2}')
        for p in range(4):
            a(f'v_lshlrev_b32 v{t+8+2*p}, 16, v{YT+p0+p}')
            a(f'v_and_b32 v{t+8+2*p+1}, s64, v{YT+p0+p}')
        for e in range(8): a(f'v_mul_f32 v{t+e}, v{t+e}, v{T}')
        for e in range(8): a(f'v_mul_f32 v{t+e}, v{t+e}, v{t+8+e}')
        for p in range(4):
            a(f'v_dot2_f32_bf16 v{t+2*p}, v{X+p0+p}, s60, v{t+2*p}')
            a(f'v_dot2_f32_bf16 v{t+2*p+1}, v{X+p0+p}, s61, v{t+2*p+1}')
        for p in range(4): a(f'v_cvt_pk_bf16_f32 v{X+p0+p}, v{t+2*p}, v{t+2*p+1}')
    stamp(a, 4)
    a('s_lshl_b32 s12, s5, 10')
    a('s_add_u32 s12, s12, s9')
    for i in range(7):
        a(f's_cmp_lg_u32 s5, {i}')
        a(f's_cbranch_scc1 {name}_XA{i}')
        a(f'buffer_store_dwordx4 v[{X+4*i}:{X+4*i+3}], v2, s[52:55], s12 offen')
        a.label(f'{name}_XA{i}')
    ln_stats(a, X, DP, T)
    stamp(a, 5)
    a('v_lshrrev_b32 v6, 1, v4')
    a('v_lshlrev_b32 v6, 10, v6')
    a('v_and_b32 v7, 1, v4')
    a('v_lshl_add_u32 v6, v7, 9, v6')
    a('v_lshl_add_u32 v6, v3, 4, v6')
    a('s_lshr_b32 s12, s3, 2')
    a(f's_mul_i32 s12, s12, {28*1024}')
    a('s_and_b32 s13, s3, 3')
    a('s_lshl_b32 s13, s13, 7')
    a('s_add_u32 s12, s12, s13')
    a(f's_add_u32 s12, s12, {K3_XN}')
    a('v_add_u32 v6, s12, v6')
    for i in range(7):
        t = T + 8
        p0 = 4 * i
        for p in range(4):
            a(f'v_dot2_f32_bf16 v{t+2*p}, v{X+p0+p}, s60, v{T+2}')
            a(f'v_dot2_f32_bf16 v{t+2*p+1}, v{X+p0+p}, s61, v{T+2}')
        for e in range(8): a(f'v_mul_f32 v{t+e}, v{t+e}, v{T}')
        for p in range(4): a(f'v_cvt_pk_bf16_f32 v{YT+p0+p}, v{t+2*p}, v{t+2*p+1}')
        a(f'ds_write_b128 v6, v[{YT+p0}:{YT+p0+3}] offset:{4096*i}')
    a(f'v_add_u32 v7, {K3_XN}, v2')
    a('s_waitcnt lgkmcnt(0)')
    a('s_barrier')
    stamp(a, 6)
    def rd(k):
        sl = 8 + 8 * (k % 4)
        a(f'ds_read_b128 v[{sl}:{sl+3}], v7 offset:{1024*k}')
        a(f'ds_read_b128 v[{sl+4}:{sl+7}], v7 offset:{1024*(28+k)}')
    for k in range(3): rd(k)
    for k in range(28):
        if k + 3 < 28: rd(k + 3)
        nl = 2 * min(3, 27 - k)
        a(f's_waitcnt vmcnt({27-k}) lgkmcnt({nl})')
        sl = 8 + 8 * (k % 4)
        for st in range(2):
            o = ACC + 16 * st
            c = f'v[{o}:{o+15}]' if k else '0'
            a(f'v_mfma_f32_32x32x16_bf16 v[{o}:{o+15}], v[{W+4*k}:{W+4*k+3}], v[{sl+4*st}:{sl+4*st+3}], {c}')
    stamp(a, 7)
    a('s_mul_i32 s12, s4, 224')
    a('s_lshl_b32 s13, s5, 4')
    a('s_add_u32 s12, s12, s13')
    a('s_lshl_b32 s13, s3, 1')
    a('s_add_u32 s12, s12, s13')
    a('s_lshl_b32 s12, s12, 10')
    a(f's_add_u32 s13, s12, {112*1024}')
    for st in range(2):
        o = ACC + 16 * st
        for p in range(8):
            a(f'v_cvt_pk_bf16_f32 v{40+8*st+p}, v{o+2*p}, v{o+2*p+1}')
        for p in range(8):
            a(f'v_pk_max_i16 v{40+8*st+p}, v{40+8*st+p}, 0')
        for hf in range(2):
            r = 40 + 8 * st + 4 * hf
            a(f'buffer_store_dwordx4 v[{r}:{r+3}], v2, s[56:59], {"s13" if st else "s12"} offen offset:{1024*hf}')
    stamp_end(a, 2 if first else 4)
    a.label(f'{name}_END')
    a('s_endpgm')


K4_P = 272
K4_LDS = 4 * 64 * K4_P


def k4_gemm2(a, name, last):
    a(kernel_header(name))
    stamp_begin(a)
    load_args(a)
    a('s_cmp_ge_u32 s2, 224')
    a(f's_cbranch_scc1 {name}_END')
    wg_map(a)
    a('v_and_b32 v1, 63, v0')
    a('v_lshrrev_b32 v2, 6, v0')
    a('v_readfirstlane_b32 s3, v2')
    a('v_lshlrev_b32 v2, 4, v1')
    a('s_mul_i32 s8, s3, 28')
    a('s_mul_i32 s9, s5, 224')
    a('s_add_u32 s9, s9, s8')
    a('s_lshl_b32 s9, s9, 10')
    a(f's_add_u32 s10, s9, {112*1024}')
    a('s_mul_i32 s11, s4, 224')
    a('s_add_u32 s11, s11, s8')
    a('s_lshl_b32 s11, s11, 10')
    a(f's_add_u32 s12, s11, {112*1024}')
    a('s_lshl_b32 s13, s4, 3')
    a('s_lshl_b32 s14, s3, 1')
    a('s_add_u32 s13, s13, s14')
    a('s_mul_i32 s14, s13, 7168')
    a('s_lshl_b32 s15, s5, 10')
    a('s_add_u32 s60, s14, s15')
    a('s_add_u32 s61, s60, 7168')
    a('s_waitcnt lgkmcnt(0)')
    srd(a, 40, P_WS, WS_W2F, WBYTES)
    srd(a, 44, P_WS, WS_HB, HBYTES)
    srd(a, 48, P_WS, WS_XA, XBYTES)
    if last:
        srd(a, 52, P_OUT, 0, XBYTES)
    else:
        srd(a, 52, P_WS, WS_X2, XBYTES)
    ACC = 16
    NS = 14
    def ld(k):
        sl = 16 * (k % NS)
        off = 1024 * (k % 4)
        a(f'buffer_load_dwordx4 a[{sl}:{sl+3}], v2, s[40:43], s9 offen offset:{off}')
        a(f'buffer_load_dwordx4 a[{sl+8}:{sl+11}], v2, s[44:47], s11 offen offset:{off}')
        a(f'buffer_load_dwordx4 a[{sl+4}:{sl+7}], v2, s[40:43], s10 offen offset:{off}')
        a(f'buffer_load_dwordx4 a[{sl+12}:{sl+15}], v2, s[44:47], s12 offen offset:{off}')
        if k % 4 == 3:
            for s in (9, 10, 11, 12): a(f's_add_u32 s{s}, s{s}, 4096')
    for k in range(NS): ld(k)
    a('buffer_load_dwordx4 v[8:11], v2, s[48:51], s60 offen')
    a('buffer_load_dwordx4 v[12:15], v2, s[48:51], s61 offen')
    stamp(a, 1)
    a('v_and_b32 v3, 31, v1')
    a(f'v_mul_u32_u24 v3, {K4_P}, v3')
    a('v_lshrrev_b32 v4, 5, v1')
    a('v_lshl_add_u32 v3, v4, 4, v3')
    a(f's_mul_i32 s8, s3, {64*K4_P}')
    a('v_add_u32 v3, s8, v3')
    a('v_and_b32 v4, 7, v1')
    a('s_lshl_b32 s8, s3, 4')
    a('v_add_u32 v5, s8, v4')
    a(f'v_mul_u32_u24 v5, {K4_P}, v5')
    a('v_lshrrev_b32 v6, 3, v1')
    a('v_lshl_add_u32 v5, v6, 5, v5')
    if last:
        a('v_mul_u32_u24 v7, 896, v4')
        a('v_lshl_add_u32 v7, v6, 4, v7')
        a('s_lshl_b32 s15, s5, 7')
        a('s_add_u32 s60, s14, s15')
        a('s_add_u32 s61, s60, 7168')
    for k in range(28):
        issued_after = min(27, k + NS - 1) - k
        xa_after = 2 if k < NS else 0
        a(f's_waitcnt vmcnt({4*issued_after + xa_after})')
        if k in (0, 7, 14, 21): stamp(a, 2 + k // 7)
        sl = 16 * (k % NS)
        for dt in range(2):
            for st in range(2):
                o = ACC + 16 * (2 * dt + st)
                c = f'v[{o}:{o+15}]' if k else '0'
                a(f'v_mfma_f32_32x32x16_bf16 v[{o}:{o+15}], a[{sl+4*dt}:{sl+4*dt+3}], a[{sl+8+4*st}:{sl+8+4*st+3}], {c}')
        if k + NS < 28: ld(k + NS)
    stamp(a, 6)
    for dt in range(2):
        for st in range(2):
            o = ACC + 16 * (2 * dt + st)
            for rg in range(4):
                a(f'ds_write_b128 v3, v[{o+4*rg}:{o+4*rg+3}] offset:{st*32*K4_P + dt*128 + rg*32}')
    a('s_mov_b32 s64, 0xffff0000')
    a('s_mov_b32 s62, 0x00003f80')
    a('s_mov_b32 s63, 0x3f800000')
    a('s_waitcnt lgkmcnt(0)')
    a('s_barrier')
    stamp(a, 7)
    for u in range(2):
        for kq in range(4):
            for h in range(2):
                r = 16 + 32 * u + 8 * kq + 4 * h
                a(f'ds_read_b128 v[{r}:{r+3}], v5 offset:{kq*64*K4_P + u*8*K4_P + 16*h}')
    for u in range(2):
        a(f's_waitcnt lgkmcnt({8-8*u})')
        r = 16 + 32 * u
        for e in range(8): a(f'v_add_f32 v{r+e}, v{r+e}, v{r+8+e}')
        for e in range(8): a(f'v_add_f32 v{r+16+e}, v{r+16+e}, v{r+24+e}')
        for e in range(8): a(f'v_add_f32 v{r+e}, v{r+e}, v{r+16+e}')
        for p in range(4): a(f'v_cvt_pk_bf16_f32 v{r+8+p}, v{r+2*p}, v{r+2*p+1}')
        for p in range(4):
            a(f'v_lshlrev_b32 v{r+2*p}, 16, v{r+8+p}')
            a(f'v_and_b32 v{r+2*p+1}, s64, v{r+8+p}')
        for p in range(4):
            a(f'v_dot2_f32_bf16 v{r+2*p}, v{8+4*u+p}, s62, v{r+2*p}')
            a(f'v_dot2_f32_bf16 v{r+2*p+1}, v{8+4*u+p}, s63, v{r+2*p+1}')
        for p in range(4): a(f'v_cvt_pk_bf16_f32 v{r+8+p}, v{r+2*p}, v{r+2*p+1}')
        a(f'buffer_store_dwordx4 v[{r+8}:{r+11}], {"v7" if last else "v2"}, s[52:55], {"s61" if u else "s60"} offen')
    stamp_end(a, 5 if last else 3)
    a.label(f'{name}_END')
    a('s_endpgm')


def main(out):
    a = Asm()
    k1_prep(a)
    k2_conv(a)
    k3_gemm1(a, 'g1a_kernel', True)
    k4_gemm2(a, 'g2a_kernel', False)
    k3_gemm1(a, 'g1b_kernel', False)
    k4_gemm2(a, 'g2b_kernel', True)
    hdr = open(f'cdna_kernels/{NAME}.s.ref').read().split('; Override launch')[0]
    hdr += f"""; @launch kernel=prep_kernel grid=(644,1,1) block=(256,1,1) lds=24576
; @launch kernel=conv_kernel grid=(224,1,1) block=(256,1,1) lds={K2_LDS}
; @launch kernel=g1a_kernel grid=(224,1,1) block=(512,1,1) lds={K3_LDS}
; @launch kernel=g2a_kernel grid=(224,1,1) block=(256,1,1) lds={K4_LDS}
; @launch kernel=g1b_kernel grid=(224,1,1) block=(512,1,1) lds={K3_LDS}
; @launch kernel=g2b_kernel grid=(224,1,1) block=(256,1,1) lds={K4_LDS}
.amdgcn_target "amdgcn-amd-amdhsa--gfx950"
.text
"""
    body = a.text()
    tail = '.section .rodata,"a"\n'
    tail += kernel_desc('prep_kernel', 112)
    tail += kernel_desc('conv_kernel', 176)
    tail += kernel_desc('g1a_kernel', 256)
    tail += kernel_desc('g2a_kernel', 80 + 224, accum=80)
    tail += kernel_desc('g1b_kernel', 256)
    tail += kernel_desc('g2b_kernel', 80 + 224, accum=80)
    open(out, 'w').write(hdr + body + tail)


if __name__ == '__main__':
    PROF = '--prof' in sys.argv
    main(sys.argv[1] if len(sys.argv) > 1 else f'cdna_kernels/{NAME}.s')
```

```python
import sys
from asmlib import *

NAME = 'interleave_layers__ssm_conv_h3__dense_activation_relu__prompt'
S, D, DFF = 2048, 448, 1792
XBYTES = S * D * 2
WBYTES = D * DFF * 2
WS_KVR = 0x000000
WS_W1F = 0x200000
WS_W2F = 0x400000
WS_YB = 0x600000
WS_XA = 0x800000
WS_X2 = 0xA00000
WS_HB = 0x1000000
HBYTES = S * DFF * 2

P_Q, P_K, P_V, P_SHK, P_SSMK, P_SSMD, P_BX, P_W1, P_W2, P_OUT, P_DBG, P_WS = [16 + 2 * i for i in range(12)]


def load_args(a):
    a('s_load_dwordx16 s[16:31], s[0:1], 0')
    a('s_load_dwordx8 s[32:39], s[0:1], 64')


def srd(a, d, p, off, size):
    if off == 0:
        a(f's_mov_b32 s{d}, s{p}')
        a(f's_mov_b32 s{d+1}, s{p+1}')
    else:
        o = off if isinstance(off, str) else hex(off)
        a(f's_add_u32 s{d}, s{p}, {o}')
        a(f's_addc_u32 s{d+1}, s{p+1}, 0')
    a(f's_mov_b32 s{d+2}, {hex(size)}')
    a(f's_mov_b32 s{d+3}, 0x20000')


PROF = False
WS_PROF = 0x2000000
def stamp(a, k):
    if not PROF: return
    a('s_memtime s[92:93]')
    a('s_waitcnt lgkmcnt(0)')
    a(f's_mov_b32 s{70+k}, s92')

def stamp_begin(a):
    if not PROF: return
    a('s_memrealtime s[94:95]')
    a('s_memtime s[92:93]')
    a('s_waitcnt lgkmcnt(0)')
    a('s_mov_b32 s70, s92')
    for k in range(1, 14): a(f's_mov_b32 s{70+k}, 0')

def stamp_end(a, kid, n=13):
    if not PROF: return
    lab = a.newlabel('PE')
    a('s_waitcnt vmcnt(0)')
    stamp(a, 13)
    a('s_memrealtime s[92:93]')
    a('s_cmp_lg_u32 s3, 0')
    a(f's_cbranch_scc1 {lab}')
    srd(a, 88, P_WS, WS_PROF + kid * 0x10000, 0x10000)
    a('s_lshl_b32 s86, s2, 6')
    a('v_mov_b32 v0, s86')
    a('s_waitcnt lgkmcnt(0)')
    a('s_mov_b64 exec, 1')
    a('v_mov_b32 v1, s94')
    a('buffer_store_dword v1, v0, s[88:91], 0 offen')
    a('v_mov_b32 v1, s92')
    a('buffer_store_dword v1, v0, s[88:91], 0 offen offset:4')
    for k in range(14):
        a(f'v_mov_b32 v1, s{70+k}')
        a(f'buffer_store_dword v1, v0, s[88:91], 0 offen offset:{8+4*k}')
    a.label(lab)

def magic(n):
    return hex(-(-(1 << 32) // n))


def k1_prep(a):
    a(kernel_header('prep_kernel'))
    stamp_begin(a)
    load_args(a)
    a('s_cmp_ge_u32 s2, 644')
    a('s_cbranch_scc1 K1_END')
    a('v_and_b32 v1, 63, v0')
    a('v_lshrrev_b32 v2, 6, v0')
    a('v_readfirstlane_b32 s3, v2')
    a('v_lshrrev_b32 v3, 4, v1')
    a('v_bfe_u32 v4, v1, 2, 2')
    a('v_and_b32 v5, 3, v1')
    a('s_cmp_ge_u32 s2, 448')
    a('s_cbranch_scc1 K1_W')
    a(f's_mul_hi_u32 s4, s2, {magic(14)}')
    a('s_mul_i32 s5, s4, 14')
    a('s_sub_u32 s5, s2, s5')
    a('v_and_b32 v6, 3, v0')
    a('v_lshrrev_b32 v7, 2, v0')
    a('s_lshl_b32 s6, s4, 6')
    a('v_add_u32 v8, s6, v7')
    a('s_movk_i32 s7, 896')
    a('v_mul_lo_u32 v8, v8, s7')
    a('s_lshl_b32 s6, s5, 6')
    a('v_lshl_add_u32 v9, v6, 4, s6')
    a('v_add_u32 v8, v8, v9')
    a('v_add_u32 v10, -896, v8')
    a('v_add_u32 v11, -1792, v8')
    a('v_add_u32 v12, -2688, v8')
    a('v_lshlrev_b32 v13, 2, v9')
    a('s_waitcnt lgkmcnt(0)')
    srd(a, 40, P_K, 0, XBYTES)
    srd(a, 44, P_V, 0, XBYTES)
    srd(a, 48, P_SHK, 0, D * 8)
    srd(a, 52, P_WS, WS_KVR, XBYTES)
    a('buffer_load_dwordx4 v[36:39], v13, s[48:51], 0 offen')
    a('buffer_load_dwordx4 v[40:43], v13, s[48:51], 0 offen offset:16')
    a('buffer_load_dwordx4 v[44:47], v13, s[48:51], 0 offen offset:32')
    a('buffer_load_dwordx4 v[48:51], v13, s[48:51], 0 offen offset:48')
    a('buffer_load_dwordx4 v[28:31], v12, s[40:43], 0 offen')
    a('buffer_load_dwordx4 v[24:27], v11, s[40:43], 0 offen')
    a('buffer_load_dwordx4 v[20:23], v10, s[40:43], 0 offen')
    a('buffer_load_dwordx4 v[16:19], v8, s[40:43], 0 offen')
    a('buffer_load_dwordx4 v[32:35], v8, s[44:47], 0 offen')
    a('s_mov_b32 s8, 0xffff')
    a('s_mov_b32 s9, 0xffff0000')
    a('s_mov_b32 s10, 0x3f803f80')
    a('v_sub_u32 v14, 63, v7')
    a('v_mul_u32_u24 v14, 80, v14')
    a('v_lshl_add_u32 v14, v6, 4, v14')
    a('s_waitcnt vmcnt(5)')
    for e in range(8):
        A, B = 36 + 2 * e, 37 + 2 * e
        if e % 2 == 0:
            a(f'v_and_b32 v{64+e}, s8, v{A}')
            a(f'v_lshrrev_b32 v{72+e}, 16, v{A}')
            a(f'v_and_b32 v{80+e}, s8, v{B}')
            a(f'v_lshrrev_b32 v{88+e}, 16, v{B}')
        else:
            a(f'v_lshlrev_b32 v{64+e}, 16, v{A}')
            a(f'v_and_b32 v{72+e}, s9, v{A}')
            a(f'v_lshlrev_b32 v{80+e}, 16, v{B}')
            a(f'v_and_b32 v{88+e}, s9, v{B}')
    a('s_waitcnt vmcnt(3)')
    for e in range(8): a(f'v_dot2_f32_bf16 v{96+e}, v{28+e//2}, v{88+e}, 0')
    for e in range(8): a(f'v_dot2_f32_bf16 v{104+e}, v{24+e//2}, v{80+e}, 0')
    for e in range(8): a(f'v_cvt_pk_bf16_f32 v{96+e}, v{96+e}, v{104+e}')
    for e in range(8): a(f'v_dot2_f32_bf16 v{96+e}, v{96+e}, s10, 0')
    a('s_waitcnt vmcnt(2)')
    for e in range(8): a(f'v_dot2_f32_bf16 v{104+e}, v{20+e//2}, v{72+e}, 0')
    for e in range(8): a(f'v_cvt_pk_bf16_f32 v{96+e}, v{96+e}, v{104+e}')
    for e in range(8): a(f'v_dot2_f32_bf16 v{96+e}, v{96+e}, s10, 0')
    a('s_waitcnt vmcnt(1)')
    for e in range(8): a(f'v_dot2_f32_bf16 v{104+e}, v{16+e//2}, v{64+e}, 0')
    for e in range(8): a(f'v_cvt_pk_bf16_f32 v{96+e}, v{96+e}, v{104+e}')
    for e in range(8): a(f'v_dot2_f32_bf16 v{96+e}, v{96+e}, s10, 0')
    for p in range(4): a(f'v_cvt_pk_bf16_f32 v{104+p}, v{96+2*p}, v{97+2*p}')
    a('s_waitcnt vmcnt(0)')
    stamp(a, 1)
    for p in range(4):
        a(f'v_and_b32 v{64+2*p}, s8, v{32+p}')
        a(f'v_and_b32 v{65+2*p}, s9, v{32+p}')
    for e in range(8): a(f'v_dot2_f32_bf16 v{96+e}, v{104+e//2}, v{64+e}, 0')
    for p in range(4): a(f'v_cvt_pk_bf16_f32 v{108+p}, v{96+2*p}, v{97+2*p}')
    a('ds_write_b128 v14, v[108:111]')
    a('s_lshr_b32 s11, s3, 1')
    a('s_and_b32 s12, s3, 1')
    a('v_lshl_add_u32 v15, v3, 3, v4')
    a('s_lshl_b32 s13, s11, 5')
    a('v_add_u32 v15, s13, v15')
    a('v_mul_u32_u24 v15, 80, v15')
    a('s_lshl_b32 s13, s12, 5')
    a('v_lshl_add_u32 v15, v5, 3, v15')
    a('v_add_u32 v15, s13, v15')
    a('v_and_b32 v16, 15, v1')
    a('s_lshl_b32 s13, s5, 5')
    a('s_lshl_b32 s14, s12, 4')
    a('s_add_u32 s13, s13, s14')
    a('v_add_u32 v16, s13, v16')
    a('v_lshlrev_b32 v16, 12, v16')
    a('s_lshl_b32 s13, s4, 7')
    a('s_sub_u32 s13, 3968, s13')
    a('s_lshl_b32 s14, s11, 6')
    a('s_add_u32 s13, s13, s14')
    a('v_lshl_add_u32 v16, v3, 4, v16')
    a('v_add_u32 v16, s13, v16')
    a('s_waitcnt lgkmcnt(0)')
    a('s_barrier')
    a('ds_read_b64_tr_b16 v[20:21], v15')
    a('ds_read_b64_tr_b16 v[22:23], v15 offset:320')
    a('s_waitcnt lgkmcnt(0)')
    a('buffer_store_dwordx4 v[20:23], v16, s[52:55], 0 offen')
    stamp(a, 2)
    stamp_end(a, 0)
    a('s_endpgm')
    a.label('K1_W')
    a('s_cmp_ge_u32 s2, 546')
    a('s_cbranch_scc1 K1_W2')
    a('s_sub_u32 s4, s2, 448')
    a(f's_mul_hi_u32 s5, s4, {magic(14)}')
    a('s_mul_i32 s6, s5, 14')
    a('s_sub_u32 s6, s4, s6')
    a('v_lshrrev_b32 v6, 4, v0')
    a('v_and_b32 v7, 15, v0')
    a('s_lshl_b32 s7, s5, 6')
    a('v_add_u32 v8, s7, v6')
    a('s_movk_i32 s7, 3584')
    a('v_mul_lo_u32 v8, v8, s7')
    a('s_lshl_b32 s7, s6, 8')
    a('v_lshl_add_u32 v8, v7, 4, v8')
    a('v_add_u32 v8, s7, v8')
    a('s_waitcnt lgkmcnt(0)')
    srd(a, 40, P_W1, 0, WBYTES)
    srd(a, 44, P_WS, WS_W1F, WBYTES)
    for i in range(4):
        a(f's_mov_b32 s8, {16*3584*i}')
        a(f'buffer_load_dwordx4 v[{16+4*i}:{19+4*i}], v8, s[40:43], s8 offen')
    a('v_mul_u32_u24 v9, 320, v6')
    a('v_lshl_add_u32 v9, v7, 4, v9')
    a('v_lshrrev_b32 v10, 1, v3')
    a('v_lshl_add_u32 v10, v10, 3, v4')
    a('v_mul_u32_u24 v10, 320, v10')
    a('v_and_b32 v11, 1, v3')
    a('v_lshl_add_u32 v10, v11, 5, v10')
    a('v_lshl_add_u32 v10, v5, 3, v10')
    a('s_lshl_b32 s7, s3, 6')
    a('v_add_u32 v10, s7, v10')
    a('s_lshl_b32 s7, s6, 2')
    a('s_add_u32 s7, s7, s3')
    a('s_mul_i32 s7, s7, 28')
    a('s_lshl_b32 s8, s5, 2')
    a('s_add_u32 s7, s7, s8')
    a('s_lshl_b32 s7, s7, 10')
    a('v_lshl_add_u32 v11, v1, 4, s7')
    for i in range(4):
        a(f's_waitcnt vmcnt({3-i})')
        a(f'ds_write_b128 v9, v[{16+4*i}:{19+4*i}] offset:{16*320*i}')
    a('s_waitcnt lgkmcnt(0)')
    a('s_barrier')
    for kl in range(4):
        for hh in range(2):
            a(f'ds_read_b64_tr_b16 v[{32+4*kl+2*hh}:{33+4*kl+2*hh}], v10 offset:{(16*kl+4*hh)*320}')
    for kl in range(4):
        a(f's_waitcnt lgkmcnt({6-2*kl})')
        a(f'buffer_store_dwordx4 v[{32+4*kl}:{35+4*kl}], v11, s[44:47], 0 offen offset:{1024*kl}')
    a('s_endpgm')
    a.label('K1_W2')
    a('s_sub_u32 s4, s2, 546')
    a(f's_mul_hi_u32 s5, s4, {magic(7)}')
    a('s_mul_i32 s6, s5, 7')
    a('s_sub_u32 s6, s4, s6')
    a('v_lshrrev_b32 v6, 3, v0')
    a('v_and_b32 v7, 7, v0')
    a('s_lshl_b32 s7, s5, 7')
    a('v_add_u32 v8, s7, v6')
    a('s_movk_i32 s7, 896')
    a('v_mul_lo_u32 v8, v8, s7')
    a('s_lshl_b32 s7, s6, 7')
    a('v_lshl_add_u32 v8, v7, 4, v8')
    a('v_add_u32 v8, s7, v8')
    a('s_waitcnt lgkmcnt(0)')
    srd(a, 40, P_W2, 0, WBYTES)
    srd(a, 44, P_WS, WS_W2F, WBYTES)
    for i in range(4):
        a(f's_mov_b32 s8, {32*896*i}')
        a(f'buffer_load_dwordx4 v[{16+4*i}:{19+4*i}], v8, s[40:43], s8 offen')
    a('v_mul_u32_u24 v9, 192, v6')
    a('v_lshl_add_u32 v9, v7, 4, v9')
    a('v_lshrrev_b32 v10, 1, v3')
    a('v_lshl_add_u32 v10, v10, 2, v4')
    a('s_lshl_b32 s7, s3, 5')
    a('v_add_u32 v10, s7, v10')
    a('v_mul_u32_u24 v10, 192, v10')
    a('v_and_b32 v11, 1, v3')
    a('v_lshl_add_u32 v10, v11, 5, v10')
    a('v_lshl_add_u32 v10, v5, 3, v10')
    a('s_mul_i32 s7, s6, 224')
    a('s_lshl_b32 s8, s5, 3')
    a('s_add_u32 s7, s7, s8')
    a('s_lshl_b32 s8, s3, 1')
    a('s_add_u32 s7, s7, s8')
    a('s_lshl_b32 s7, s7, 10')
    a('v_lshl_add_u32 v11, v1, 4, s7')
    a(f's_mov_b32 s9, {112*1024}')
    for i in range(4):
        a(f's_waitcnt vmcnt({3-i})')
        a(f'ds_write_b128 v9, v[{16+4*i}:{19+4*i}] offset:{32*192*i}')
    a('s_waitcnt lgkmcnt(0)')
    a('s_barrier')
    n = 0
    for dtl in range(2):
        for k1 in range(2):
            for hh in range(2):
                a(f'ds_read_b64_tr_b16 v[{32+4*n+2*hh}:{33+4*n+2*hh}], v10 offset:{(16*k1+8*hh)*192+64*dtl}')
            n += 1
    n = 0
    for dtl in range(2):
        for k1 in range(2):
            a(f's_waitcnt lgkmcnt({6-2*n})')
            a(f'buffer_store_dwordx4 v[{32+4*n}:{35+4*n}], v11, s[44:47], {"s9" if dtl else "0"} offen offset:{1024*k1}')
            n += 1
    a.label('K1_END')
    a('s_endpgm')


FC = [1, 4, 5, 8, 8, 11, 12, 1]
K2_CB = 39936
K2_G = 34816
K2_SCR = 2 * K2_CB
K2_LDS = K2_SCR + 16384


def k2_conv(a):
    a(kernel_header('conv_kernel'))
    stamp_begin(a)
    load_args(a)
    a('s_cmp_ge_u32 s2, 224')
    a('s_cbranch_scc1 K2_END')
    a('v_and_b32 v1, 63, v0')
    a('v_lshrrev_b32 v2, 6, v0')
    a('v_readfirstlane_b32 s3, v2')
    a('s_lshr_b32 s4, s3, 1')
    a('s_and_b32 s5, s3, 1')
    a('s_lshl_b32 s6, s2, 1')
    a('s_add_u32 s6, s6, s4')
    a('s_lshl_b32 s7, s6, 12')
    a(f's_mul_i32 s8, s4, {K2_CB}')
    a('s_lshl_b32 s9, s5, 11')
    a('v_lshl_add_u32 v2, v1, 4, s9')
    a('v_add_u32 v3, -16, v2')
    a('s_waitcnt lgkmcnt(0)')
    srd(a, 40, P_SSMK, 's7', 4096)
    a(f's_add_u32 s10, s7, {WS_KVR}')
    srd(a, 44, P_WS, 's10', 4096)
    srd(a, 48, P_WS, WS_YB, XBYTES)
    a('s_lshl_b32 s10, s2, 2')
    a('s_load_dword s11, s[26:27], s10')
    a('buffer_load_dwordx4 v[16:19], v3, s[40:43], 0 offen')
    a('buffer_load_dwordx4 v[20:23], v2, s[40:43], 0 offen')
    a('buffer_load_dwordx4 v[24:27], v2, s[40:43], 0 offen offset:1008')
    a('buffer_load_dwordx4 v[28:31], v2, s[40:43], 0 offen offset:1024')
    a('buffer_load_dwordx4 v[32:35], v2, s[44:47], 0 offen')
    a('buffer_load_dwordx4 v[36:39], v2, s[44:47], 0 offen offset:1024')
    a('v_add_u32 v4, s8, v2')
    a('v_mov_b32 v40, 0')
    a('v_mov_b32 v41, 0')
    a('v_mov_b32 v42, 0')
    a('v_mov_b32 v43, 0')
    a('v_and_b32 v5, 7, v1')
    a('v_lshlrev_b32 v6, 2, v5')
    a('s_mov_b32 s12, 0x1cb88541')
    a('v_lshrrev_b32 v6, v6, s12')
    a('v_and_b32 v6, 15, v6')
    a('v_mul_u32_u24 v7, 272, v5')
    a('v_add_u32 v6, v6, v7')
    a('v_lshl_add_u32 v8, v6, 4, s8')
    a('s_cmp_eq_u32 s5, 0')
    a('s_cbranch_scc0 K2_Z1')
    a('s_mov_b64 exec, 0xff')
    a('ds_write_b128 v8, v[40:43]')
    a('s_mov_b64 exec, -1')
    a('s_branch K2_Z2')
    a.label('K2_Z1')
    a('v_lshl_add_u32 v9, v1, 4, s8')
    a(f'ds_write_b128 v9, v[40:43] offset:{K2_G+4096}')
    a.label('K2_Z2')
    a('v_bfe_u32 v9, v1, 3, 1')
    a('v_lshrrev_b32 v10, 4, v1')
    a('v_add_u32 v9, v9, v10')
    a('v_lshl_add_u32 v8, v9, 4, v8')
    a('s_lshl_b32 s12, s5, 8')
    a('v_add_u32 v8, s12, v8')
    a('v_and_b32 v11, 15, v1')
    a('v_lshlrev_b32 v12, 5, v11')
    a('v_lshlrev_b32 v13, 4, v10')
    a('v_sub_u32 v12, v13, v12')
    a('s_add_u32 s13, s8, s12')
    a(f's_add_u32 s13, s13, {K2_G+480}')
    a('v_add_u32 v12, s13, v12')
    for p in range(2):
        d = 16 + 8 * p
        a(f's_waitcnt vmcnt({4-2*p})')
        stamp(a, 1 + p)
        for k in range(6): a(f'v_mov_b32 v{44+k}, v{d+1+k}')
        for k in range(6): a(f'v_alignbyte_b32 v{50+k}, v{d+k+1}, v{d+k}, 2')
        for k in range(6): a(f'v_alignbyte_b32 v{56+k}, v{d+k+2}, v{d+k+1}, 2')
        src = {1: 50, 2: 44, 3: 56, 4: d + 2, 5: 52, 6: 46, 7: 58, 8: d + 4}
        for r in range(1, 9):
            off = ((r - 1) * 272 + FC[r - 1] + 1) * 16 + 1024 * p
            a(f'ds_write_b128 v4, v[{src[r]}:{src[r]+3}] offset:{off}')
        a('s_waitcnt lgkmcnt(0)')
    a('s_waitcnt vmcnt(1)')
    a(f'ds_write_b128 v4, v[32:35] offset:{K2_G}')
    a('s_waitcnt vmcnt(0)')
    a(f'ds_write_b128 v4, v[36:39] offset:{K2_G+1024}')
    a('s_waitcnt lgkmcnt(0)')
    a('s_barrier')
    stamp(a, 3)
    ACC = 16
    def Fr(b, s): return 48 + 64 * b + 4 * s
    def Gr(b, t): return 80 + 64 * b + 4 * t
    def reads(qq):
        b = qq & 1
        L = []
        for t in range(8):
            L.append(f'ds_read_b128 v[{Fr(b,t)}:{Fr(b,t)+3}], v8 offset:{512*t+64*qq}')
            L.append(f'ds_read_b128 v[{Gr(b,t)}:{Gr(b,t)+3}], v12 offset:{512*(7-t)+64*qq}')
        return L
    for l in reads(0): a(l)
    started = set()
    for qq in range(4):
        b = qq & 1
        nxt = reads(qq + 1) if qq < 3 else []
        cnt = 0
        for m in range(8):
            pairs = [(s, t) for s in range(m + 1) for t in range(m + 1) if max(s, t) == m and s + t <= 7]
            if qq == 0:
                a(f's_waitcnt lgkmcnt({min(15, 14-2*m + cnt)})')
            elif m == 0:
                a('s_waitcnt lgkmcnt(0)')
            for (s, t) in pairs:
                o = ACC + 4 * (s + t)
                c = f'v[{o}:{o+3}]' if (s + t) in started else '0'
                started.add(s + t)
                a(f'v_mfma_f32_16x16x32_bf16 v[{o}:{o+3}], v[{Fr(b,s)}:{Fr(b,s)+3}], v[{Gr(b,t)}:{Gr(b,t)+3}], {c}')
                if nxt and (qq > 0 or m >= 7):
                    for _ in range(2 if qq == 0 else 1):
                        if nxt: a(nxt.pop(0))
        for l in nxt: a(l)
    stamp(a, 4)
    a('s_lshl_b32 s12, s3, 12')
    a(f's_add_u32 s12, s12, {K2_SCR}')
    a('v_lshl_add_u32 v2, v1, 4, s12')
    a('s_xor_b32 s13, s3, 1')
    a('s_lshl_b32 s13, s13, 12')
    a(f's_add_u32 s13, s13, {K2_SCR}')
    a('v_lshl_add_u32 v3, v1, 4, s13')
    a('s_cmp_eq_u32 s5, 0')
    a('s_cbranch_scc0 K2_R1')
    for j in range(4):
        a(f'ds_write_b128 v2, v[{ACC+16+4*j}:{ACC+19+4*j}] offset:{1024*j}')
    a('s_branch K2_R2')
    a.label('K2_R1')
    for j in range(4):
        a(f'ds_write_b128 v2, v[{ACC+4*j}:{ACC+3+4*j}] offset:{1024*j}')
    for j in range(16):
        a(f'v_mov_b32 v{ACC+j}, v{ACC+16+j}')
    a.label('K2_R2')
    a('v_lshlrev_b32 v4, 5, v11')
    a('v_lshl_add_u32 v4, v10, 3, v4')
    a('s_lshl_b32 s12, s5, 11')
    a(f's_sub_u32 s12, {K2_G + 4088 - 3*512}, s12')
    a('s_add_u32 s12, s12, s8')
    a('v_sub_u32 v4, s12, v4')
    for j in range(4):
        a(f'ds_read_b64 v[{64+2*j}:{65+2*j}], v4 offset:{(3-j)*512}')
    a('s_waitcnt lgkmcnt(0)')
    a('s_lshl_b32 s12, s11, 16')
    a('s_and_b32 s13, s11, 0xffff0000')
    a('s_cmp_eq_u32 s4, 0')
    a('s_cselect_b32 s11, s12, s13')
    a('s_barrier')
    stamp(a, 5)
    for j in range(4):
        a(f'ds_read_b128 v[{48+4*j}:{51+4*j}], v3 offset:{1024*j}')
    a('v_lshrrev_b32 v5, 2, v11')
    a('s_lshl_b32 s12, s5, 4')
    a('v_add_u32 v5, s12, v5')
    a('v_mul_u32_u24 v5, 448, v5')
    a('v_add_u32 v5, s6, v5')
    a('v_lshlrev_b32 v5, 7, v5')
    a('v_and_b32 v6, 3, v11')
    a('v_lshl_add_u32 v5, v6, 5, v5')
    a('v_lshl_add_u32 v5, v10, 3, v5')
    a('s_mov_b32 s14, 0xffff0000')
    a('s_mov_b32 s15, 0x3f803f80')
    for j in range(4):
        a(f's_waitcnt lgkmcnt({3-j})')
        for r in range(4): a(f'v_add_f32 v{ACC+4*j+r}, v{ACC+4*j+r}, v{48+4*j+r}')
        k0, k1 = 64 + 2 * j, 65 + 2 * j
        a(f'v_and_b32 v80, s14, v{k1}')
        a(f'v_lshlrev_b32 v81, 16, v{k1}')
        a(f'v_and_b32 v82, s14, v{k0}')
        a(f'v_lshlrev_b32 v83, 16, v{k0}')
        for r in range(4): a(f'v_mul_f32 v{80+r}, s11, v{80+r}')
        for r in range(4): a(f'v_cvt_pk_bf16_f32 v{80+r}, v{80+r}, v{ACC+4*j+r}')
        for r in range(4): a(f'v_dot2_f32_bf16 v{80+r}, v{80+r}, s15, 0')
        a(f'v_cvt_pk_bf16_f32 v{84+2*j}, v80, v81')
        a(f'v_cvt_pk_bf16_f32 v{85+2*j}, v82, v83')
        a(f's_mov_b32 s12, {j*4*448*128}')
        a(f'buffer_store_dwordx2 v[{84+2*j}:{85+2*j}], v5, s[48:51], s12 offen')
    stamp_end(a, 1)
    a.label('K2_END')
    a('s_endpgm')


K3_YP = 7168 + 16
K3_XN = 8 * K3_YP
K3_LDS = K3_XN + 57344


def wg_map(a):
    a('s_and_b32 s6, s2, 7')
    a('s_lshr_b32 s7, s2, 3')
    a(f's_mul_hi_u32 s4, s7, {magic(7)}')
    a('s_mul_i32 s5, s4, 7')
    a('s_sub_u32 s5, s7, s5')
    a('s_lshl_b32 s6, s6, 2')
    a('s_add_u32 s4, s4, s6')


def reduce8(a, s, t):
    a(f'v_add_f32 v{s}, v{s}, v{s} row_ror:8')
    a(f'v_mov_b32 v{t}, v{s}')
    a(f'v_permlane16_swap_b32 v{s}, v{t}')
    a(f'v_add_f32 v{s}, v{s}, v{t}')
    a(f'v_mov_b32 v{t}, v{s}')
    a(f'v_permlane32_swap_b32 v{s}, v{t}')
    a(f'v_add_f32 v{s}, v{s}, v{t}')


def rnd(a, d, s):
    a(f'v_cvt_pk_bf16_f32 v{d}, v{s}, v{s}')
    a(f'v_lshlrev_b32 v{d}, 16, v{d}')


def ln_stats(a, X, DP, T):
    acc, tmp, mb, dm, s0, s1 = T, T + 1, T + 2, T + 3, T + 4, T + 5
    a(f'v_dot2_f32_bf16 v{acc}, v{X}, s62, 0')
    a(f'v_dot2_f32_bf16 v{s0}, v{X+1}, s62, 0')
    for p in range(2, 28, 2):
        a(f'v_dot2_f32_bf16 v{acc}, v{X+p}, s62, v{acc}')
        a(f'v_dot2_f32_bf16 v{s0}, v{X+p+1}, s62, v{s0}')
    a(f'v_add_f32 v{acc}, v{acc}, v{s0}')
    reduce8(a, acc, tmp)
    a(f'v_mul_f32 v{acc}, s63, v{acc}')
    rnd(a, mb, acc)
    a(f'v_sub_f32 v{dm}, v{acc}, v{mb}')
    a(f'v_sub_f32 v{mb}, 0, v{mb}')
    a(f'v_mov_b32 v{s0}, 0')
    a(f'v_mov_b32 v{s1}, 0')
    for p0 in range(0, 28, 4):
        for p in range(4):
            a(f'v_dot2_f32_bf16 v{T+8+2*p}, v{X+p0+p}, s60, v{mb}')
            a(f'v_dot2_f32_bf16 v{T+9+2*p}, v{X+p0+p}, s61, v{mb}')
        for p in range(4):
            a(f'v_fmac_f32 v{s0}, v{T+8+2*p}, v{T+8+2*p}')
            a(f'v_fmac_f32 v{s1}, v{T+9+2*p}, v{T+9+2*p}')
        for p in range(4):
            a(f'v_cvt_pk_bf16_f32 v{DP+p0+p}, v{T+8+2*p}, v{T+9+2*p}')
    a(f'v_add_f32 v{acc}, v{s0}, v{s1}')
    reduce8(a, acc, tmp)
    a(f'v_mul_f32 v{dm}, v{dm}, v{dm}')
    a(f'v_fma_f32 v{acc}, s63, v{acc}, -v{dm}')
    a(f'v_max_f32 v{acc}, 0, v{acc}')
    rnd(a, acc, acc)
    a(f'v_add_f32 v{acc}, 0x3727c5ac, v{acc}')
    rnd(a, acc, acc)
    a(f'v_sqrt_f32 v{acc}, v{acc}')
    rnd(a, acc, acc)
    a(f'v_rcp_f32 v{acc}, v{acc}')


def k3_gemm1(a, name, first):
    a(kernel_header(name))
    stamp_begin(a)
    load_args(a)
    a('s_cmp_ge_u32 s2, 224')
    a(f's_cbranch_scc1 {name}_END')
    wg_map(a)
    a('v_and_b32 v1, 63, v0')
    a('v_lshrrev_b32 v2, 6, v0')
    a('v_readfirstlane_b32 s3, v2')
    a('v_lshlrev_b32 v2, 4, v1')
    a('v_and_b32 v3, 7, v1')
    a('v_lshrrev_b32 v4, 3, v1')
    a('s_lshl_b32 s8, s4, 3')
    a('s_add_u32 s8, s8, s3')
    a('s_mul_i32 s9, s8, 7168')
    if first:
        a('v_mul_u32_u24 v5, 896, v3')
        a('v_lshl_add_u32 v5, v4, 4, v5')
    a('s_mul_i32 s10, s4, 57344')
    a('s_mul_i32 s11, s3, 7168')
    a('s_add_u32 s10, s10, s11')
    a('s_lshl_b32 s11, s5, 3')
    a('s_add_u32 s11, s11, s3')
    a(f's_mul_i32 s11, s11, {28*1024}')
    a('s_waitcnt lgkmcnt(0)')
    if first:
        srd(a, 40, P_Q, 0, XBYTES)
    else:
        srd(a, 40, P_WS, WS_X2, XBYTES)
    srd(a, 44, P_WS, WS_YB, XBYTES)
    srd(a, 48, P_WS, WS_W1F, WBYTES)
    srd(a, 52, P_WS, WS_XA, XBYTES)
    srd(a, 56, P_WS, WS_HB, HBYTES)
    X, YR, YT, ACC, W = 8, 36, 64, 96, 128
    a('s_add_u32 s12, s10, 4096')
    for i in range(7):
        so, off = ('s10', 1024 * i) if i < 4 else ('s12', 1024 * (i - 4))
        a(f'buffer_load_dwordx4 v[{YR+4*i}:{YR+4*i+3}], v2, s[44:47], {so} offen offset:{off}')
    a('s_add_u32 s12, s9, 4096')
    for i in range(7):
        if first:
            a(f'buffer_load_dwordx4 v[{X+4*i}:{X+4*i+3}], v5, s[40:43], s9 offen offset:{128*i}')
        else:
            so, off = ('s9', 1024 * i) if i < 4 else ('s12', 1024 * (i - 4))
            a(f'buffer_load_dwordx4 v[{X+4*i}:{X+4*i+3}], v2, s[40:43], {so} offen offset:{off}')
    for k in range(28):
        a(f'buffer_load_dwordx4 v[{W+4*k}:{W+4*k+3}], v2, s[48:51], s11 offen offset:{1024*(k%4)}')
        if k % 4 == 3: a('s_add_u32 s11, s11, 4096')
    stamp(a, 1)
    a('s_mov_b32 s60, 0x00003f80')
    a('s_mov_b32 s61, 0x3f800000')
    a('s_mov_b32 s62, 0x3f803f80')
    a(f's_mov_b32 s63, {hex(0x3b124925)}')
    a('s_mov_b32 s64, 0xffff0000')
    a(f'v_mul_u32_u24 v6, {K3_YP}, v3')
    a('v_lshl_add_u32 v6, v4, 4, v6')
    a('s_mul_i32 s12, s3, 896')
    a('v_add_u32 v6, s12, v6')
    a('v_xor_b32 v7, 64, v4') if False else None
    a('v_xor_b32 v7, 4, v4')
    a(f'v_mul_u32_u24 v92, {K3_YP}, v3')
    a('v_lshl_add_u32 v7, v7, 4, v92')
    a('v_add_u32 v7, s12, v7')
    a('v_sub_u32 v7, v7, v6')
    a('s_mul_i32 s13, s3, 7')
    for i in range(7):
        a(f's_add_u32 s14, s13, {i}')
        a('s_bfe_i32 s14, s14, 0x10001')
        a(f'v_and_b32 v{240+i}, s14, v7')
        a(f'v_add_u32 v{240+i}, v{240+i}, v6')
    for i in range(7):
        a(f's_waitcnt vmcnt({28+7+6-i})')
        a(f'ds_write_b128 v{240+i}, v[{YR+4*i}:{YR+4*i+3}] offset:{128*i}')
    a('v_lshrrev_b32 v6, 4, v1')
    a('v_bfe_u32 v7, v1, 1, 1')
    a('v_lshl_add_u32 v7, v6, 1, v7')
    a('v_lshlrev_b32 v7, 7, v7')
    a('v_bfe_u32 v92, v1, 2, 2')
    a('v_lshl_add_u32 v7, v92, 4, v7')
    a('v_and_b32 v92, 1, v1')
    a('v_lshl_add_u32 v7, v92, 3, v7')
    a(f's_mul_i32 s12, s3, {K3_YP}')
    a('v_add_u32 v7, s12, v7')
    a('v_and_b32 v6, 1, v6')
    a('v_lshlrev_b32 v6, 6, v6')
    a('v_add_u32 v92, v7, v6')
    a('v_xor_b32 v6, 64, v6')
    a('v_add_u32 v93, v7, v6')
    a('s_waitcnt lgkmcnt(0)')
    a('s_barrier')
    stamp(a, 2)
    for i in range(7):
        a(f'ds_read_b64_tr_b16 v[{YT+4*i}:{YT+4*i+1}], v92 offset:{1024*i}')
        a(f'ds_read_b64_tr_b16 v[{YT+4*i+2}:{YT+4*i+3}], v93 offset:{1024*i}')
    T = 96
    DP = YR
    a('s_waitcnt vmcnt(28)')
    ln_stats(a, X, DP, T)
    a('s_waitcnt lgkmcnt(0)')
    stamp(a, 3)
    for p0 in range(0, 28, 4):
        t = T + 8
        for p in range(4):
            a(f'v_lshlrev_b32 v{t+2*p}, 16, v{DP+p0+p}')
            a(f'v_and_b32 v{t+2*p+1}, s64, v{DP+p0+p}')
        for e in range(8): a(f'v_mul_f32 v{t+e}, v{t+e}, v{T}')
        for p in range(4):
            a(f'v_cvt_pk_bf16_f32 v{t+2*p}, v{t+2*p}, 0')
            a(f'v_cvt_pk_bf16_f32 v{t+2*p+1}, 0, v{t+2*p+1}')
        for e in range(8): a(f'v_dot2_f32_bf16 v{t+e}, v{t+e}, v{YT+p0+e//2}, 0')
        for p in range(4): a(f'v_cvt_pk_bf16_f32 v{t+8+p}, v{t+2*p}, v{t+2*p+1}')
        for p in range(4):
            a(f'v_lshlrev_b32 v{t+2*p}, 16, v{t+8+p}')
            a(f'v_and_b32 v{t+2*p+1}, s64, v{t+8+p}')
        for p in range(4):
            a(f'v_dot2_f32_bf16 v{t+2*p}, v{X+p0+p}, s60, v{t+2*p}')
            a(f'v_dot2_f32_bf16 v{t+2*p+1}, v{X+p0+p}, s61, v{t+2*p+1}')
        for p in range(4): a(f'v_cvt_pk_bf16_f32 v{X+p0+p}, v{t+2*p}, v{t+2*p+1}')
    stamp(a, 4)
    a('s_lshl_b32 s12, s5, 10')
    a('s_add_u32 s12, s12, s9')
    for i in range(7):
        a(f's_cmp_lg_u32 s5, {i}')
        a(f's_cbranch_scc1 {name}_XA{i}')
        a(f'buffer_store_dwordx4 v[{X+4*i}:{X+4*i+3}], v2, s[52:55], s12 offen')
        a.label(f'{name}_XA{i}')
    ln_stats(a, X, DP, T)
    stamp(a, 5)
    a('v_lshrrev_b32 v6, 1, v4')
    a('v_lshlrev_b32 v6, 10, v6')
    a('v_and_b32 v7, 1, v4')
    a('v_lshl_add_u32 v6, v7, 9, v6')
    a('v_lshl_add_u32 v6, v3, 4, v6')
    a('s_lshr_b32 s12, s3, 2')
    a(f's_mul_i32 s12, s12, {28*1024}')
    a('s_and_b32 s13, s3, 3')
    a('s_lshl_b32 s13, s13, 7')
    a('s_add_u32 s12, s12, s13')
    a(f's_add_u32 s12, s12, {K3_XN}')
    a('v_add_u32 v6, s12, v6')
    for i in range(7):
        t = T + 8
        p0 = 4 * i
        for p in range(4):
            a(f'v_lshlrev_b32 v{t+2*p}, 16, v{DP+p0+p}')
            a(f'v_and_b32 v{t+2*p+1}, s64, v{DP+p0+p}')
        for e in range(8): a(f'v_mul_f32 v{t+e}, v{t+e}, v{T}')
        for p in range(4): a(f'v_cvt_pk_bf16_f32 v{YT+p0+p}, v{t+2*p}, v{t+2*p+1}')
        a(f'ds_write_b128 v6, v[{YT+p0}:{YT+p0+3}] offset:{4096*i}')
    a(f'v_add_u32 v7, {K3_XN}, v2')
    a('s_waitcnt lgkmcnt(0)')
    a('s_barrier')
    stamp(a, 6)
    def rd(k):
        sl = 8 + 8 * (k % 4)
        a(f'ds_read_b128 v[{sl}:{sl+3}], v7 offset:{1024*k}')
        a(f'ds_read_b128 v[{sl+4}:{sl+7}], v7 offset:{1024*(28+k)}')
    for k in range(3): rd(k)
    for k in range(28):
        if k + 3 < 28: rd(k + 3)
        nl = 2 * min(3, 27 - k)
        a(f's_waitcnt vmcnt({27-k}) lgkmcnt({nl})')
        sl = 8 + 8 * (k % 4)
        for st in range(2):
            o = ACC + 16 * st
            c = f'v[{o}:{o+15}]' if k else '0'
            a(f'v_mfma_f32_32x32x16_bf16 v[{o}:{o+15}], v[{W+4*k}:{W+4*k+3}], v[{sl+4*st}:{sl+4*st+3}], {c}')
    stamp(a, 7)
    a('s_mul_i32 s12, s4, 224')
    a('s_lshl_b32 s13, s5, 4')
    a('s_add_u32 s12, s12, s13')
    a('s_lshl_b32 s13, s3, 1')
    a('s_add_u32 s12, s12, s13')
    a('s_lshl_b32 s12, s12, 10')
    a(f's_add_u32 s13, s12, {112*1024}')
    for st in range(2):
        o = ACC + 16 * st
        for p in range(8):
            a(f'v_cvt_pk_bf16_f32 v{40+8*st+p}, v{o+2*p}, v{o+2*p+1}')
        for p in range(8):
            a(f'v_pk_max_i16 v{40+8*st+p}, v{40+8*st+p}, 0')
        for hf in range(2):
            r = 40 + 8 * st + 4 * hf
            a(f'buffer_store_dwordx4 v[{r}:{r+3}], v2, s[56:59], {"s13" if st else "s12"} offen offset:{1024*hf}')
    stamp_end(a, 2 if first else 4)
    a.label(f'{name}_END')
    a('s_endpgm')


K4_P = 272
K4_LDS = 4 * 64 * K4_P


def k4_gemm2(a, name, last):
    a(kernel_header(name))
    stamp_begin(a)
    load_args(a)
    a('s_cmp_ge_u32 s2, 224')
    a(f's_cbranch_scc1 {name}_END')
    wg_map(a)
    a('v_and_b32 v1, 63, v0')
    a('v_lshrrev_b32 v2, 6, v0')
    a('v_readfirstlane_b32 s3, v2')
    a('v_lshlrev_b32 v2, 4, v1')
    a('s_mul_i32 s8, s3, 28')
    a('s_mul_i32 s9, s5, 224')
    a('s_add_u32 s9, s9, s8')
    a('s_lshl_b32 s9, s9, 10')
    a(f's_add_u32 s10, s9, {112*1024}')
    a('s_mul_i32 s11, s4, 224')
    a('s_add_u32 s11, s11, s8')
    a('s_lshl_b32 s11, s11, 10')
    a(f's_add_u32 s12, s11, {112*1024}')
    a('s_lshl_b32 s13, s4, 3')
    a('s_lshl_b32 s14, s3, 1')
    a('s_add_u32 s13, s13, s14')
    a('s_mul_i32 s14, s13, 7168')
    a('s_lshl_b32 s15, s5, 10')
    a('s_add_u32 s60, s14, s15')
    a('s_add_u32 s61, s60, 7168')
    a('s_waitcnt lgkmcnt(0)')
    srd(a, 40, P_WS, WS_W2F, WBYTES)
    srd(a, 44, P_WS, WS_HB, HBYTES)
    srd(a, 48, P_WS, WS_XA, XBYTES)
    if last:
        srd(a, 52, P_OUT, 0, XBYTES)
    else:
        srd(a, 52, P_WS, WS_X2, XBYTES)
    ACC = 16
    NS = 14
    def ld(k):
        sl = 16 * (k % NS)
        off = 1024 * (k % 4)
        a(f'buffer_load_dwordx4 a[{sl}:{sl+3}], v2, s[40:43], s9 offen offset:{off}')
        a(f'buffer_load_dwordx4 a[{sl+8}:{sl+11}], v2, s[44:47], s11 offen offset:{off}')
        a(f'buffer_load_dwordx4 a[{sl+4}:{sl+7}], v2, s[40:43], s10 offen offset:{off}')
        a(f'buffer_load_dwordx4 a[{sl+12}:{sl+15}], v2, s[44:47], s12 offen offset:{off}')
        if k % 4 == 3:
            for s in (9, 10, 11, 12): a(f's_add_u32 s{s}, s{s}, 4096')
    for k in range(NS): ld(k)
    a('buffer_load_dwordx4 v[8:11], v2, s[48:51], s60 offen')
    a('buffer_load_dwordx4 v[12:15], v2, s[48:51], s61 offen')
    stamp(a, 1)
    a('v_and_b32 v3, 31, v1')
    a(f'v_mul_u32_u24 v3, {K4_P}, v3')
    a('v_lshrrev_b32 v4, 5, v1')
    a('v_lshl_add_u32 v3, v4, 4, v3')
    a(f's_mul_i32 s8, s3, {64*K4_P}')
    a('v_add_u32 v3, s8, v3')
    a('v_and_b32 v4, 7, v1')
    a('s_lshl_b32 s8, s3, 4')
    a('v_add_u32 v5, s8, v4')
    a(f'v_mul_u32_u24 v5, {K4_P}, v5')
    a('v_lshrrev_b32 v6, 3, v1')
    a('v_lshl_add_u32 v5, v6, 5, v5')
    if last:
        a('v_mul_u32_u24 v7, 896, v4')
        a('v_lshl_add_u32 v7, v6, 4, v7')
        a('s_lshl_b32 s15, s5, 7')
        a('s_add_u32 s60, s14, s15')
        a('s_add_u32 s61, s60, 7168')
    for k in range(28):
        issued_after = min(27, k + NS - 1) - k
        xa_after = 2 if k < NS else 0
        a(f's_waitcnt vmcnt({4*issued_after + xa_after})')
        if k in (0, 7, 14, 21): stamp(a, 2 + k // 7)
        sl = 16 * (k % NS)
        for dt in range(2):
            for st in range(2):
                o = ACC + 16 * (2 * dt + st)
                c = f'v[{o}:{o+15}]' if k else '0'
                a(f'v_mfma_f32_32x32x16_bf16 v[{o}:{o+15}], a[{sl+4*dt}:{sl+4*dt+3}], a[{sl+8+4*st}:{sl+8+4*st+3}], {c}')
        if k + NS < 28: ld(k + NS)
    stamp(a, 6)
    for dt in range(2):
        for st in range(2):
            o = ACC + 16 * (2 * dt + st)
            for rg in range(4):
                a(f'ds_write_b128 v3, v[{o+4*rg}:{o+4*rg+3}] offset:{st*32*K4_P + dt*128 + rg*32}')
    a('s_mov_b32 s64, 0xffff0000')
    a('s_mov_b32 s62, 0x00003f80')
    a('s_mov_b32 s63, 0x3f800000')
    a('s_waitcnt lgkmcnt(0)')
    a('s_barrier')
    stamp(a, 7)
    for u in range(2):
        for kq in range(4):
            for h in range(2):
                r = 16 + 32 * u + 8 * kq + 4 * h
                a(f'ds_read_b128 v[{r}:{r+3}], v5 offset:{kq*64*K4_P + u*8*K4_P + 16*h}')
    for u in range(2):
        a(f's_waitcnt lgkmcnt({8-8*u})')
        r = 16 + 32 * u
        for e in range(8): a(f'v_add_f32 v{r+e}, v{r+e}, v{r+8+e}')
        for e in range(8): a(f'v_add_f32 v{r+16+e}, v{r+16+e}, v{r+24+e}')
        for e in range(8): a(f'v_add_f32 v{r+e}, v{r+e}, v{r+16+e}')
        for p in range(4): a(f'v_cvt_pk_bf16_f32 v{r+8+p}, v{r+2*p}, v{r+2*p+1}')
        for p in range(4):
            a(f'v_lshlrev_b32 v{r+2*p}, 16, v{r+8+p}')
            a(f'v_and_b32 v{r+2*p+1}, s64, v{r+8+p}')
        for p in range(4):
            a(f'v_dot2_f32_bf16 v{r+2*p}, v{8+4*u+p}, s62, v{r+2*p}')
            a(f'v_dot2_f32_bf16 v{r+2*p+1}, v{8+4*u+p}, s63, v{r+2*p+1}')
        for p in range(4): a(f'v_cvt_pk_bf16_f32 v{r+8+p}, v{r+2*p}, v{r+2*p+1}')
        a(f'buffer_store_dwordx4 v[{r+8}:{r+11}], {"v7" if last else "v2"}, s[52:55], {"s61" if u else "s60"} offen')
    stamp_end(a, 5 if last else 3)
    a.label(f'{name}_END')
    a('s_endpgm')


def main(out):
    a = Asm()
    k1_prep(a)
    k2_conv(a)
    k3_gemm1(a, 'g1a_kernel', True)
    k4_gemm2(a, 'g2a_kernel', False)
    k3_gemm1(a, 'g1b_kernel', False)
    k4_gemm2(a, 'g2b_kernel', True)
    hdr = open(f'cdna_kernels/{NAME}.s.ref').read().split('; Override launch')[0]
    hdr += f"""; @launch kernel=prep_kernel grid=(644,1,1) block=(256,1,1) lds=24576
; @launch kernel=conv_kernel grid=(224,1,1) block=(256,1,1) lds={K2_LDS}
; @launch kernel=g1a_kernel grid=(224,1,1) block=(512,1,1) lds={K3_LDS}
; @launch kernel=g2a_kernel grid=(224,1,1) block=(256,1,1) lds={K4_LDS}
; @launch kernel=g1b_kernel grid=(224,1,1) block=(512,1,1) lds={K3_LDS}
; @launch kernel=g2b_kernel grid=(224,1,1) block=(256,1,1) lds={K4_LDS}
.amdgcn_target "amdgcn-amd-amdhsa--gfx950"
.text
"""
    body = a.text()
    tail = '.section .rodata,"a"\n'
    tail += kernel_desc('prep_kernel', 112)
    tail += kernel_desc('conv_kernel', 176)
    tail += kernel_desc('g1a_kernel', 256)
    tail += kernel_desc('g2a_kernel', 80 + 224, accum=80)
    tail += kernel_desc('g1b_kernel', 256)
    tail += kernel_desc('g2b_kernel', 80 + 224, accum=80)
    open(out, 'w').write(hdr + body + tail)


if __name__ == '__main__':
    PROF = '--prof' in sys.argv
    main(sys.argv[1] if len(sys.argv) > 1 else f'cdna_kernels/{NAME}.s')
```

```python
import sys
from collections import deque
from asmlib import *
import gen1
from gen1 import (NAME, S, D, DFF, XBYTES, WBYTES, HBYTES, P_Q, P_K, P_V, P_SHK, P_SSMK, P_SSMD, P_W1, P_W2, P_OUT,
                  P_DBG, P_WS, load_args, srd, magic, FC, K2_CB, K2_G, K2_SCR, reduce8, rnd)

WS_KVR = 0x000000
WS_W1F = 0x200000
WS_W2F = 0x400000
WS_YB = 0x600000
WS_YX = 0x800000
WS_X2 = 0xA00000
WS_FL = 0xC00000
WS_HB = [0x1000000, 0x1800000]
WS_SIZE = 0x2000000
WS_PROF = 0x2000000
FL_OPS = 4096
FL_BYTES = 4096 + 6 * 32 * 128
PROF = False
CODEPF = False

L_W2 = 0
L_R0 = 98304
R_SZ = 28736
L_CS = L_R0 + 2 * R_SZ
L_ST = L_CS + 1024
LDS_BYTES = L_ST + 512
YP = 7184


class Ctr:
    def __init__(self, a, name, maxn):
        self.a, self.name, self.maxn, self.q = a, name, maxn, []

    def issue(self, tag=None):
        self.q.append(tag)

    def need(self, tag):
        idx = [i for i, t in enumerate(self.q) if t == tag]
        if not idx: return None
        n = len(self.q) - 1 - idx[-1]
        self.q = self.q[idx[-1] + 1:]
        return min(n, self.maxn)

    def wait(self, tag):
        n = self.need(tag)
        if n is not None: self.a(f's_waitcnt {self.name}({n})')

    def wait_all(self):
        self.a(f's_waitcnt {self.name}(0)')
        self.q = []


class G:
    def __init__(self, a):
        self.a = a
        self.vm = Ctr(a, 'vmcnt', 63)
        self.lg = Ctr(a, 'lgkmcnt', 15)
        self.bg = deque()

    def vmem(self, text, tag=None):
        self.a(text); self.vm.issue(tag)

    def ds(self, text, tag=None):
        self.a(text); self.lg.issue(tag)

    def wait2(self, vtag=None, ltag=None):
        parts = []
        if vtag is not None:
            n = self.vm.need(vtag)
            if n is not None: parts.append(f'vmcnt({n})')
        if ltag is not None:
            n = self.lg.need(ltag)
            if n is not None: parts.append(f'lgkmcnt({n})')
        if parts: self.a('s_waitcnt ' + ' '.join(parts))

    def pump(self, n=1):
        for _ in range(n):
            if not self.bg: return
            self.bg.popleft()()

    def barrier(self):
        self.lg.wait_all()
        self.a('s_barrier')


def stamp(a, k):
    if not PROF: return
    a('s_memtime s[92:93]')
    a('s_waitcnt lgkmcnt(0)')
    a(f'v_writelane_b32 v7, s92, {k}')


WSR = 's[40:43]'


def w1_reg(ft2, k): return (k * 2 + ft2) * 4


def w2_loc(k, dt):
    if k < 4: return ('a', 224 + k * 8 + dt * 4)
    if k < 16: return ('v', 160 + (k - 4) * 8 + dt * 4)
    return ('l', dt * 12 + (k - 16))


def poll(g, name, voff, soff, mask, wide=False):
    a = g.a
    a(f's_mov_b32 exec_lo, {hex(mask & 0xffffffff)}')
    a(f's_mov_b32 exec_hi, {hex(mask >> 32)}')
    a.label(name)
    if wide:
        a(f'buffer_load_dwordx4 v[128:131], {voff}, {WSR}, {soff} offen sc1')
        a(f'buffer_load_dwordx4 v[132:135], {voff}, {WSR}, {soff} offen offset:896 sc1')
        a('s_waitcnt vmcnt(0)')
        a('v_min3_u32 v128, v128, v129, v130')
        a('v_min3_u32 v131, v131, v132, v133')
        a('v_min3_u32 v128, v128, v134, v135')
        a('v_and_b32 v128, v128, v131')
    else:
        a(f'buffer_load_dword v128, {voff}, {WSR}, {soff} offen sc1')
        a('s_waitcnt vmcnt(0)')
    a('v_cmp_ne_u32 vcc, 1, v128')
    a('s_add_u32 s96, s96, 1')
    a('s_cmp_gt_u32 s96, 0x40000')
    a(f's_cbranch_scc1 {name}_D')
    a(f's_cbranch_vccnz {name}')
    a.label(name + '_D')
    a('s_mov_b64 exec, -1')
    g.vm.q = []


def publish(g, tag, soff_expr):
    a = g.a
    g.vm.wait(tag)
    a('s_mov_b64 exec, 1')
    g.vmem(f'buffer_store_dword v5, v6, {WSR}, {soff_expr} offen sc1')
    a('s_mov_b64 exec, -1')


def conv_part(g):
    a = g.a
    a('s_lshr_b32 s8, s3, 1')
    a('s_and_b32 s9, s3, 1')
    a('s_lshl_b32 s10, s2, 1')
    a('s_add_u32 s10, s10, s8')
    a('s_lshl_b32 s11, s10, 12')
    a(f's_mul_i32 s12, s8, {K2_CB}')
    a('s_lshl_b32 s13, s9, 11')
    a('v_add_u32 v8, s13, v2')
    a('v_add_u32 v9, -16, v8')
    a('s_waitcnt lgkmcnt(0)')
    srd(a, 44, P_SSMK, 's11', 4096)
    srd(a, 40, P_WS, 0, WS_SIZE + (0x100000 if PROF else 0))
    a('s_lshl_b32 s14, s2, 2')
    a('s_load_dword s15, s[26:27], s14')
    g.vmem('buffer_load_dwordx4 v[16:19], v9, s[44:47], 0 offen', 'h0')
    g.vmem('buffer_load_dwordx4 v[20:23], v8, s[44:47], 0 offen', 'h0')
    g.vmem('buffer_load_dwordx4 v[24:27], v8, s[44:47], 0 offen offset:1008', 'h1')
    g.vmem('buffer_load_dwordx4 v[28:31], v8, s[44:47], 0 offen offset:1024', 'h1')
    g.vmem(f'buffer_load_dwordx4 v[32:35], v8, {WSR}, s11 offen', 'kv0')
    g.vmem(f'buffer_load_dwordx4 v[36:39], v8, {WSR}, s11 offen offset:1024', 'kv1')
    srd(a, 48, P_Q, 0, XBYTES)
    srd(a, 52, P_OUT, 0, XBYTES)
    if CODEPF:
        a('s_getpc_b64 s[6:7]')
        a.label('CPF_PC')
        a('s_lshl_b32 s14, s3, 13')
        a('v_lshl_add_u32 v3, v1, 7, s14')
        for rep in range(2):
            a('v_cmp_gt_u32 vcc, MAIN_END-CPF_PC, v3')
            a('s_and_saveexec_b64 s[84:85], vcc')
            a(f's_cbranch_execz CPF_S{rep}')
            a('global_load_dword v4, v3, s[6:7]')
            a.label(f'CPF_S{rep}')
            a('s_mov_b64 exec, -1')
            if rep == 0: a('v_add_u32 v3, 0x8000, v3')
    gen1.wg_map(a)
    a('s_lshl_b32 s68, s5, 3')
    a('s_lshl_b32 s69, s3, 1')
    a('s_add_u32 s68, s68, s69')
    a(f's_mul_i32 s68, s68, {28*1024}')
    a(f's_add_u32 s68, s68, {WS_W1F}')
    a(f's_add_u32 s69, s68, {28*1024}')
    def w1_load(k, ft2):
        def f():
            r = w1_reg(ft2, k)
            g.vmem(f'buffer_load_dwordx4 a[{r}:{r+3}], v2, {WSR}, s{68+ft2} offen offset:{1024*(k%4)}', 'w1')
            if k % 4 == 3: a(f's_add_u32 s{68+ft2}, s{68+ft2}, 4096')
        return f
    for k in range(28):
        for ft2 in range(2): g.bg.append(w1_load(k, ft2))
    a('v_add_u32 v10, s12, v8')
    for i in range(4): a(f'v_mov_b32 v{40+i}, 0')
    a('v_and_b32 v11, 7, v1')
    a('v_lshlrev_b32 v12, 2, v11')
    a('s_mov_b32 s14, 0x1cb88541')
    a('v_lshrrev_b32 v12, v12, s14')
    a('v_and_b32 v12, 15, v12')
    a('v_mul_u32_u24 v13, 272, v11')
    a('v_add_u32 v12, v12, v13')
    a('v_lshl_add_u32 v12, v12, 4, s12')
    a('s_cmp_eq_u32 s9, 0')
    a('s_cbranch_scc0 CV_Z1')
    a('s_mov_b64 exec, 0xff')
    a('ds_write_b128 v12, v[40:43]')
    a('s_mov_b64 exec, -1')
    a('s_branch CV_Z2')
    a.label('CV_Z1')
    a('v_add_u32 v13, s12, v2')
    a(f'ds_write_b128 v13, v[40:43] offset:{K2_G+4096}')
    a.label('CV_Z2')
    a('v_bfe_u32 v13, v1, 3, 1')
    a('v_lshrrev_b32 v14, 4, v1')
    a('v_add_u32 v13, v13, v14')
    a('v_lshl_add_u32 v12, v13, 4, v12')
    a('s_lshl_b32 s14, s9, 8')
    a('v_add_u32 v12, s14, v12')
    a('v_and_b32 v15, 15, v1')
    a('v_lshlrev_b32 v13, 5, v15')
    a('v_lshlrev_b32 v11, 4, v14')
    a('v_sub_u32 v13, v11, v13')
    a('s_add_u32 s14, s14, s12')
    a(f's_add_u32 s14, s14, {K2_G+480}')
    a('v_add_u32 v13, s14, v13')
    g.pump(8)
    for p in range(2):
        d = 16 + 8 * p
        t = 44 + 20 * p
        g.vm.wait(f'h{p}')
        if p == 0: stamp(a, 1)
        for k in range(6): a(f'v_mov_b32 v{t+k}, v{d+1+k}')
        for k in range(6): a(f'v_alignbyte_b32 v{t+6+k}, v{d+k+1}, v{d+k}, 2')
        for k in range(6): a(f'v_alignbyte_b32 v{t+12+k}, v{d+k+2}, v{d+k+1}, 2')
        src = {1: t + 6, 2: t, 3: t + 12, 4: d + 2, 5: t + 8, 6: t + 2, 7: t + 14, 8: d + 4}
        for r in range(1, 9):
            off = ((r - 1) * 272 + FC[r - 1] + 1) * 16 + 1024 * p
            a(f'ds_write_b128 v10, v[{src[r]}:{src[r]+3}] offset:{off}')
        g.pump(2)
    g.vm.wait('kv0')
    a(f'ds_write_b128 v10, v[32:35] offset:{K2_G}')
    g.vm.wait('kv1')
    a(f'ds_write_b128 v10, v[36:39] offset:{K2_G+1024}')
    g.barrier()
    stamp(a, 2)
    ACC = 16
    def Fr(b, s): return 48 + 64 * b + 4 * s
    def Gr(b, t): return 80 + 64 * b + 4 * t
    def reads(qq):
        b = qq & 1
        L = []
        for t in range(8):
            L.append((f'ds_read_b128 v[{Fr(b,t)}:{Fr(b,t)+3}], v12 offset:{512*t+64*qq}', f'c{qq}_{t}'))
            L.append((f'ds_read_b128 v[{Gr(b,t)}:{Gr(b,t)+3}], v13 offset:{512*(7-t)+64*qq}', f'c{qq}_{t}'))
        return L
    for l, tg in reads(0): g.ds(l, tg)
    started = set()
    nm = 0
    for qq in range(4):
        b = qq & 1
        nxt = reads(qq + 1) if qq < 3 else []
        for m in range(8):
            pairs = [(s, t) for s in range(m + 1) for t in range(m + 1) if max(s, t) == m and s + t <= 7]
            g.lg.wait(f'c{qq}_{m}')
            for (s, t) in pairs:
                o = ACC + 4 * (s + t)
                c = f'v[{o}:{o+3}]' if (s + t) in started else '0'
                started.add(s + t)
                a(f'v_mfma_f32_16x16x32_bf16 v[{o}:{o+3}], v[{Fr(b,s)}:{Fr(b,s)+3}], v[{Gr(b,t)}:{Gr(b,t)+3}], {c}')
                nm += 1
                if nxt and m >= 2:
                    l, tg = nxt.pop(0); g.ds(l, tg)
                if nm % 4 == 0: g.pump(1)
        for l, tg in nxt: g.ds(l, tg)
    stamp(a, 3)
    a('s_lshl_b32 s14, s3, 12')
    a(f's_add_u32 s14, s14, {K2_SCR}')
    a('v_add_u32 v8, s14, v2')
    a('s_xor_b32 s14, s3, 1')
    a('s_lshl_b32 s14, s14, 12')
    a(f's_add_u32 s14, s14, {K2_SCR}')
    a('v_add_u32 v9, s14, v2')
    a('s_cmp_eq_u32 s9, 0')
    a('s_cbranch_scc0 CV_R1')
    for j in range(4):
        a(f'ds_write_b128 v8, v[{ACC+16+4*j}:{ACC+19+4*j}] offset:{1024*j}')
    a('s_branch CV_R2')
    a.label('CV_R1')
    for j in range(4):
        a(f'ds_write_b128 v8, v[{ACC+4*j}:{ACC+3+4*j}] offset:{1024*j}')
    for j in range(16):
        a(f'v_mov_b32 v{ACC+j}, v{ACC+16+j}')
    a.label('CV_R2')
    a('v_lshlrev_b32 v10, 5, v15')
    a('v_lshl_add_u32 v10, v14, 3, v10')
    a('s_lshl_b32 s14, s9, 11')
    a(f's_sub_u32 s14, {K2_G + 4088 - 3*512}, s14')
    a('s_add_u32 s14, s14, s12')
    a('v_sub_u32 v10, s14, v10')
    for j in range(4):
        a(f'ds_read_b64 v[{64+2*j}:{65+2*j}], v10 offset:{(3-j)*512}')
    a('s_lshl_b32 s14, s15, 16')
    a('s_and_b32 s15, s15, 0xffff0000')
    a('s_cmp_eq_u32 s8, 0')
    a('s_cselect_b32 s15, s14, s15')
    g.barrier()
    for j in range(4):
        g.ds(f'ds_read_b128 v[{48+4*j}:{51+4*j}], v9 offset:{1024*j}', f'r{j}')
    a('v_lshrrev_b32 v11, 2, v15')
    a('s_lshl_b32 s14, s9, 4')
    a('v_add_u32 v11, s14, v11')
    a('v_mul_u32_u24 v11, 448, v11')
    a('v_add_u32 v11, s10, v11')
    a('v_lshlrev_b32 v11, 7, v11')
    a('v_and_b32 v12, 3, v15')
    a('v_lshl_add_u32 v11, v12, 5, v11')
    a('v_lshl_add_u32 v11, v14, 3, v11')
    g.pump(100)
    for j in range(4):
        g.lg.wait(f'r{j}')
        for r in range(4): a(f'v_add_f32 v{ACC+4*j+r}, v{ACC+4*j+r}, v{48+4*j+r}')
        k0, k1 = 64 + 2 * j, 65 + 2 * j
        a(f'v_and_b32 v80, s64, v{k1}')
        a(f'v_lshlrev_b32 v81, 16, v{k1}')
        a(f'v_and_b32 v82, s64, v{k0}')
        a(f'v_lshlrev_b32 v83, 16, v{k0}')
        for r in range(4): a(f'v_mul_f32 v{80+r}, s15, v{80+r}')
        for r in range(4): a(f'v_cvt_pk_bf16_f32 v{80+r}, v{80+r}, v{ACC+4*j+r}')
        for r in range(4): a(f'v_dot2_f32_bf16 v{80+r}, v{80+r}, s62, 0')
        a(f'v_cvt_pk_bf16_f32 v{84+2*j}, v80, v81')
        a(f'v_cvt_pk_bf16_f32 v{85+2*j}, v82, v83')
        a(f's_mov_b32 s14, {WS_YB + j*4*448*128}')
        g.vmem(f'buffer_store_dwordx2 v[{84+2*j}:{85+2*j}], v11, {WSR}, s14 offen sc1', 'yst')
    a('s_barrier')
    a('s_mul_i32 s14, s9, 448')
    a('s_add_u32 s14, s14, s10')
    a('s_lshl_b32 s14, s14, 2')
    a(f's_add_u32 s14, s14, {WS_FL}')
    publish(g, 'yst', 's14')
    stamp(a, 4)


def setup_gemm(g):
    a = g.a
    pass


X, Y, DD, T = 16, 44, 72, 128
ACC1, BR = 72, 104
YB_TMP = 228


def g1_op(g, layer, s):
    a = g.a
    nm = f'G1_{layer}{s}'
    Yr = Y if (layer == 1 or s == 0) else YB_TMP
    a(f's_add_u32 s70, s71, {s*4*7168}')
    if layer == 0:
        for i in range(7):
            g.vmem(f'buffer_load_dwordx4 v[{X+4*i}:{X+4*i+3}], v144, s[48:51], s70 offen offset:{128*i}', 'x')
    else:
        a(f's_add_u32 s72, s73, {(2+s)*32*128}')
        poll(g, nm + '_P', 'v145', 's72', (1 << 28) - 1)
        a(f's_add_u32 s72, s70, {WS_X2}')
        a(f's_add_u32 s74, s70, {WS_X2+4096}')
        for i in range(7):
            so, off = ('s72', 1024 * i) if i < 4 else ('s74', 1024 * (i - 4))
            g.vmem(f'buffer_load_dwordx4 v[{X+4*i}:{X+4*i+3}], v2, {WSR}, {so} offen offset:{off} sc1', 'x')
        a(f's_add_u32 s72, s70, {WS_YX}')
        a(f's_add_u32 s74, s70, {WS_YX+4096}')
        for i in range(7):
            so, off = ('s72', 1024 * i) if i < 4 else ('s74', 1024 * (i - 4))
            g.vmem(f'buffer_load_dwordx4 v[{Y+4*i}:{Y+4*i+3}], v2, {WSR}, {so} offen offset:{off} sc1', 'y')
    stamp(a, 8 + 8 * (2 * layer + s))
    g.vm.wait('x')
    acc, tmp, mb, dm, s0 = T, T + 1, T + 2, T + 4, T + 6
    a(f'v_dot2_f32_bf16 v{acc}, v{X}, s62, 0')
    a(f'v_dot2_f32_bf16 v{tmp}, v{X+1}, s62, 0')
    for p in range(2, 28, 2):
        a(f'v_dot2_f32_bf16 v{acc}, v{X+p}, s62, v{acc}')
        a(f'v_dot2_f32_bf16 v{tmp}, v{X+p+1}, s62, v{tmp}')
    a(f'v_add_f32 v{acc}, v{acc}, v{tmp}')
    reduce8(a, acc, tmp)
    a(f'v_mul_f32 v{acc}, s63, v{acc}')
    rnd(a, mb, acc)
    a(f'v_sub_f32 v{dm}, v{acc}, v{mb}')
    a(f'v_sub_f32 v{mb+1}, 0, v{mb}')
    for p in range(28):
        a(f'v_dot2_f32_bf16 v{DD+2*p}, v{X+p}, s60, v{mb+1}')
        a(f'v_dot2_f32_bf16 v{DD+2*p+1}, v{X+p}, s61, v{mb+1}')
        if p >= 2:
            q = p - 2
            c = '0' if q == 0 else f'v[{s0}:{s0+1}]'
            a(f'v_pk_fma_f32 v[{s0}:{s0+1}], v[{DD+2*q}:{DD+2*q+1}], v[{DD+2*q}:{DD+2*q+1}], {c}')
    for q in (26, 27):
        a(f'v_pk_fma_f32 v[{s0}:{s0+1}], v[{DD+2*q}:{DD+2*q+1}], v[{DD+2*q}:{DD+2*q+1}], v[{s0}:{s0+1}]')
    a(f'v_add_f32 v{acc}, v{s0}, v{s0+1}')
    reduce8(a, acc, tmp)
    a(f'v_mul_f32 v{dm}, v{dm}, v{dm}')
    a(f'v_fma_f32 v{acc}, s63, v{acc}, -v{dm}')
    a(f'v_max_f32 v{acc}, 0, v{acc}')
    rnd(a, acc, acc)
    a(f'v_add_f32 v{acc}, 0x3727c5ac, v{acc}')
    rnd(a, acc, acc)
    a(f'v_sqrt_f32 v{acc}, v{acc}')
    rnd(a, acc, acc)
    a(f'v_rcp_f32 v{acc}, v{acc}')
    if layer == 1: g.vm.wait('y')
    else: g.lg.wait('ytr')
    if layer == 0:
        a('s_lshl_b32 s72, s5, 10')
        a('s_add_u32 s72, s72, s70')
        a(f's_add_u32 s72, s72, {WS_YX}')
        for i in range(7):
            a(f's_cmp_lg_u32 s5, {i}')
            a(f's_cbranch_scc1 {nm}_YX{i}')
            a(f'buffer_store_dwordx4 v[{Yr+4*i}:{Yr+4*i+3}], v2, {WSR}, s72 offen sc1')
            a.label(f'{nm}_YX{i}')
        g.vm.issue('hst')
    sa, sb = T + 4, T + 6
    for i in range(7):
        t = T + 8
        for p in range(4):
            a(f'v_lshlrev_b32 v{t+2*p}, 16, v{Yr+4*i+p}')
            a(f'v_and_b32 v{t+2*p+1}, s64, v{Yr+4*i+p}')
        for p in range(4):
            a(f'v_pk_fma_f32 v[{t+2*p}:{t+2*p+1}], v[{t+2*p}:{t+2*p+1}], v[{acc}:{acc+1}], 1.0 op_sel_hi:[1,0,0]')
        for p in range(4):
            d = DD + 8 * i + 2 * p
            a(f'v_pk_mul_f32 v[{d}:{d+1}], v[{d}:{d+1}], v[{t+2*p}:{t+2*p+1}]')
        for p in range(4):
            d = DD + 8 * i + 2 * p
            if i == 0 and p == 0:
                a(f'v_pk_mul_f32 v[{sb}:{sb+1}], v[{d}:{d+1}], v[{d}:{d+1}]')
                a(f'v_pk_add_f32 v[{sa}:{sa+1}], v[{d}:{d+1}], 0')
            else:
                a(f'v_pk_fma_f32 v[{sb}:{sb+1}], v[{d}:{d+1}], v[{d}:{d+1}], v[{sb}:{sb+1}]')
                a(f'v_pk_add_f32 v[{sa}:{sa+1}], v[{d}:{d+1}], v[{sa}:{sa+1}]')
            a(f'v_pk_add_f32 v[{t+2*p}:{t+2*p+1}], v[{d}:{d+1}], v[{mb}:{mb+1}] op_sel_hi:[1,0]')
        for p in range(4):
            a(f'v_cvt_pk_bf16_f32 v{X+4*i+p}, v{t+2*p}, v{t+2*p+1}')
        g.ds(f'ds_write_b128 v146, v[{X+4*i}:{X+4*i+3}] offset:{s*R_SZ + 4096*i}')
    if layer == 0 and s == 1:
        for k in range(12, 16):
            for dt in range(2):
                if w2_loc(k, dt)[1] >= YB_TMP: g.bg.appendleft(g.w2_load(k, dt))
    a(f'v_add_f32 v{sa}, v{sa}, v{sa+1}')
    a(f'v_add_f32 v{sb}, v{sb}, v{sb+1}')
    a(f'v_add_f32 v{sa}, v{sa}, v{sa} row_ror:8')
    a(f'v_add_f32 v{sb}, v{sb}, v{sb} row_ror:8')
    for sw in ('v_permlane16_swap_b32', 'v_permlane32_swap_b32'):
        a(f'v_mov_b32 v{sa+1}, v{sa}')
        a(f'v_mov_b32 v{sb+1}, v{sb}')
        a(f'{sw} v{sa}, v{sa+1}')
        a(f'{sw} v{sb}, v{sb+1}')
        a(f'v_add_f32 v{sa}, v{sa}, v{sa+1}')
        a(f'v_add_f32 v{sb}, v{sb}, v{sb+1}')
    a(f'v_mul_f32 v{sa}, s63, v{sa}')
    a(f'v_mul_f32 v{sa+1}, v{sa}, v{sa}')
    a(f'v_fma_f32 v{sb}, s63, v{sb}, -v{sa+1}')
    a(f'v_max_f32 v{sb}, 0, v{sb}')
    rnd(a, sb, sb)
    a(f'v_add_f32 v{sb}, 0x3727c5ac, v{sb}')
    rnd(a, sb, sb)
    a(f'v_sqrt_f32 v{sb}, v{sb}')
    rnd(a, sb, sb)
    a(f'v_rcp_f32 v{sa+1}, v{sb}')
    a(f'v_add_f32 v{sa}, v{sa}, v{mb}')
    rnd(a, sa, sa)
    a(f'v_sub_f32 v{sa}, 0, v{sa}')
    a('s_mov_b64 exec, 0xff')
    g.ds(f'ds_write_b64 v147, v[{sa}:{sa+1}] offset:{s*256}')
    a('s_mov_b64 exec, -1')
    stamp(a, 9 + 8 * (2 * layer + s))
    g.barrier()
    stamp(a, 10 + 8 * (2 * layer + s))
    if layer == 0 and s == 0:
        for k in range(16, 28):
            for dt in range(2): g.bg.append(g.w2_load(k, dt))
    def rd(k):
        sl = BR + 4 * (k % 4)
        g.ds(f'ds_read_b128 v[{sl}:{sl+3}], v148 offset:{s*R_SZ + 1024*k}', f'b{k}')
    for k in range(3): rd(k)
    RES = 8 + 4 * s
    g.ds(f'ds_read_b128 v[{RES}:{RES+3}], v149 offset:{s*R_SZ}')
    g.ds(f'ds_read_b64 v[{156+2*s}:{157+2*s}], v150 offset:{s*256}')
    for k in range(28):
        if k + 3 < 28: rd(k + 3)
        if 4 <= k < 12:
            q = k - 4
            g.ds(f'ds_read_b128 v[{16+4*q}:{19+4*q}], v151 offset:{(q//4)*128 + (q%4)*16}', 'cs')
        g.lg.wait(f'b{k}')
        sl = BR + 4 * (k % 4)
        for ft2 in range(2):
            o = ACC1 + 16 * ft2
            c = f'v[{o}:{o+15}]' if k else '0'
            r = w1_reg(ft2, k)
            a(f'v_mfma_f32_32x32x16_bf16 v[{o}:{o+15}], a[{r}:{r+3}], v[{sl}:{sl+3}], {c}')
            if k < 24: g.pump(1)
    stamp(a, 11 + 8 * (2 * layer + s))
    a(f's_add_u32 s72, s75, {WS_HB[layer] + s*112*1024}')
    mm = 156 + 2 * s
    for ft2 in range(2):
        o = ACC1 + 16 * ft2
        for p in range(8):
            c = 16 + 16 * ft2 + 2 * p
            a(f'v_pk_fma_f32 v[{o+2*p}:{o+2*p+1}], v[{c}:{c+1}], v[{mm}:{mm+1}], v[{o+2*p}:{o+2*p+1}] op_sel_hi:[1,0,1]')
        for p in range(8):
            a(f'v_cvt_pk_bf16_f32 v{48+8*ft2+p}, v{o+2*p}, v{o+2*p+1}')
        for p in range(8):
            a(f'v_pk_max_i16 v{48+8*ft2+p}, v{48+8*ft2+p}, 0')
        for hf in range(2):
            r = 48 + 8 * ft2 + 4 * hf
            g.vmem(f'buffer_store_dwordx4 v[{r}:{r+3}], v2, {WSR}, s72 offen offset:{2048*ft2 + 1024*hf} sc1', 'hst')
    a(f's_add_u32 s72, s76, {(4*layer + s)*32*128}')
    publish(g, 'hst', 's72')
    stamp(a, 12 + 8 * (2 * layer + s))


def g2_op(g, layer, s):
    a = g.a
    nm = f'G2_{layer}{s}'
    ACC, HR, NR, WT = 16, 48, 20, 128
    g.pump(100)
    a(f's_add_u32 s72, s73, {(4*layer + s)*32*128}')
    poll(g, nm + '_P', 'v145', 's72', (1 << 28) - 1)
    stamp(a, 13 + 8 * (2 * layer + s))
    a(f's_add_u32 s72, s77, {WS_HB[layer] + s*112*1024}')
    def ld(k):
        sl = HR + 4 * (k % NR)
        g.vmem(f'buffer_load_dwordx4 v[{sl}:{sl+3}], v2, {WSR}, s72 offen offset:{1024*(k%4)} sc1', f'h{k}')
        if k % 4 == 3: a('s_add_u32 s72, s72, 4096')
    def rdw(k):
        for dt in range(2):
            r = WT + 8 * (k % 2) + 4 * dt
            g.ds(f'ds_read_b128 v[{r}:{r+3}], v152 offset:{1024*w2_loc(k, dt)[1]}', f'w{k}')
    for k in range(NR): ld(k)
    for k in range(28):
        if k in (14, 15): rdw(k + 2)
        g.wait2(f'h{k}', f'w{k}' if k >= 16 else None)
        sl = HR + 4 * (k % NR)
        for dt in range(2):
            o = ACC + 16 * dt
            c = f'v[{o}:{o+15}]' if k else '0'
            kind, r = w2_loc(k, dt)
            if kind == 'l': kind, r = 'v', WT + 8 * (k % 2) + 4 * dt
            a(f'v_mfma_f32_32x32x16_bf16 v[{o}:{o+15}], {kind}[{r}:{r+3}], v[{sl}:{sl+3}], {c}')
        if k + NR < 28: ld(k + NR)
        if 16 <= k and k + 2 < 28: rdw(k + 2)
    stamp(a, 14 + 8 * (2 * layer + s))
    done = f'{nm}_RD'
    for w in range(4):
        if w < 3:
            a(f's_cmp_lg_u32 s3, {w}')
            a(f's_cbranch_scc1 {nm}_R{w+1}')
        for t in range(4):
            if t == w: continue
            slot = (w - t - 1) % 4
            for q in range(2):
                r = ACC + 8 * t + 4 * q
                a(f'ds_write_b128 v148, v[{r}:{r+3}] offset:{s*R_SZ + t*6144 + slot*2048 + q*1024}')
        if w != 0:
            for e in range(8): a(f'v_mov_b32 v{ACC+e}, v{ACC+8*w+e}')
        if w < 3:
            a(f's_branch {done}')
            a.label(f'{nm}_R{w+1}')
    a.label(done)
    g.barrier()
    for i in range(6):
        g.ds(f'ds_read_b128 v[{48+4*i}:{51+4*i}], v153 offset:{s*R_SZ + 1024*i}', f'rr{i}')
    r2 = 157 + 2 * s
    for sl in range(3):
        g.lg.wait(f'rr{2*sl+1}')
        for p in range(4):
            a(f'v_pk_add_f32 v[{ACC+2*p}:{ACC+2*p+1}], v[{ACC+2*p}:{ACC+2*p+1}], v[{48+8*sl+2*p}:{49+8*sl+2*p}]')
    for e in range(8): a(f'v_mul_f32 v{ACC+e}, v{ACC+e}, v{r2}')
    for p in range(4): a(f'v_cvt_pk_bf16_f32 v{48+p}, v{ACC+2*p}, v{ACC+2*p+1}')
    a('v_permlane32_swap_b32 v48, v50')
    a('v_permlane32_swap_b32 v49, v51')
    RES = 8 + 4 * s
    for p in range(4):
        a(f'v_lshlrev_b32 v{ACC+2*p}, 16, v{48+p}')
        a(f'v_and_b32 v{ACC+2*p+1}, s64, v{48+p}')
    for p in range(4):
        a(f'v_dot2_f32_bf16 v{ACC+2*p}, v{RES+p}, s60, v{ACC+2*p}')
        a(f'v_dot2_f32_bf16 v{ACC+2*p+1}, v{RES+p}, s61, v{ACC+2*p+1}')
    for p in range(4): a(f'v_cvt_pk_bf16_f32 v{48+p}, v{ACC+2*p}, v{ACC+2*p+1}')
    if layer == 0:
        a(f's_add_u32 s72, s78, {WS_X2 + s*4*7168}')
        g.vmem(f'buffer_store_dwordx4 v[48:51], v154, {WSR}, s72 offen sc1', 'xst')
        a(f's_add_u32 s72, s76, {(2 + s)*32*128}')
        publish(g, 'xst', 's72')
    else:
        a(f's_add_u32 s72, s79, {s*4*7168}')
        g.vmem('buffer_store_dwordx4 v[48:51], v155, s[52:55], s72 offen')
    stamp(a, 15 + 8 * (2 * layer + s))


def main_kernel(a):
    g = G(a)
    a(kernel_header('main_kernel'))
    if PROF:
        a('s_memrealtime s[94:95]')
        a('v_mov_b32 v7, 0')
        stamp(a, 0)
    load_args(a)
    a('s_cmp_ge_u32 s2, 224')
    a('s_cbranch_scc1 MAIN_END')
    a('v_and_b32 v1, 63, v0')
    a('v_lshrrev_b32 v2, 6, v0')
    a('v_readfirstlane_b32 s3, v2')
    a('v_lshlrev_b32 v2, 4, v1')
    a('s_mov_b32 s60, 0x00003f80')
    a('s_mov_b32 s61, 0x3f800000')
    a('s_mov_b32 s62, 0x3f803f80')
    a('s_mov_b32 s63, 0x3b124925')
    a('s_mov_b32 s64, 0xffff0000')
    a('s_mov_b32 s96, 0')
    a('v_mov_b32 v5, 1')
    a('v_mov_b32 v6, 0')
    conv_part(g)
    a('s_mul_i32 s80, s5, 224')
    a('s_mul_i32 s81, s3, 28')
    a('s_add_u32 s80, s80, s81')
    a('s_lshl_b32 s80, s80, 10')
    a(f's_add_u32 s80, s80, {WS_W2F}')
    a(f's_add_u32 s81, s80, {112*1024}')
    a(f's_mul_i32 s82, s3, 24576')
    def w2_load(k, dt):
        def f():
            kind, r = w2_loc(k, dt)
            a(f's_add_u32 s83, s{80+dt}, {4096*(k//4)}')
            if kind == 'l':
                a(f's_add_u32 m0, s82, {1024*(r - (k%4))}')
                g.vmem(f'buffer_load_dwordx4 v2, {WSR}, s83 offen offset:{1024*(k%4)} lds', 'w2')
            else:
                g.vmem(f'buffer_load_dwordx4 {kind}[{r}:{r+3}], v2, {WSR}, s83 offen offset:{1024*(k%4)}', 'w2')
        return f
    g.w2_load = w2_load
    for k in range(16):
        for dt in range(2):
            if not (w2_loc(k, dt)[0] == 'v' and w2_loc(k, dt)[1] >= YB_TMP): g.bg.append(w2_load(k, dt))
    a('v_and_b32 v3, 7, v1')
    a('v_lshrrev_b32 v4, 3, v1')
    a('v_mul_u32_u24 v144, 896, v3')
    a('v_lshl_add_u32 v144, v4, 4, v144')
    a('v_lshlrev_b32 v145, 2, v1')
    a('v_lshrrev_b32 v146, 1, v4')
    a('v_lshlrev_b32 v146, 10, v146')
    a('v_and_b32 v147, 1, v4')
    a('v_lshl_add_u32 v146, v147, 9, v146')
    a('v_lshl_add_u32 v146, v3, 4, v146')
    a('s_lshl_b32 s70, s3, 7')
    a(f's_add_u32 s70, s70, {L_R0}')
    a('v_add_u32 v146, s70, v146')
    a('s_lshl_b32 s70, s3, 6')
    a(f's_add_u32 s70, s70, {L_ST}')
    a('v_lshl_add_u32 v147, v3, 3, s70')
    a(f'v_add_u32 v148, {L_R0}, v2')
    a('s_lshl_b32 s70, s5, 2')
    a('s_add_u32 s70, s70, s3')
    a('s_lshl_b32 s70, s70, 10')
    a('v_add_u32 v149, s70, v148')
    a('v_and_b32 v150, 31, v1')
    a('v_lshlrev_b32 v150, 3, v150')
    a(f'v_add_u32 v150, {L_ST}, v150')
    a('v_lshrrev_b32 v151, 5, v1')
    a('s_lshl_b32 s70, s3, 8')
    a(f's_add_u32 s70, s70, {L_CS}')
    a('v_lshl_add_u32 v151, v151, 6, s70')
    a('v_add_u32 v152, s82, v2')
    a('s_mul_i32 s70, s3, 6144')
    a('v_add_u32 v153, s70, v148')
    a('v_bfe_u32 v154, v1, 3, 2')
    a('v_mul_u32_u24 v154, 7168, v154')
    a('v_lshl_add_u32 v154, v3, 4, v154')
    a('v_lshrrev_b32 v155, 5, v1')
    a('s_lshl_b32 s70, s3, 1')
    a('v_add_u32 v155, s70, v155')
    a('v_lshl_add_u32 v154, v155, 7, v154')
    a('v_and_b32 v128, 31, v1')
    a('v_mul_u32_u24 v128, 896, v128')
    a('v_lshl_add_u32 v155, v155, 4, v128')
    a('s_lshl_b32 s71, s4, 3')
    a('s_add_u32 s71, s71, s3')
    a('s_mul_i32 s71, s71, 7168')
    a('s_lshl_b32 s73, s4, 7')
    a(f's_add_u32 s73, s73, {WS_FL + FL_OPS}')
    a('s_lshl_b32 s76, s5, 2')
    a('s_add_u32 s76, s76, s3')
    a('s_lshl_b32 s75, s76, 12')
    a('s_lshl_b32 s76, s76, 2')
    a('s_add_u32 s76, s76, s73')
    a(f's_mul_i32 s77, s4, {224*1024}')
    a('s_add_u32 s75, s75, s77')
    a(f's_mul_i32 s70, s3, {28*1024}')
    a('s_add_u32 s77, s77, s70')
    a('s_mul_i32 s78, s4, 57344')
    a('s_lshl_b32 s70, s5, 7')
    a('s_add_u32 s79, s78, s70')
    a('s_lshl_b32 s70, s5, 10')
    a('s_add_u32 s78, s78, s70')
    for i in range(4): a(f'v_mov_b32 v{BR+i}, s62')
    g.vm.wait('w1')
    for k in range(28):
        for ft2 in range(2):
            o = ACC1 + 16 * ft2
            c = f'v[{o}:{o+15}]' if k else '0'
            r = w1_reg(ft2, k)
            a(f'v_mfma_f32_32x32x16_bf16 v[{o}:{o+15}], a[{r}:{r+3}], v[{BR}:{BR+3}], {c}')
        g.pump(1)
    a('s_mov_b32 exec_lo, 1')
    a('s_mov_b32 exec_hi, 1')
    for q in range(8):
        g.ds(f'ds_write_b128 v151, v[{ACC1+4*q}:{ACC1+4*q+3}] offset:{(q//4)*128 + (q%4)*16}')
    a('s_mov_b64 exec, -1')
    stamp(a, 5)
    a(f'v_mul_u32_u24 v16, {YP}, v3')
    a('s_mul_i32 s70, s3, 1792')
    a('v_add_u32 v16, s70, v16')
    a('s_and_b32 s70, s3, 1')
    a('s_lshl_b32 s70, s70, 2')
    a('v_xor_b32 v17, s70, v4')
    a('v_xor_b32 v18, 4, v17')
    a('v_lshl_add_u32 v17, v17, 4, v16')
    a('v_lshl_add_u32 v18, v18, 4, v16')
    a('v_lshrrev_b32 v19, 4, v1')
    a('v_bfe_u32 v20, v1, 1, 1')
    a('v_lshl_add_u32 v20, v19, 1, v20')
    a('v_lshlrev_b32 v20, 7, v20')
    a('v_bfe_u32 v21, v1, 2, 2')
    a('v_lshl_add_u32 v20, v21, 4, v20')
    a('v_and_b32 v21, 1, v1')
    a('v_lshl_add_u32 v20, v21, 3, v20')
    a(f's_mul_i32 s70, s3, {YP}')
    a('v_add_u32 v20, s70, v20')
    a('v_and_b32 v19, 1, v19')
    a('v_lshlrev_b32 v19, 6, v19')
    a('v_add_u32 v21, v20, v19')
    a('v_xor_b32 v19, 64, v19')
    a('v_add_u32 v22, v20, v19')
    a('s_lshr_b32 s70, s4, 4')
    a(f's_mul_i32 s70, s70, 1792')
    a(f's_add_u32 s70, s70, {WS_FL}')
    poll(g, 'YPOLL', 'v2', 's70', (1 << 56) - 1, wide=True)
    stamp(a, 6)
    a('s_mul_i32 s70, s4, 57344')
    a('s_mul_i32 s72, s3, 14336')
    a('s_add_u32 s70, s70, s72')
    a(f's_add_u32 s70, s70, {WS_YB}')
    for i in range(14):
        r = 72 + 4 * i
        g.vmem(f'buffer_load_dwordx4 v[{r}:{r+3}], v2, {WSR}, s70 offen offset:{1024*(i%4)} sc1', f'y{i}')
        if i % 4 == 3: a('s_add_u32 s70, s70, 4096')
    for i in range(14):
        r = 72 + 4 * i
        g.vm.wait(f'y{i}')
        g.ds(f'ds_write_b128 {"v18" if (i>>1)&1 else "v17"}, v[{r}:{r+3}] offset:{128*i}')
    g.barrier()
    for s, Yr in ((0, Y), (1, YB_TMP)):
        for i in range(7):
            g.ds(f'ds_read_b64_tr_b16 v[{Yr+4*i}:{Yr+4*i+1}], v21 offset:{s*4*YP + 1024*i}', 'ytr')
            g.ds(f'ds_read_b64_tr_b16 v[{Yr+4*i+2}:{Yr+4*i+3}], v22 offset:{s*4*YP + 1024*i}', 'ytr')
    stamp(a, 7)
    for layer in range(2):
        g1_op(g, layer, 0)
        g1_op(g, layer, 1)
        g2_op(g, layer, 0)
        g2_op(g, layer, 1)
    if PROF:
        a('s_waitcnt vmcnt(0)')
        stamp(a, 40)
        a('s_memrealtime s[92:93]')
        a('s_waitcnt lgkmcnt(0)')
        a('v_writelane_b32 v7, s94, 62')
        a('v_writelane_b32 v7, s92, 63')
        a('s_lshl_b32 s70, s2, 2')
        a('s_add_u32 s70, s70, s3')
        a('s_lshl_b32 s70, s70, 8')
        a(f's_add_u32 s70, s70, {WS_PROF + 0x10000}')
        a(f'buffer_store_dword v7, v145, {WSR}, s70 offen')
    a.label('MAIN_END')
    a('s_endpgm')


def k1_prep(a):
    b = Asm()
    gen1.PROF = False
    gen1.k1_prep(b)
    L = b.lines
    i = L.index('  s_cmp_ge_u32 s2, 644')
    L[i:i + 2] = ['  s_cmp_ge_u32 s2, 644', '  s_cbranch_scc1 K1_Z']
    j = L.index('K1_END:')
    z = Asm()
    z('s_endpgm')
    z.label('K1_Z')
    z('s_cmp_ge_u32 s2, 651')
    z('s_cbranch_scc1 K1_END')
    z('s_sub_u32 s4, s2, 644')
    z('s_lshl_b32 s4, s4, 12')
    z('v_lshlrev_b32 v1, 4, v0')
    for r in range(4): z(f'v_mov_b32 v{4+r}, 0')
    z('s_waitcnt lgkmcnt(0)')
    srd(z, 40, P_WS, WS_FL, FL_BYTES)
    z('buffer_store_dwordx4 v[4:7], v1, s[40:43], s4 offen')
    L[j:j] = z.lines
    a.lines += L


def main(out):
    a = Asm()
    k1_prep(a)
    main_kernel(a)
    hdr = open(f'cdna_kernels/{NAME}.s.ref').read().split('; Override launch')[0]
    hdr += f"""; @launch kernel=prep_kernel grid=(651,1,1) block=(256,1,1) lds=24576
; @launch kernel=main_kernel grid=(224,1,1) block=(256,1,1) lds={LDS_BYTES}
.amdgcn_target "amdgcn-amd-amdhsa--gfx950"
.text
"""
    tail = '.section .rodata,"a"\n'
    tail += kernel_desc('prep_kernel', 112)
    tail += kernel_desc('main_kernel', 512, sgpr=100, accum=256)
    open(out, 'w').write(hdr + a.text() + tail)


if __name__ == '__main__':
    PROF = '--prof' in sys.argv
    main(sys.argv[1] if len(sys.argv) > 1 else f'cdna_kernels/{NAME}.s')
```

```python
import sys
from collections import deque
from asmlib import *
from gen1 import (NAME, XBYTES, WBYTES, P_Q, P_K, P_V, P_SHK, P_SSMK, P_SSMD, P_W1, P_W2, P_OUT,
                  P_DBG, P_WS, load_args, srd, magic, FC, K2_CB, K2_G, K2_SCR, wg_map)

KNAME = NAME + '_kernel'
WS_KVR = 0x000000
WS_YB = 0x200000
WS_YX = 0x400000
WS_X2 = 0x600000
WS_SP = 0x900000
WS_KF = 0x800000
WS_CF = 0x802000
WS_OF = 0x804000
WS_HB = [0x1000000, 0x1800000]
WS_SIZE = 0x2000000
WS_PROF = 0x2000000
PROF = False
CONV_PUMP = 4

L_W2 = 0
L_R0 = 98304
R_SZ = 28736
L_CS = L_R0 + 2 * R_SZ
L_ST = L_CS + 1024
LDS_BYTES = L_ST + 512
YP = 7184
RING = 14336

WSR = 's[40:43]'
SPIN = 's83'


class Ctr:
    def __init__(self, a, name, maxn):
        self.a, self.name, self.maxn, self.q = a, name, maxn, []

    def issue(self, tag=None): self.q.append(tag)

    def need(self, tag):
        idx = [i for i, t in enumerate(self.q) if t == tag]
        if not idx: return None
        n = len(self.q) - 1 - idx[-1]
        self.q = self.q[idx[-1] + 1:]
        return min(n, self.maxn)

    def wait(self, tag):
        n = self.need(tag)
        if n is not None: self.a(f's_waitcnt {self.name}({n})')

    def wait_all(self):
        self.a(f's_waitcnt {self.name}(0)')
        self.q = []


class G:
    def __init__(self, asm):
        self.asm = asm
        self.vm = Ctr(asm, 'vmcnt', 63)
        self.lg = Ctr(asm, 'lgkmcnt', 15)
        self.bg = deque()
        self.fq = deque()

    def a(self, text): self.asm(text)
    def label(self, n): self.asm.label(n)
    def vmem(self, text, tag=None): self.asm(text); self.vm.issue(tag)
    def ds(self, text, tag=None): self.asm(text); self.lg.issue(tag)
    def vwait(self, tag): self.vm.wait(tag)
    def lwait(self, tag): self.lg.wait(tag)
    def group(self, fn): fn(self)

    def wait2(self, vtag=None, ltag=None):
        parts = []
        for c, t in ((self.vm, vtag), (self.lg, ltag)):
            if t is not None:
                n = c.need(t)
                if n is not None: parts.append(f'{c.name}({n})')
        if parts: self.asm('s_waitcnt ' + ' '.join(parts))

    def barrier(self):
        self.lg.wait_all()
        self.asm('s_barrier')

    def pump(self, n=1):
        for _ in range(n):
            if not self.bg: return
            self.bg.popleft()()

    def fill(self, step, n):
        while n > 0 and self.fq and self.fq[0][0] <= step:
            self.fq.popleft()[1]()
            n -= 1

    def flush(self):
        while self.fq: self.fq.popleft()[1]()

    def add(self, rec, step=0):
        for s, f in rec.items: self.fq.append((max(step, s), f))


class Rec:
    def __init__(self, g): self.g, self.items, self.step = g, [], 0
    def _add(self, f): self.items.append((self.step, f))
    def at(self, step): self.step = step
    def a(self, text): self._add(lambda: self.g.a(text))
    def vmem(self, text, tag=None): self._add(lambda: self.g.vmem(text, tag))
    def ds(self, text, tag=None): self._add(lambda: self.g.ds(text, tag))
    def vwait(self, tag): self._add(lambda: self.g.vwait(tag))
    def lwait(self, tag): self._add(lambda: self.g.lwait(tag))
    def barrier(self): self._add(lambda: self.g.barrier())
    def group(self, fn): self._add(lambda: fn(self.g))


def stamp(e, k):
    if not PROF: return
    def f(g):
        g.a('s_memtime s[100:101]')
        g.lg.wait_all()
        g.a(f'v_writelane_b32 v7, s100, {k}')
    e.group(f)


def w1_reg(ft2, k): return (k * 2 + ft2) * 4


def w2_loc(k, dt):
    if k < 4: return ('a', 224 + k * 8 + dt * 4)
    if k < 16: return ('v', 160 + (k - 4) * 8 + dt * 4)
    return ('l', k - 16)


def reduce8(e, s, t):
    e.a(f'v_add_f32 v{s}, v{s}, v{s} row_ror:8')
    for sw in ('v_permlane16_swap_b32', 'v_permlane32_swap_b32'):
        e.a(f'v_mov_b32 v{t}, v{s}')
        e.a(f'{sw} v{s}, v{t}')
        e.a(f'v_add_f32 v{s}, v{s}, v{t}')


def rnd(e, d, s):
    e.a(f'v_cvt_pk_bf16_f32 v{d}, v{s}, v{s}')
    e.a(f'v_lshlrev_b32 v{d}, 16, v{d}')


def var_to_rinv(e, d, v):
    e.a(f'v_max_f32 v{v}, 0, v{v}')
    rnd(e, v, v)
    e.a(f'v_add_f32 v{v}, 0x3727c5ac, v{v}')
    rnd(e, v, v)
    e.a(f'v_sqrt_f32 v{v}, v{v}')
    rnd(e, v, v)
    e.a(f'v_rcp_f32 v{d}, v{v}')


def poll_issue(e, voff, soff_setup, t, tag, wide=0):
    def f(g):
        for l in soff_setup: g.a(l)
        if wide:
            for i in range(wide):
                g.vmem(f'buffer_load_dwordx4 v[{t+4*i}:{t+4*i+3}], {voff}, {WSR}, s82 offen offset:{896*i} sc1', tag)
        else:
            g.vmem(f'buffer_load_dwordx2 v[{t}:{t+1}], {voff}, {WSR}, s82 offen sc1', tag)
    e.group(f)


def poll_check(e, name, voff, t, tag, wide=0):
    def f(g):
        g.vwait(tag)
        g.label(name)
        n = 2 * wide if wide else 1
        for i in range(n):
            g.a(f'v_xor_b32 v{t+2*i}, s66, v{t+2*i}')
            g.a(f'v_xor_b32 v{t+2*i+1}, s67, v{t+2*i+1}')
        if wide:
            g.a(f'v_or3_b32 v{t}, v{t}, v{t+1}, v{t+2}')
            g.a(f'v_or3_b32 v{t+3}, v{t+3}, v{t+4}, v{t+5}')
            g.a(f'v_or3_b32 v{t}, v{t}, v{t+6}, v{t+7}')
            g.a(f'v_or_b32 v{t}, v{t}, v{t+3}')
        else:
            g.a(f'v_or_b32 v{t}, v{t}, v{t+1}')
        g.a(f'v_cmp_ne_u32 vcc, 0, v{t}')
        g.a(f's_cbranch_vccz {name}_D')
        g.a(f's_add_u32 {SPIN}, {SPIN}, 1')
        g.a(f's_cmp_gt_u32 {SPIN}, 0x40000')
        g.a(f's_cbranch_scc1 {name}_D')
        if wide:
            for i in range(wide):
                g.a(f'buffer_load_dwordx4 v[{t+4*i}:{t+4*i+3}], {voff}, {WSR}, s82 offen offset:{896*i} sc1')
        else:
            g.a(f'buffer_load_dwordx2 v[{t}:{t+1}], {voff}, {WSR}, s82 offen sc1')
        g.a('s_waitcnt vmcnt(0)')
        g.a(f's_branch {name}')
        g.label(name + '_D')
    e.group(f)


def publish(e, tag, soff_setup):
    def f(g):
        g.vwait(tag)
        for l in soff_setup: g.a(l)
        g.a('s_mov_b64 exec, 1')
        g.vmem(f'buffer_store_dwordx2 v[4:5], v0, {WSR}, s81 offen sc1')
        g.a('s_mov_b64 exec, -1')
    e.group(f)


RA, RB = 16, 48
YR = 80
TT = 108
BR = 132
WT = 124
V_YT0, V_YT1, V_W2S = 128, 129, 130
V_Q, V_FL, V_XW, V_STW, V_B, V_RES, V_STR, V_CS, V_C0, V_RED, V_XST, V_OST = range(144, 156)
V_C1 = 3
V_ST = 156


def XR(s): return RA if s == 0 else RB
def ST1(s): return 8 + 4 * s


def ln1_stats(e, s, T):
    X = XR(s)
    mb, rinv = ST1(s), ST1(s) + 2
    acc, tmp, dm, sq = T, T + 1, T + 2, T + 4
    e.a(f'v_dot2_f32_bf16 v{acc}, v{X}, s62, 0')
    e.a(f'v_dot2_f32_bf16 v{tmp}, v{X+1}, s62, 0')
    for p in range(2, 28, 2):
        e.a(f'v_dot2_f32_bf16 v{acc}, v{X+p}, s62, v{acc}')
        e.a(f'v_dot2_f32_bf16 v{tmp}, v{X+p+1}, s62, v{tmp}')
    e.a(f'v_add_f32 v{acc}, v{acc}, v{tmp}')
    reduce8(e, acc, tmp)
    e.a(f'v_mul_f32 v{acc}, s63, v{acc}')
    rnd(e, mb, acc)
    e.a(f'v_sub_f32 v{dm}, v{acc}, v{mb}')
    e.a(f'v_sub_f32 v{mb+1}, 0, v{mb}')
    def d(p): return T + 6 + 2 * (p % 3)
    for p in range(30):
        if p < 28:
            e.a(f'v_dot2_f32_bf16 v{d(p)}, v{X+p}, s60, v{mb+1}')
            e.a(f'v_dot2_f32_bf16 v{d(p)+1}, v{X+p}, s61, v{mb+1}')
        if p >= 2:
            q = p - 2
            c = '0' if q == 0 else f'v[{sq}:{sq+1}]'
            e.a(f'v_pk_fma_f32 v[{sq}:{sq+1}], v[{d(q)}:{d(q)+1}], v[{d(q)}:{d(q)+1}], {c}')
    e.a(f'v_add_f32 v{acc}, v{sq}, v{sq+1}')
    reduce8(e, acc, tmp)
    e.a(f'v_mul_f32 v{dm}, v{dm}, v{dm}')
    e.a(f'v_fma_f32 v{acc}, s63, v{acc}, -v{dm}')
    var_to_rinv(e, rinv, acc)
    e.a(f'v_mul_f32 v{rinv+1}, v{mb+1}, v{rinv}')


def st_loads(e, s):
    SB = TT if s == 0 else 116
    e.a(f's_lshr_b32 s72, s71, 1')
    e.a(f's_add_u32 s72, s72, {WS_SP + s*2*7168}')
    for i in range(7):
        e.vmem(f'buffer_load_dwordx2 v[{SB+2*i}:{SB+2*i+1}], v{V_Q}, {WSR}, s72 offen offset:{512*i} sc1', f'sp{s}')


def ln1_combine(e, s):
    mb, rinv = ST1(s), ST1(s) + 2
    SB = TT if s == 0 else 116
    acc, tmp, q, m2 = (TT + 14, TT + 15, TT + 16, TT + 17) if s == 0 else (130, 131, 76, 77)
    e.vwait(f'sp{s}')
    e.a(f'v_add_f32 v{acc}, v{SB}, v{SB+2}')
    e.a(f'v_add_f32 v{m2}, v{SB+1}, v{SB+3}')
    for i in range(2, 7):
        e.a(f'v_add_f32 v{acc}, v{acc}, v{SB+2*i}')
        e.a(f'v_add_f32 v{m2}, v{m2}, v{SB+2*i+1}')
    reduce8(e, acc, tmp)
    e.a(f'v_mul_f32 v{acc}, s63, v{acc}')
    e.a(f'v_mul_f32 v{tmp}, 0xc1000000, v{acc}')
    for i in range(7): e.a(f'v_add_f32 v{SB+2*i}, v{SB+2*i}, v{tmp}')
    e.a(f'v_mul_f32 v{q}, v{SB}, v{SB}')
    for i in range(1, 7): e.a(f'v_fmac_f32 v{q}, v{SB+2*i}, v{SB+2*i}')
    e.a(f'v_fmac_f32 v{m2}, 0x3e000000, v{q}')
    rnd(e, mb, acc)
    reduce8(e, m2, tmp)
    e.a(f'v_mul_f32 v{m2}, s63, v{m2}')
    var_to_rinv(e, rinv, m2)
    e.a(f'v_mul_f32 v{rinv+1}, v{mb}, v{rinv}')
    e.a(f'v_sub_f32 v{rinv+1}, 0, v{rinv+1}')


def p3(e, layer, s, plain=True, after_group=None):
    X = XR(s)
    mb, rinv = ST1(s), ST1(s) + 2
    nm = f'P3_{layer}{s}'
    if layer == 0:
        def yx(g):
            g.a('s_lshl_b32 s72, s5, 10')
            g.a('s_add_u32 s72, s72, s71')
            g.a(f's_add_u32 s72, s72, {WS_YX + s*4*7168}')
            for i in range(7):
                g.a(f's_cmp_lg_u32 s5, {i}')
                g.a(f's_cbranch_scc1 {nm}_YX{i}')
                g.a(f'buffer_store_dwordx4 v[{YR+4*i}:{YR+4*i+3}], v2, {WSR}, s72 offen sc1')
                g.label(f'{nm}_YX{i}')
            g.vm.issue('yx')
        e.group(yx)
    sa, sb = TT + 16, TT + 17
    for i in range(7):
        t, u = TT, TT + 8
        for p in range(4):
            e.a(f'v_lshlrev_b32 v{t+2*p}, 16, v{X+4*i+p}')
            e.a(f'v_and_b32 v{t+2*p+1}, s64, v{X+4*i+p}')
        for h in range(2):
            for x in range(4): e.a(f'v_fma_f32 v{u+x}, v{t+4*h+x}, v{rinv}, v{rinv+1}')
            for p in range(2):
                e.a(f'v_lshlrev_b32 v{u+4+2*p}, 16, v{YR+4*i+2*h+p}')
                e.a(f'v_and_b32 v{u+4+2*p+1}, s64, v{YR+4*i+2*h+p}')
            for x in range(4): e.a(f'v_fmac_f32 v{t+4*h+x}, v{u+x}, v{u+4+x}')
        for p in range(4):
            e.a(f'v_cvt_pk_bf16_f32 v{X+4*i+p}, v{t+2*p}, v{t+2*p+1}')
        e.ds(f'ds_write_b128 v{V_XW}, v[{X+4*i}:{X+4*i+3}] offset:{s*R_SZ + 4096*i}')
        if after_group: after_group(e, i)
        if plain:
            for x in range(8):
                if i == 0 and x == 0:
                    e.a(f'v_mov_b32 v{sa}, v{t}')
                    e.a(f'v_mul_f32 v{sb}, v{t}, v{t}')
                else:
                    e.a(f'v_add_f32 v{sa}, v{sa}, v{t+x}')
                    e.a(f'v_fmac_f32 v{sb}, v{t+x}, v{t+x}')
        else:
            for p in range(4):
                first = (i == 0 and p == 0)
                e.a(f'v_dot2_f32_bf16 v{sa}, v{X+4*i+p}, s62, {"0" if first else f"v{sa}"}')
                e.a(f'v_dot2_f32_bf16 v{sb}, v{X+4*i+p}, v{X+4*i+p}, {"0" if first else f"v{sb}"}')
    ta, tb = TT + 18, TT + 19
    e.a(f'v_add_f32 v{sa}, v{sa}, v{sa} row_ror:8')
    e.a(f'v_add_f32 v{sb}, v{sb}, v{sb} row_ror:8')
    for sw in ('v_permlane16_swap_b32', 'v_permlane32_swap_b32'):
        e.a(f'v_mov_b32 v{ta}, v{sa}')
        e.a(f'v_mov_b32 v{tb}, v{sb}')
        e.a(f'{sw} v{sa}, v{ta}')
        e.a(f'{sw} v{sb}, v{tb}')
        e.a(f'v_add_f32 v{sa}, v{sa}, v{ta}')
        e.a(f'v_add_f32 v{sb}, v{sb}, v{tb}')
    e.a(f'v_mul_f32 v{sa}, s63, v{sa}')
    e.a(f'v_mul_f32 v{ta}, v{sa}, v{sa}')
    e.a(f'v_fma_f32 v{sb}, s63, v{sb}, -v{ta}')
    var_to_rinv(e, tb, sb)
    rnd(e, sa, sa)
    e.a(f'v_sub_f32 v{ta}, 0, v{sa}')
    def w(g):
        g.a('s_mov_b64 exec, 0xff')
        g.ds(f'ds_write_b64 v{V_STW}, v[{ta}:{tb}] offset:{s*256}')
        g.a('s_mov_b64 exec, -1')
    e.group(w)


def y_tr(e, s):
    for i in range(7):
        e.ds(f'ds_read_b64_tr_b16 v[{YR+4*i}:{YR+4*i+1}], v{V_YT0} offset:{s*4*YP + 1024*i}', 'ytr')
        e.ds(f'ds_read_b64_tr_b16 v[{YR+4*i+2}:{YR+4*i+3}], v{V_YT1} offset:{s*4*YP + 1024*i}', 'ytr')
    e.lwait('ytr')


def x_loads(e, s):
    X = XR(s)
    e.a(f's_add_u32 s72, s71, {WS_X2 + s*4*7168}')
    e.a(f's_add_u32 s74, s71, {WS_X2 + s*4*7168 + 4096}')
    for i in range(7):
        so, off = ('s72', 1024 * i) if i < 4 else ('s74', 1024 * (i - 4))
        e.vmem(f'buffer_load_dwordx4 v[{X+4*i}:{X+4*i+3}], v2, {WSR}, {so} offen offset:{off} sc1', f'x{s}')


def y_loads(e, s):
    e.a(f's_add_u32 s72, s71, {WS_YX + s*4*7168}')
    e.a(f's_add_u32 s74, s71, {WS_YX + s*4*7168 + 4096}')
    for i in range(7):
        so, off = ('s72', 1024 * i) if i < 4 else ('s74', 1024 * (i - 4))
        e.vmem(f'buffer_load_dwordx4 v[{YR+4*i}:{YR+4*i+3}], v2, {WSR}, {so} offen offset:{off} sc1', f'y{s}')


def opflag(op): return op * 32 * 256


def m1(g, layer, s, nfill, bgp=0, bg_from=0):
    ACC = XR(s)
    def rd(k):
        sl = BR + 4 * (k % 3)
        g.ds(f'ds_read_b128 v[{sl}:{sl+3}], v{V_B} offset:{s*R_SZ + 1024*k}', f'b{k}')
    rd(0); rd(1)
    RES = 8 + 4 * s
    g.ds(f'ds_read_b128 v[{RES}:{RES+3}], v{V_RES} offset:{s*R_SZ}')
    g.ds(f'ds_read_b64 v[{V_ST+2*s}:{V_ST+2*s+1}], v{V_STR} offset:{s*256}')
    for k in range(28):
        if k + 2 < 28: rd(k + 2)
        g.lwait(f'b{k}')
        sl = BR + 4 * (k % 3)
        for ft2 in range(2):
            o = ACC + 16 * ft2
            c = f'v[{o}:{o+15}]' if k else '0'
            r = w1_reg(ft2, k)
            g.a(f'v_mfma_f32_32x32x16_bf16 v[{o}:{o+15}], a[{r}:{r+3}], v[{sl}:{sl+3}], {c}')
            g.fill(2 * k + ft2, nfill)
        if k >= bg_from: g.pump(bgp)


def e1(e, layer, s, CT, plain=True, halves=(0, 1)):
    ACC = XR(s)
    mm = V_ST + 2 * s
    e.a(f's_add_u32 s73, s75, {WS_HB[layer] + s*112*1024}')
    for ft2 in halves:
        o = ACC + 16 * ft2
        for hb in range(2):
            for q in range(2):
                e.ds(f'ds_read_b128 v[{CT+4*q}:{CT+4*q+3}], v{V_CS} offset:{ft2*128 + hb*32 + q*16}', 'cs')
            e.lwait('cs')
            for x in range(8): e.a(f'v_fmac_f32 v{o+8*hb+x}, v{CT+x}, v{mm}')
        if plain:
            for x in range(16): e.a(f'v_max_f32 v{o+x}, 0, v{o+x}')
        for p in range(8):
            e.a(f'v_cvt_pk_bf16_f32 v{o+p}, v{o+2*p}, v{o+2*p+1}')
        if not plain:
            for p in range(8):
                e.a(f'v_pk_max_i16 v{o+p}, v{o+p}, 0')
        for hf in range(2):
            r = o + 4 * hf
            e.vmem(f'buffer_store_dwordx4 v[{r}:{r+3}], v2, {WSR}, s73 offen offset:{2048*ft2 + 1024*hf} sc1', f'hst{s}')


HSL = [96 + 4 * i for i in range(7)] + [80, 84, 88, 92, 140]
NSL = len(HSL)


def h_slot(s, k): return HSL[(k + 4 * s) % NSL]


def h_load(e, layer, s, k):
    sl = h_slot(s, k)
    def f(g):
        g.a(f's_add_u32 s70, s77, {WS_HB[layer] + s*112*1024 + 4096*(k//4)}')
        g.vmem(f'buffer_load_dwordx4 v[{sl}:{sl+3}], v2, {WSR}, s70 offen offset:{1024*(k%4)} sc1', f'h{s}_{k}')
    e.group(f)


def m2(g, layer, s, nfill, first_issued, after=None):
    ACC = XR(s)
    for k in range(first_issued, NSL): h_load(g, layer, s, k)
    def rdw(k):
        if k == 24:
            g.a(f'v_add_u32 v{V_C0}, 0x10000, v{V_C0}')
            g.a(f'v_add_u32 v{V_C1}, 0x10000, v{V_C1}')
        for dt in range(2):
            r = WT + 8 * (k % 2) + 4 * dt
            for hh in range(2):
                g.ds(f'ds_read_b64_tr_b16 v[{r+2*hh}:{r+2*hh+1}], v{V_C1 if dt else V_C0} offset:{8192*((k-16)%8) + 1024*hh}', f'w{k}')
    for k in range(28):
        if k == 14: g.vwait('w2l')
        if k in (14, 15): rdw(k + 2)
        g.wait2(f'h{s}_{k}', f'w{k}' if k >= 16 else None)
        sl = h_slot(s, k)
        for dt in range(2):
            o = ACC + 16 * dt
            c = f'v[{o}:{o+15}]' if k else '0'
            kind, r = w2_loc(k, dt)
            if kind == 'l': kind, r = 'v', WT + 8 * (k % 2) + 4 * dt
            g.a(f'v_mfma_f32_32x32x16_bf16 v[{o}:{o+15}], {kind}[{r}:{r+3}], v[{sl}:{sl+3}], {c}')
            g.fill(2 * k + dt, nfill)
        if k + NSL < 28: h_load(g, layer, s, k + NSL)
        elif after: after(k)
        if 16 <= k and k + 2 < 28: rdw(k + 2)
    g.a(f'v_subrev_u32 v{V_C0}, 0x10000, v{V_C0}')
    g.a(f'v_subrev_u32 v{V_C1}, 0x10000, v{V_C1}')


def e2_head(g, layer, s):
    ACC = XR(s)
    nm = f'E2_{layer}{s}'
    done = f'{nm}_RD'
    for w in range(4):
        if w < 3:
            g.a(f's_cmp_lg_u32 s3, {w}')
            g.a(f's_cbranch_scc1 {nm}_R{w+1}')
        for t in range(4):
            if t == w: continue
            slot = (w - t - 1) % 4
            for q in range(2):
                r = ACC + 8 * t + 4 * q
                g.a(f'ds_write_b128 v{V_B}, v[{r}:{r+3}] offset:{s*R_SZ + t*6144 + slot*2048 + q*1024}')
        if w != 0:
            for x in range(8): g.a(f'v_mov_b32 v{ACC+x}, v{ACC+8*w+x}')
        if w < 3:
            g.a(f's_branch {done}')
            g.label(f'{nm}_R{w+1}')
    g.label(done)
    for _ in range(6): g.lg.issue()


def e2_tail(e, layer, s, defer=False):
    ACC = XR(s)
    e.barrier()
    for i in range(6):
        e.ds(f'ds_read_b128 v[{ACC+8+4*i}:{ACC+11+4*i}], v{V_RED} offset:{s*R_SZ + 1024*i}', f'rr{i}')
    r2 = V_ST + 2 * s + 1
    for sl in range(3):
        e.lwait(f'rr{2*sl+1}')
        for p in range(4):
            e.a(f'v_pk_add_f32 v[{ACC+2*p}:{ACC+2*p+1}], v[{ACC+2*p}:{ACC+2*p+1}], v[{ACC+8+8*sl+2*p}:{ACC+9+8*sl+2*p}]')
    for x in range(8): e.a(f'v_mul_f32 v{ACC+x}, v{ACC+x}, v{r2}')
    P = ACC + 8
    for p in range(4): e.a(f'v_cvt_pk_bf16_f32 v{P+p}, v{ACC+2*p}, v{ACC+2*p+1}')
    e.a(f'v_permlane32_swap_b32 v{P}, v{P+2}')
    e.a(f'v_permlane32_swap_b32 v{P+1}, v{P+3}')
    RES = 8 + 4 * s
    for p in range(4):
        e.a(f'v_lshlrev_b32 v{ACC+2*p}, 16, v{P+p}')
        e.a(f'v_and_b32 v{ACC+2*p+1}, s64, v{P+p}')
    for p in range(4):
        e.a(f'v_dot2_f32_bf16 v{ACC+2*p}, v{RES+p}, s60, v{ACC+2*p}')
        e.a(f'v_dot2_f32_bf16 v{ACC+2*p+1}, v{RES+p}, s61, v{ACC+2*p+1}')
    for p in range(4): e.a(f'v_cvt_pk_bf16_f32 v{P+20+p}, v{ACC+2*p}, v{ACC+2*p+1}')
    Q = P + 20
    if layer == 0:
        z = ACC + 8
        e.a(f'v_pk_add_f32 v[{z}:{z+1}], v[{ACC}:{ACC+1}], v[{ACC+2}:{ACC+3}]')
        e.a(f'v_pk_add_f32 v[{z+2}:{z+3}], v[{ACC+4}:{ACC+5}], v[{ACC+6}:{ACC+7}]')
        e.a(f'v_pk_add_f32 v[{z}:{z+1}], v[{z}:{z+1}], v[{z+2}:{z+3}]')
        e.a(f'v_add_f32 v{z}, v{z}, v{z+1}')
        e.a(f'v_mul_f32 v{z+2}, 0xbe000000, v{z}')
        for p in range(4):
            e.a(f'v_pk_add_f32 v[{ACC+2*p}:{ACC+2*p+1}], v[{ACC+2*p}:{ACC+2*p+1}], v[{z+2}:{z+3}] op_sel_hi:[1,0]')
        e.a(f'v_pk_mul_f32 v[{z+4}:{z+5}], v[{ACC}:{ACC+1}], v[{ACC}:{ACC+1}]')
        for p in range(1, 4):
            e.a(f'v_pk_fma_f32 v[{z+4}:{z+5}], v[{ACC+2*p}:{ACC+2*p+1}], v[{ACC+2*p}:{ACC+2*p+1}], v[{z+4}:{z+5}]')
        e.a(f'v_add_f32 v{z+1}, v{z+4}, v{z+5}')
        e.a(f'v_lshrrev_b32 v{z+2}, 1, v{V_XST}')
        if not defer: e2_stores(e, s)
    else:
        e.a(f's_add_u32 s73, s79, {s*4*7168}')
        e.vmem(f'buffer_store_dwordx4 v[{Q}:{Q+3}], v{V_OST}, s[52:55], s73 offen')


def e2_stores(e, s):
    ACC = XR(s)
    Q, z = ACC + 28, ACC + 8
    def f(g):
        g.a(f's_add_u32 s73, s78, {WS_X2 + s*4*7168}')
        g.vmem(f'buffer_store_dwordx4 v[{Q}:{Q+3}], v{V_XST}, {WSR}, s73 offen sc1', f'xst{s}')
        g.a('s_lshr_b32 s73, s78, 1')
        g.a(f's_add_u32 s73, s73, {WS_SP + s*2*7168}')
        g.vmem(f'buffer_store_dwordx2 v[{z}:{z+1}], v{z+2}, {WSR}, s73 offen sc1', f'xst{s}')
    e.group(f)


F_W1S, F_W2S, F_T1, F_T2, F_FB, F_VF, F_VG, F_N15, F_G4, F_T16 = 240, 241, 242, 244, 246, 247, 248, 249, 250, 251


def front(g):
    a = g.a
    MK, AC, PR, KO, TAP, KR, VR, HH, FT = 80, 112, 120, 128, 136, 152, 172, 180, 196
    a('v_and_b32 v1, 63, v0')
    a('v_lshrrev_b32 v2, 6, v0')
    a('v_readfirstlane_b32 s3, v2')
    a(f's_mul_hi_u32 s6, s2, {magic(7)}')
    a('s_mul_i32 s7, s6, 7')
    a('s_sub_u32 s7, s2, s7')
    a('v_and_b32 v252, 7, v0')
    a('v_lshrrev_b32 v253, 3, v0')
    a('s_lshl_b32 s8, s6, 6')
    a('v_lshl_add_u32 v254, v253, 1, s8')
    a('s_movk_i32 s8, 896')
    a('v_mul_lo_u32 v254, v254, s8')
    a('s_lshl_b32 s8, s7, 7')
    a('v_lshl_add_u32 v255, v252, 4, s8')
    a('v_add_u32 v254, v254, v255')
    a('v_add_u32 v44, -896, v254')
    a('v_add_u32 v45, -1792, v254')
    a('v_add_u32 v46, -2688, v254')
    a('v_lshlrev_b32 v255, 2, v255')
    a('v_lshlrev_b32 v2, 4, v1')
    a('s_waitcnt lgkmcnt(0)')
    srd(a, 88, P_SHK, 0, 448 * 8)
    srd(a, 56, P_K, 0, XBYTES)
    srd(a, 84, P_V, 0, XBYTES)
    for i in range(4):
        g.vmem(f'buffer_load_dwordx4 v[{TAP+4*i}:{TAP+4*i+3}], v255, s[88:91], 0 offen offset:{16*i}', 'tap')
    g.vmem(f'buffer_load_dwordx4 v[{KR}:{KR+3}], v46, s[56:59], 0 offen', 'k')
    g.vmem(f'buffer_load_dwordx4 v[{KR+4}:{KR+7}], v45, s[56:59], 0 offen', 'k')
    g.vmem(f'buffer_load_dwordx4 v[{KR+8}:{KR+11}], v44, s[56:59], 0 offen', 'k')
    g.vmem(f'buffer_load_dwordx4 v[{KR+12}:{KR+15}], v254, s[56:59], 0 offen', 'k')
    g.vmem(f'buffer_load_dwordx4 v[{KR+16}:{KR+19}], v254, s[56:59], 0 offen offset:896', 'k')
    g.vmem(f'buffer_load_dwordx4 v[{VR}:{VR+3}], v254, s[84:87], 0 offen', 'v')
    g.vmem(f'buffer_load_dwordx4 v[{VR+4}:{VR+7}], v254, s[84:87], 0 offen offset:896', 'v')
    srd(a, 88, P_DBG, 0, 256)
    srd(a, 40, P_WS, 0, WS_SIZE + (0x100000 if PROF else 0))
    a('v_mov_b32 v0, 0')
    a('s_or_b32 s8, s2, s3')
    a('s_cmp_lg_u32 s8, 0')
    a('s_cbranch_scc1 NONCE_SKIP')
    a('s_memrealtime s[8:9]')
    a('s_waitcnt lgkmcnt(0)')
    a('s_or_b32 s8, s8, 1')
    a('v_mov_b32 v4, s8')
    a('buffer_store_dword v4, v0, s[88:91], 0 offen sc1')
    g.label('NONCE_SKIP')
    a('s_lshr_b32 s8, s3, 1')
    a('s_and_b32 s9, s3, 1')
    a('s_lshl_b32 s10, s2, 1')
    a('s_add_u32 s10, s10, s8')
    a('s_lshl_b32 s11, s10, 12')
    a(f's_mul_i32 s12, s8, {K2_CB}')
    a('s_lshl_b32 s13, s9, 11')
    a(f'v_add_u32 v{F_T16}, s13, v2')
    a(f'v_add_u32 v8, -16, v{F_T16}')
    srd(a, 44, P_SSMK, 's11', 4096)
    a('s_lshl_b32 s14, s2, 2')
    a('s_load_dword s15, s[26:27], s14')
    a('s_lshl_b32 s68, s7, 2')
    a('s_add_u32 s68, s68, s3')
    a('s_sub_u32 s69, 31, s6')
    a('s_lshl_b32 s80, s68, 16')
    a('s_lshl_b32 s70, s69, 7')
    a('s_add_u32 s80, s80, s70')
    a('s_lshl_b32 s81, s68, 5')
    a('s_add_u32 s81, s81, s69')
    a('s_lshl_b32 s81, s81, 3')
    a(f's_add_u32 s81, s81, {WS_KF}')
    a(f'v_lshrrev_b32 v{F_G4}, 4, v1')
    a('v_bfe_u32 v10, v1, 2, 2')
    a('v_and_b32 v11, 3, v1')
    a(f'v_lshl_add_u32 v12, v{F_G4}, 3, v10')
    a('v_mul_u32_u24 v12, 144, v12')
    a('v_lshl_add_u32 v12, v11, 3, v12')
    a('s_lshl_b32 s13, s3, 5')
    a(f's_add_u32 s13, s13, {K2_SCR}')
    a('v_add_u32 v12, s13, v12')
    a(f'v_and_b32 v{F_N15}, 15, v1')
    a(f'v_mul_u32_u24 v13, 144, v{F_N15}')
    a(f'v_lshl_add_u32 v13, v{F_G4}, 4, v13')
    a(f's_mul_i32 s13, s3, {RING}')
    a(f's_add_u32 s13, s13, {L_R0}')
    a('v_add_u32 v13, s13, v13')
    a('v_lshrrev_b32 v46, 3, v1')
    a('v_and_b32 v47, 7, v1')
    a('v_mul_u32_u24 v44, 144, v46')
    a('v_lshl_add_u32 v44, v47, 4, v44')
    a('v_add_u32 v76, s13, v44')
    a('v_lshlrev_b32 v46, 12, v46')
    a('v_lshl_add_u32 v77, v47, 4, v46')
    a('v_mov_b32 v254, v76')
    a('v_mov_b32 v255, v77')
    a('v_lshlrev_b32 v14, 1, v253')
    a('v_sub_u32 v14, 62, v14')
    a('v_mul_u32_u24 v14, 144, v14')
    a('v_lshl_add_u32 v14, v252, 4, v14')
    a(f'v_add_u32 v14, {K2_SCR}, v14')
    wg_map(a)
    a('v_and_b32 v3, 7, v1')
    a('v_lshrrev_b32 v6, 3, v1')
    a('v_xor_b32 v15, v3, v6')
    a('v_lshlrev_b32 v15, 4, v15')
    a('s_movk_i32 s13, 896')
    a('v_mad_u32_u24 v15, v6, s13, v15')
    a('s_lshl_b32 s71, s4, 3')
    a('s_add_u32 s71, s71, s3')
    a('s_mul_i32 s71, s71, 7168')
    a(f's_add_u32 s72, s71, {4*7168}')
    srd(a, 48, P_Q, 0, XBYTES)
    a('s_mov_b32 s60, 0x00003f80')
    a('s_mov_b32 s61, 0x3f800000')
    a('s_mov_b32 s62, 0x3f803f80')
    a('s_mov_b32 s63, 0x3b124925')
    a('s_mov_b32 s64, 0xffff0000')
    a('s_mov_b32 s65, 0xffff')
    a(f's_mov_b32 {SPIN}, 0')
    srd(a, 92, P_W1, 0, WBYTES)
    srd(a, 96, P_W2, 0, WBYTES)
    a('v_bfe_u32 v76, v1, 4, 1')
    a('v_lshlrev_b32 v76, 2, v76')
    a('v_xor_b32 v76, v76, v3')
    a('v_lshlrev_b32 v76, 4, v76')
    a('s_movk_i32 s13, 3584')
    a(f'v_mad_u32_u24 v{F_W1S}, v6, s13, v76')
    a('s_movk_i32 s13, 896')
    a(f'v_mad_u32_u24 v{F_W2S}, v6, s13, v76')
    a('s_lshl_b32 s56, s5, 9')
    a('s_lshl_b32 s13, s3, 7')
    a('s_add_u32 s56, s56, s13')
    a(f's_mul_i32 s57, s3, {448*896}')
    a('s_lshl_b32 s13, s5, 7')
    a('s_add_u32 s57, s57, s13')
    a(f's_mul_i32 s58, s3, {RING}')
    a(f's_add_u32 s58, s58, {L_R0}')
    a('s_lshl_b32 s59, s3, 11')
    a(f'v_and_b32 v76, 1, v{F_G4}')
    a('v_lshlrev_b32 v76, 5, v76')
    a('v_lshl_add_u32 v76, v11, 3, v76')
    a('v_lshl_add_u32 v76, v10, 7, v76')
    a('v_lshrrev_b32 v77, 1, v10')
    a('v_lshlrev_b32 v77, 6, v77')
    a('v_xor_b32 v78, 64, v77')
    a(f'v_lshrrev_b32 v79, 1, v{F_G4}')
    a('v_lshl_add_u32 v44, v79, 10, v76')
    a('v_lshl_add_u32 v45, v79, 9, v76')
    a(f'v_add3_u32 v{F_T1}, v44, v77, s58')
    a(f'v_add3_u32 v{F_T1+1}, v44, v78, s58')
    a(f'v_add3_u32 v{F_T2}, v45, v77, s58')
    a(f'v_add3_u32 v{F_T2+1}, v45, v78, s58')

    a('v_xor_b32 v78, v3, v6')
    a('v_lshl_add_u32 v78, v3, 3, v78')
    a('v_lshl_add_u32 v78, v78, 4, s58')
    g.w2s, g.w2t, g.fixw = F_W2S, F_T2, 252
    a('v_add_u32 v79, s58, v2')
    def qraw(s):
        for gi in range(7 * s, 7 * s + 7):
            r = XR(gi // 7) + 4 * (gi % 7)
            g.vmem(f'buffer_load_dwordx4 v[{r}:{r+3}], v15, s[48:51], s{71+gi//7} offen offset:{128*(gi%7)}', f'q{gi//7}')
    def qrd(s):
        g.vwait(f'q{s}')
        for i in range(7):
            r = XR(s) + 4 * i
            g.ds(f'ds_write_b128 v79, v[{r}:{r+3}] offset:{(7+i)*1024}', 'qw')
        g.lwait('qw')
        for i in range(7):
            r = XR(s) + 4 * i
            g.ds(f'ds_read_b128 v[{r}:{r+3}], v78 offset:{(7+i)*1024}', 'qr')
    g.qrd, g.qraw = qrd, qraw
    def w1raw(k, x):
        def f():
            r = w1_reg(x, k)
            g.vmem(f'buffer_load_dwordx4 a[{r}:{r+3}], v{F_W1S}, s[92:95], s56 offen', f'r1_{k}')
            a('s_add_u32 s56, s56, 28672')
        return f
    def w2raw(k, x):
        def f():
            kd, r = w2_loc(k, x)
            a(f's_add_u32 s13, s57, {7168*(2*k + x)}')
            g.vmem(f'buffer_load_dwordx4 {kd}[{r}:{r+3}], v{g.w2s}, s[96:99], s13 offen', f'r2_{k}')
        return f
    def w2l(k):
        def f():
            for blk in range(2):
                a(f's_add_u32 m0, s59, {(k-16)*8192 + blk*1024}')
                a(f's_add_u32 s13, s57, {7168*(2*k + blk)}')
                g.vmem(f'buffer_load_dwordx4 v{g.w2s}, s[96:99], s13 offen lds', 'w2l')
        return f
    def fix_w(mat, k, slot):
        def f():
            g.vwait(f'r{mat}_{k}')
            g.lwait(f'fx{slot}')
            for x in range(2):
                kd, r = ('a', w1_reg(x, k)) if mat == 1 else w2_loc(k, x)
                wa = 'v79' if mat == 1 else f'v{g.fixw}'
                g.ds(f'ds_write_b128 {wa}, {kd}[{r}:{r+3}] offset:{slot*2048 + 1024*x}', f'fw{mat}_{k}')
        return f
    def fix_r(mat, k, slot):
        def f():
            g.lwait(f'fw{mat}_{k}')
            for x in range(2):
                for hh in range(2):
                    if mat == 1:
                        r = w1_reg(x, k) + 2 * hh
                        g.ds(f'ds_read_b64_tr_b16 a[{r}:{r+1}], v{F_T1+x} offset:{slot*2048 + 512*hh}', f'fx{slot}')
                    else:
                        kd, r = w2_loc(k, x)
                        r += 2 * hh
                        g.ds(f'ds_read_b64_tr_b16 {kd}[{r}:{r+1}], v{g.w2t+x} offset:{slot*2048 + 1024*hh}', f'fx{slot}')
        return f
    g.fix_ok = lambda: (57 - len(g.fixq)) // 2 + 1 <= (56 - len(g.bg) - 12) // 2
    g.w1raw, g.w2raw, g.w2l, g.fix_w, g.fix_r = w1raw, w2raw, w2l, fix_w, fix_r
    for k in range(28):
        for x in range(2): g.bg.append(w1raw(k, x))
    g.fixq = deque()
    g.fix_w_done, g.fix_r_done = 0, 0
    def fw(k):
        def f(): fix_w(1, k, k % 3)(); g.fix_w_done = k + 1
        return f
    def fr(k):
        def f(): fix_r(1, k, k % 3)(); g.fix_r_done = k + 1
        return f
    for k in range(30):
        if k < 28: g.fixq.append(fw(k))
        if k >= 2: g.fixq.append(fr(k - 2))
    g.fix_ok = lambda: g.fix_w_done + 1 <= (56 - len(g.bg) - 12) // 2
    g.vwait('tap')
    for e in range(8):
        A, B = TAP + 2 * e, TAP + 2 * e + 1
        if e % 2 == 0:
            a(f'v_and_b32 v{MK+e}, s65, v{A}')
            a(f'v_lshrrev_b32 v{MK+8+e}, 16, v{A}')
            a(f'v_and_b32 v{MK+16+e}, s65, v{B}')
            a(f'v_lshrrev_b32 v{MK+24+e}, 16, v{B}')
        else:
            a(f'v_lshlrev_b32 v{MK+e}, 16, v{A}')
            a(f'v_and_b32 v{MK+8+e}, s64, v{A}')
            a(f'v_lshlrev_b32 v{MK+16+e}, 16, v{B}')
            a(f'v_and_b32 v{MK+24+e}, s64, v{B}')
    g.vwait('v')
    stamp(g, 1)
    g.vmem(f'buffer_load_dwordx4 v[{HH}:{HH+3}], v8, s[44:47], 0 offen', 'h0')
    g.vmem(f'buffer_load_dwordx4 v[{HH+4}:{HH+7}], v{F_T16}, s[44:47], 0 offen', 'h0')
    g.vmem(f'buffer_load_dwordx4 v[{HH+8}:{HH+11}], v{F_T16}, s[44:47], 0 offen offset:1008', 'h1')
    g.vmem(f'buffer_load_dwordx4 v[{HH+12}:{HH+15}], v{F_T16}, s[44:47], 0 offen offset:1024', 'h1')
    g.vmem('buffer_load_dword v252, v0, s[88:91], 0 offen sc1', 'nonce')
    for rr in range(2):
        K3, K2, K1, K0 = [KR + 4 * (rr + i) for i in range(4)]
        for e in range(8): a(f'v_dot2_f32_bf16 v{AC+e}, v{K3+e//2}, v{MK+24+e}, 0')
        for e in range(8): a(f'v_dot2_f32_bf16 v{PR+e}, v{K2+e//2}, v{MK+16+e}, 0')
        for Kx, m in ((K1, 8), (K0, 0), (None, None)):
            for e in range(8): a(f'v_cvt_pk_bf16_f32 v{AC+e}, v{AC+e}, v{PR+e}')
            if Kx is not None:
                for e in range(8): a(f'v_dot2_f32_bf16 v{PR+e}, v{Kx+e//2}, v{MK+m+e}, 0')
            for e in range(8): a(f'v_dot2_f32_bf16 v{AC+e}, v{AC+e}, s62, 0')
        for p in range(4): a(f'v_cvt_pk_bf16_f32 v{PR+p}, v{AC+2*p}, v{AC+2*p+1}')
        if rr == 0: g.vwait('v')
        for p in range(4):
            a(f'v_and_b32 v{AC+2*p}, s65, v{VR+4*rr+p}')
            a(f'v_and_b32 v{AC+2*p+1}, s64, v{VR+4*rr+p}')
        for e in range(8): a(f'v_dot2_f32_bf16 v{AC+e}, v{PR+e//2}, v{AC+e}, 0')
        for p in range(4): a(f'v_cvt_pk_bf16_f32 v{KO+4*rr+p}, v{AC+2*p}, v{AC+2*p+1}')
        g.ds(f'ds_write_b128 v14, v[{KO+4*rr}:{KO+4*rr+3}] offset:{144*(1-rr)}')
        if rr == 0:
            a('s_lshl_b32 s84, s2, 2')
            a('s_add_u32 s84, s84, s3')
            a('s_lshl_b32 s14, s84, 11')
            a('s_mul_i32 s84, s84, 1792')
            g.vmem(f'buffer_load_dwordx4 v[{TAP}:{TAP+3}], v2, s[92:95], s84 offen')
            g.vmem(f'buffer_load_dwordx4 v[{TAP+4}:{TAP+7}], v2, s[92:95], s84 offen offset:768')
            g.vmem(f'buffer_load_dwordx4 v[{TAP+8}:{TAP+11}], v2, s[48:51], s14 offen')
            g.vmem(f'buffer_load_dwordx4 v[{TAP+12}:{TAP+15}], v2, s[48:51], s14 offen offset:1024')
    g.barrier()
    for u in range(2):
        for hh in range(2):
            g.ds(f'ds_read_b64_tr_b16 v[{KO+4*u+2*hh}:{KO+4*u+2*hh+1}], v12 offset:{(32*u+4*hh)*144}', f'kt{u}')
    for u in range(2):
        g.lwait(f'kt{u}')
        g.ds(f'ds_write_b128 v13, v[{KO+4*u}:{KO+4*u+3}] offset:{64*u}', 'k2w')
    g.lwait('k2w')
    for u in range(2):
        g.ds(f'ds_read_b128 v[{KO+4*u}:{KO+4*u+3}], v254 offset:{8*144*u}', f'k2r{u}')
    a('s_add_u32 s13, s80, 32768')
    for u in range(2):
        g.lwait(f'k2r{u}')
        g.vmem(f'buffer_store_dwordx4 v[{KO+4*u}:{KO+4*u+3}], v255, {WSR}, {"s13" if u else "s80"} offen sc1', 'kst')
    stamp(g, 2)
    g.vwait('nonce')
    g.label('NONCE_P')
    a('v_readfirstlane_b32 s66, v252')
    a('s_cmp_lg_u32 s66, 0')
    a('s_cbranch_scc1 NONCE_D')
    a(f's_add_u32 {SPIN}, {SPIN}, 1')
    a(f's_cmp_gt_u32 {SPIN}, 0x40000')
    a('s_cbranch_scc1 NONCE_D')
    a('buffer_load_dword v252, v0, s[88:91], 0 offen sc1')
    a('s_waitcnt vmcnt(0)')
    a('s_branch NONCE_P')
    g.label('NONCE_D')
    a('s_not_b32 s67, s66')
    a('v_mov_b32 v4, s66')
    a('v_mov_b32 v5, s67')
    stamp(g, 24)
    a(f'v_add_u32 v{F_FB}, s12, v{F_T16}')
    for i in range(4): a(f'v_mov_b32 v{236+i}, 0')
    a(f'v_lshlrev_b32 v{F_VF}, 2, v3')
    a('s_mov_b32 s14, 0x1cb88541')
    a(f'v_lshrrev_b32 v{F_VF}, v{F_VF}, s14')
    a(f'v_and_b32 v{F_VF}, 15, v{F_VF}')
    a('v_mul_u32_u24 v252, 272, v3')
    a(f'v_add_u32 v{F_VF}, v{F_VF}, v252')
    a(f'v_lshl_add_u32 v{F_VF}, v{F_VF}, 4, s12')
    a('s_cmp_eq_u32 s9, 0')
    a('s_cbranch_scc0 CV_Z1')
    a('s_mov_b64 exec, 0xff')
    a(f'ds_write_b128 v{F_VF}, v[236:239]')
    a('s_mov_b64 exec, -1')
    a('s_branch CV_Z2')
    g.label('CV_Z1')
    a('v_add_u32 v252, s12, v2')
    a(f'ds_write_b128 v252, v[236:239] offset:{K2_G+4096}')
    g.label('CV_Z2')
    g.lg.issue()
    a('v_bfe_u32 v252, v1, 3, 1')
    a(f'v_add_u32 v252, v252, v{F_G4}')
    a(f'v_lshl_add_u32 v{F_VF}, v252, 4, v{F_VF}')
    a('s_lshl_b32 s14, s9, 8')
    a(f'v_add_u32 v{F_VF}, s14, v{F_VF}')
    a(f'v_lshlrev_b32 v{F_VG}, 5, v{F_N15}')
    a(f'v_lshlrev_b32 v252, 4, v{F_G4}')
    a(f'v_sub_u32 v{F_VG}, v252, v{F_VG}')
    a('s_add_u32 s14, s14, s12')
    a(f's_add_u32 s14, s14, {K2_G+480}')
    a(f'v_add_u32 v{F_VG}, s14, v{F_VG}')
    for p in range(2):
        d = HH + 8 * p
        t = FT + 20 * p
        g.vwait(f'h{p}')
        for k in range(6): a(f'v_mov_b32 v{t+k}, v{d+1+k}')
        for k in range(6): a(f'v_alignbyte_b32 v{t+6+k}, v{d+k+1}, v{d+k}, 2')
        for k in range(6): a(f'v_alignbyte_b32 v{t+12+k}, v{d+k+2}, v{d+k+1}, 2')
        src = {1: t + 6, 2: t, 3: t + 12, 4: d + 2, 5: t + 8, 6: t + 2, 7: t + 14, 8: d + 4}
        for r in range(1, 9):
            off = ((r - 1) * 272 + FC[r - 1] + 1) * 16 + 1024 * p
            g.ds(f'ds_write_b128 v{F_FB}, v[{src[r]}:{src[r]+3}] offset:{off}')
            if r in (3, 6) : g.pump(2)
    stamp(g, 25)
    publish(g, 'kst', [])
    stamp(g, 3)
    qraw(0)
    a('v_min_u32 v255, 15, v1')
    a('v_lshlrev_b32 v255, 3, v255')
    setup = ['s_lshr_b32 s82, s10, 4', 's_lshl_b32 s82, s82, 8', 's_lshl_b32 s14, s9, 7', 's_add_u32 s82, s82, s14',
             f's_add_u32 s82, s82, {WS_KF}']
    poll_issue(g, 'v255', setup, KO, 'kf')
    g.pump(10)
    g.qrd(0)
    stamp(g, 26)
    poll_check(g, 'KFP', 'v255', KO, 'kf')
    stamp(g, 4)
    g.vmem(f'buffer_load_dwordx4 v[{KO}:{KO+3}], v{F_T16}, {WSR}, s11 offen sc1', 'kv0')
    g.vmem(f'buffer_load_dwordx4 v[{KO+4}:{KO+7}], v{F_T16}, {WSR}, s11 offen offset:1024 sc1', 'kv1')
    qraw(1)
    g.lwait('qr')
    r = Rec(g); ln1_stats(r, 0, 80)
    for i, (_, f) in enumerate(r.items):
        f()
        if i % 20 == 19: g.pump(1)
        if i % 10 == 4 and g.fix_ok(): g.fixq.popleft()()
    stamp(g, 27)
    g.vwait('kv0')
    g.ds(f'ds_write_b128 v{F_FB}, v[{KO}:{KO+3}] offset:{K2_G}')
    g.vwait('kv1')
    g.ds(f'ds_write_b128 v{F_FB}, v[{KO+4}:{KO+7}] offset:{K2_G+1024}')
    g.barrier()
    stamp(g, 5)


def conv(g):
    a = g.a
    ACC = 80
    def Fr(b, s): return 112 + 64 * b + 4 * s
    def Gr(b, t): return 144 + 64 * b + 4 * t
    def reads(qq):
        b = qq & 1
        L = []
        for t in range(8):
            L.append((f'ds_read_b128 v[{Fr(b,t)}:{Fr(b,t)+3}], v{F_VF} offset:{512*t+64*qq}', f'c{qq}_{t}'))
            L.append((f'ds_read_b128 v[{Gr(b,t)}:{Gr(b,t)+3}], v{F_VG} offset:{512*(7-t)+64*qq}', f'c{qq}_{t}'))
        return L
    for l, tg in reads(0): g.ds(l, tg)
    g.vmem('buffer_load_dwordx4 v[44:47], v2, s[96:99], s84 offen')
    g.vmem('buffer_load_dwordx4 v[252:255], v2, s[96:99], s84 offen offset:768', 'pt2')
    started = set()
    nm = 0
    for qq in range(4):
        b = qq & 1
        nxt = reads(qq + 1) if qq < 3 else []
        for m in range(8):
            pairs = [(s, t) for s in range(m + 1) for t in range(m + 1) if max(s, t) == m and s + t <= 7]
            g.lwait(f'c{qq}_{m}')
            for (s, t) in pairs:
                o = ACC + 4 * (s + t)
                c = f'v[{o}:{o+3}]' if (s + t) in started else '0'
                started.add(s + t)
                a(f'v_mfma_f32_16x16x32_bf16 v[{o}:{o+3}], v[{Fr(b,s)}:{Fr(b,s)+3}], v[{Gr(b,t)}:{Gr(b,t)+3}], {c}')
                nm += 1
                if nxt and m >= 2:
                    l, tg = nxt.pop(0); g.ds(l, tg)
                if nm % CONV_PUMP == 0: g.pump(1)
                if nm % 3 == 2 and g.fixq and g.fix_ok(): g.fixq.popleft()()
        for l, tg in nxt: g.ds(l, tg)
    stamp(g, 6)
    g.vwait('pt2')
    a('s_lshl_b32 s14, s3, 12')
    a(f's_add_u32 s14, s14, {K2_SCR}')
    a('v_add_u32 v44, s14, v2')
    a('s_xor_b32 s14, s3, 1')
    a('s_lshl_b32 s14, s14, 12')
    a(f's_add_u32 s14, s14, {K2_SCR}')
    a('v_add_u32 v45, s14, v2')
    a('s_cmp_eq_u32 s9, 0')
    a('s_cbranch_scc0 CV_R1')
    for j in range(4):
        a(f'ds_write_b128 v44, v[{ACC+16+4*j}:{ACC+19+4*j}] offset:{1024*j}')
    a('s_branch CV_R2')
    g.label('CV_R1')
    for j in range(4):
        a(f'ds_write_b128 v44, v[{ACC+4*j}:{ACC+3+4*j}] offset:{1024*j}')
    for j in range(16):
        a(f'v_mov_b32 v{ACC+j}, v{ACC+16+j}')
    g.label('CV_R2')
    a(f'v_lshlrev_b32 v46, 5, v{F_N15}')
    a(f'v_lshl_add_u32 v46, v{F_G4}, 3, v46')
    a('s_lshl_b32 s14, s9, 11')
    a(f's_sub_u32 s14, {K2_G + 4088 - 3*512}, s14')
    a('s_add_u32 s14, s14, s12')
    a('v_sub_u32 v46, s14, v46')
    for j in range(4):
        a(f'ds_read_b64 v[{128+2*j}:{129+2*j}], v46 offset:{(3-j)*512}')
    a('s_lshl_b32 s14, s15, 16')
    a('s_and_b32 s15, s15, 0xffff0000')
    a('s_cmp_eq_u32 s8, 0')
    a('s_cselect_b32 s15, s14, s15')
    g.barrier()
    for j in range(4):
        g.ds(f'ds_read_b128 v[{112+4*j}:{115+4*j}], v45 offset:{1024*j}', f'r{j}')
    a('s_lshl_b32 s14, s9, 11')
    a('s_add_u32 s14, s14, s12')
    a(f'v_lshlrev_b32 v46, 5, v{F_N15}')
    a(f'v_lshl_add_u32 v46, v{F_G4}, 3, v46')
    a('v_add_u32 v46, s14, v46')
    a('v_add_u32 v44, s14, v2')
    a('s_lshl_b32 s14, s9, 4')
    a('v_add_u32 v47, s14, v6')
    a('v_mul_u32_u24 v47, 448, v47')
    a('v_add_u32 v47, s10, v47')
    a('v_lshlrev_b32 v47, 7, v47')
    a('v_lshl_add_u32 v47, v3, 4, v47')
    for j in range(4):
        g.lwait(f'r{j}')
        for r in range(4): a(f'v_add_f32 v{ACC+4*j+r}, v{ACC+4*j+r}, v{112+4*j+r}')
        k0, k1 = 128 + 2 * j, 129 + 2 * j
        a(f'v_and_b32 v144, s64, v{k1}')
        a(f'v_lshlrev_b32 v145, 16, v{k1}')
        a(f'v_and_b32 v146, s64, v{k0}')
        a(f'v_lshlrev_b32 v147, 16, v{k0}')
        for r in range(4): a(f'v_mul_f32 v{144+r}, s15, v{144+r}')
        for r in range(4): a(f'v_cvt_pk_bf16_f32 v{144+r}, v{144+r}, v{ACC+4*j+r}')
        for r in range(4): a(f'v_dot2_f32_bf16 v{144+r}, v{144+r}, s62, 0')
        a(f'v_cvt_pk_bf16_f32 v{148+2*j}, v144, v145')
        a(f'v_cvt_pk_bf16_f32 v{149+2*j}, v146, v147')
        g.ds(f'ds_write_b64 v46, v[{148+2*j}:{149+2*j}] offset:{512*j}', 'y3w')
    g.lwait('y3w')
    for u in range(2):
        g.ds(f'ds_read_b128 v[{112+4*u}:{115+4*u}], v44 offset:{1024*u}', f'y3r{u}')
    for u in range(2):
        g.lwait(f'y3r{u}')
        a(f's_mov_b32 s14, {WS_YB + u*8*448*128}')
        g.vmem(f'buffer_store_dwordx4 v[{112+4*u}:{115+4*u}], v47, {WSR}, s14 offen sc1', 'yst')


def setup_gemm(g):
    a = g.a
    a(f'v_min_u32 v{V_FL}, 27, v1')
    a(f'v_lshlrev_b32 v{V_FL}, 3, v{V_FL}')
    a(f'v_lshrrev_b32 v{V_XW}, 1, v6')
    a(f'v_lshlrev_b32 v{V_XW}, 10, v{V_XW}')
    a(f'v_and_b32 v{V_STW}, 1, v6')
    a(f'v_lshl_add_u32 v{V_XW}, v{V_STW}, 9, v{V_XW}')
    a(f'v_lshl_add_u32 v{V_XW}, v3, 4, v{V_XW}')
    a('s_lshl_b32 s70, s3, 7')
    a(f's_add_u32 s70, s70, {L_R0}')
    a(f'v_add_u32 v{V_XW}, s70, v{V_XW}')
    a('s_lshl_b32 s70, s3, 6')
    a(f's_add_u32 s70, s70, {L_ST}')
    a(f'v_lshl_add_u32 v{V_STW}, v3, 3, s70')
    a(f'v_add_u32 v{V_B}, {L_R0}, v2')
    a('s_lshl_b32 s70, s5, 2')
    a('s_add_u32 s70, s70, s3')
    a('s_lshl_b32 s70, s70, 10')
    a(f'v_add_u32 v{V_RES}, s70, v{V_B}')
    a(f'v_and_b32 v{V_STR}, 31, v1')
    a(f'v_mul_u32_u24 v{V_OST}, 896, v{V_STR}')
    a(f'v_lshlrev_b32 v{V_STR}, 3, v{V_STR}')
    a(f'v_add_u32 v{V_STR}, {L_ST}, v{V_STR}')
    a(f'v_lshrrev_b32 v{V_Q}, 5, v1')
    a('s_lshl_b32 s70, s3, 8')
    a(f's_add_u32 s70, s70, {L_CS}')
    a(f'v_lshl_add_u32 v{V_CS}, v{V_Q}, 6, s70')
    a('s_mul_i32 s70, s3, 6144')
    a(f'v_add_u32 v{V_RED}, s70, v{V_B}')
    a(f'v_bfe_u32 v{V_XST}, v1, 3, 2')
    a(f'v_mul_u32_u24 v{V_XST}, 7168, v{V_XST}')
    a(f'v_lshl_add_u32 v{V_XST}, v3, 4, v{V_XST}')
    a('s_lshl_b32 s70, s3, 1')
    a(f'v_add_u32 v{V_Q}, s70, v{V_Q}')
    a(f'v_lshl_add_u32 v{V_XST}, v{V_Q}, 7, v{V_XST}')
    a(f'v_lshl_add_u32 v{V_OST}, v{V_Q}, 4, v{V_OST}')
    a('s_lshl_b32 s69, s4, 8')
    a(f's_add_u32 s69, s69, {WS_OF}')
    a('s_lshl_b32 s76, s5, 2')
    a('s_add_u32 s76, s76, s3')
    a('s_lshl_b32 s75, s76, 12')
    a('s_lshl_b32 s76, s76, 3')
    a('s_add_u32 s76, s76, s69')
    a(f's_mul_i32 s77, s4, {224*1024}')
    a('s_add_u32 s75, s75, s77')
    a(f's_mul_i32 s70, s3, {28*1024}')
    a('s_add_u32 s77, s77, s70')
    a('s_mul_i32 s78, s4, 57344')
    a('s_lshl_b32 s70, s5, 7')
    a('s_add_u32 s79, s78, s70')
    a('s_lshl_b32 s70, s5, 10')
    a('s_add_u32 s78, s78, s70')
    srd(a, 52, P_OUT, 0, XBYTES)
    a(f'v_mul_u32_u24 v76, {YP}, v3')
    a('s_mul_i32 s70, s3, 1792')
    a('v_add_u32 v76, s70, v76')
    a('s_and_b32 s70, s3, 1')
    a('s_lshl_b32 s70, s70, 2')
    a('v_xor_b32 v77, s70, v6')
    a('v_xor_b32 v78, 4, v77')
    a('v_lshl_add_u32 v77, v77, 4, v76')
    a('v_lshl_add_u32 v78, v78, 4, v76')
    a('v_lshrrev_b32 v44, 4, v1')
    a('v_bfe_u32 v45, v1, 1, 1')
    a('v_lshl_add_u32 v45, v44, 1, v45')
    a('v_lshlrev_b32 v45, 7, v45')
    a('v_bfe_u32 v46, v1, 2, 2')
    a('v_lshl_add_u32 v45, v46, 4, v45')
    a('v_and_b32 v46, 1, v1')
    a('v_lshl_add_u32 v45, v46, 3, v45')
    a(f's_mul_i32 s70, s3, {YP}')
    a('v_add_u32 v45, s70, v45')
    a('v_and_b32 v44, 1, v44')
    a('v_lshlrev_b32 v44, 6, v44')
    a(f'v_add_u32 v{V_YT0}, v45, v44')
    a('v_xor_b32 v44, 64, v44')
    a(f'v_add_u32 v{V_YT1}, v45, v44')
    a('v_min_u32 v47, 55, v1')
    a('v_lshlrev_b32 v47, 4, v47')
    a(f'v_lshlrev_b32 v{V_Q}, 3, v1')
    a(f'v_mov_b32 v{V_C0}, v136')
    a(f'v_mov_b32 v{V_C1}, v137')


def pub_op(op): return [f's_add_u32 s81, s76, {opflag(op)}']
def poll_op(op): return [f's_add_u32 s82, s69, {opflag(op)}']


def main_kernel(asm):
    g = G(asm)
    a = g.a
    asm(kernel_header(KNAME))
    if PROF:
        a('s_memrealtime s[100:101]')
        a('v_mov_b32 v7, 0')
        a('s_waitcnt lgkmcnt(0)')
        a('v_writelane_b32 v7, s100, 62')
        a('s_getreg_b32 s100, hwreg(HW_REG_XCC_ID)')
        a('v_writelane_b32 v7, s100, 61')
        a('s_getreg_b32 s100, hwreg(HW_REG_HW_ID)')
        a('v_writelane_b32 v7, s100, 60')
        stamp(g, 0)
    load_args(asm)
    a('s_cmp_ge_u32 s2, 224')
    a('s_cbranch_scc1 MAIN_END')
    front(g)
    conv(g)
    stamp(g, 11)
    setup_late = True
    g.vwait('yst')
    g.barrier()
    a('s_mul_i32 s81, s9, 224')
    a('s_add_u32 s81, s81, s2')
    a('s_lshl_b32 s81, s81, 3')
    a(f's_add_u32 s81, s81, {WS_CF}')
    publish(g, 'yst', [])
    stamp(g, 7)
    g.pump(100)
    g.qrd(1)
    a(f'v_mov_b32 v{V_W2S}, v{F_W2S}')
    a('s_sub_u32 s70, s59, s58')
    a(f'v_add_u32 v136, s70, v{F_T2}')
    a(f'v_add_u32 v137, s70, v{F_T2+1}')
    setup_gemm(g)
    g.w2s, g.w2t, g.fixw = V_W2S, 126, 131
    cf_setup = ['s_lshr_b32 s82, s4, 4', 's_mul_i32 s82, s82, 1792', f's_add_u32 s82, s82, {WS_CF}']
    g.lwait('qr')
    r = Rec(g); ln1_stats(r, 1, 80)
    for i, (_, f) in enumerate(r.items):
        f()
        if i == 40: poll_issue(g, 'v47', cf_setup, 116, 'cf', wide=2)
        if i % 6 == 5 and g.fixq: g.fixq.popleft()()
    while g.fixq: g.fixq.popleft()()
    stamp(g, 8)
    poll_check(g, 'CFP', 'v47', 116, 'cf', wide=2)
    stamp(g, 9)
    a('s_mul_i32 s70, s4, 57344')
    a('s_mul_i32 s72, s3, 14336')
    a('s_add_u32 s70, s70, s72')
    a(f's_add_u32 s70, s70, {WS_YB}')
    YL = [80 + 4 * i for i in range(12)] + [132, 140]
    for i in range(14):
        r = YL[i]
        g.vmem(f'buffer_load_dwordx4 v[{r}:{r+3}], v2, {WSR}, s70 offen offset:{1024*(i%4)} sc1', f'yl{i}')
        if i % 4 == 3: a('s_add_u32 s70, s70, 4096')
    for k in range(12):
        for x in range(2): g.bg.append(g.w2raw(k, x))
    for k in (25, 26, 27): g.bg.append(g.w2l(k))
    g.pump(4)
    for i in range(14):
        r = YL[i]
        g.vwait(f'yl{i}')
        g.ds(f'ds_write_b128 {"v78" if (i>>1)&1 else "v77"}, v[{r}:{r+3}] offset:{128*i}')
    g.barrier()
    stamp(g, 10)
    y_tr(g, 0)
    for i in range(4): a(f'v_mov_b32 v{132+i}, s62')
    r = Rec(g); p3(r, 0, 0); g.add(r)
    for k in range(28):
        for ft2 in range(2):
            o = 224 + 16 * ft2
            c = f'v[{o}:{o+15}]' if k else '0'
            rr = w1_reg(ft2, k)
            a(f'v_mfma_f32_32x32x16_bf16 v[{o}:{o+15}], a[{rr}:{rr+3}], v[132:135], {c}')
            g.fill(99, 7)
        g.pump(1)
    g.flush()
    a('s_mov_b32 exec_lo, 1')
    a('s_mov_b32 exec_hi, 1')
    for q in range(8):
        g.ds(f'ds_write_b128 v{V_CS}, v[{224+4*q}:{227+4*q}] offset:{(q//4)*128 + (q%4)*16}')
    a('s_mov_b64 exec, -1')
    for layer in range(2):
        sb = 12 + 16 * layer
        g.barrier()
        stamp(g, sb)
        r = Rec(g)
        if layer == 0:
            y_tr(r, 1)
            r.barrier()
            for k in range(12, 16):
                for x in range(2): g.bg.append(g.w2raw(k, x))
            for k in range(16, 24): g.bg.append(g.w2l(k))
        else:
            r.vwait('x1')
        p3(r, layer, 1)
        g.add(r)
        m1(g, layer, 0, 7, bgp=1 if layer == 0 else 0, bg_from=4)
        stamp(g, sb + 1)
        g.flush()
        g.barrier()
        stamp(g, sb + 2)
        if layer == 0:
            a(f'v_add_u32 v126, {8*8192}, v{V_C0}')
            a(f'v_add_u32 v127, {8*8192}, v{V_C1}')
            a(f's_add_u32 s70, s59, {8*8192}')
            a('v_add_u32 v131, s70, v2')
            for k in range(16):
                g.bg.append(g.fix_w(2, k, 0))
                g.bg.append(g.fix_r(2, k, 0))
            def last():
                g.lwait('fx0')
                g.w2l(24)()
            g.bg.append(last)
        r = Rec(g)
        e1(r, layer, 0, 80)
        r.at(38); publish(r, 'hst0', pub_op(4 * layer))
        r.at(48); poll_issue(r, f'v{V_FL}', poll_op(4 * layer), 124, 'pf')
        g.add(r)
        m1(g, layer, 1, 6, bgp=2 if layer == 0 else 0)
        stamp(g, sb + 3)
        g.flush()
        g.pump(100)
        poll_check(g, f'PH{layer}0', f'v{V_FL}', 124, 'pf')
        stamp(g, sb + 4)
        e1(g, layer, 1, WT, plain=False)
        r = Rec(g)
        publish(r, 'hst1', pub_op(4 * layer + 1))
        r.at(36); poll_issue(r, f'v{V_FL}', poll_op(4 * layer + 1), 76, 'pf')
        g.add(r)
        m2(g, layer, 0, 5, 0)
        stamp(g, sb + 5)
        g.flush()
        e2_head(g, layer, 0)
        poll_check(g, f'PH{layer}1', f'v{V_FL}', 76, 'pf')
        if layer == 1:
            for k in range(NSL): h_load(g, layer, 1, k)
        e2_tail(g, layer, 0)
        stamp(g, sb + 6)
        r = Rec(g)
        if layer == 0:
            publish(r, 'xst0', pub_op(2))
            r.at(34); poll_issue(r, f'v{V_FL}', poll_op(2), 44, 'pf')
            r.at(50); poll_check(r, 'PX0', f'v{V_FL}', 44, 'pf')
            x_loads(r, 0)
        g.add(r)
        m2(g, layer, 1, 5, NSL if layer == 1 else 0)
        stamp(g, sb + 7)
        g.flush()
        e2_head(g, layer, 1)
        if layer == 0:
            st_loads(g, 0)
            y_loads(g, 0)
        e2_tail(g, layer, 1)
        stamp(g, sb + 8)
        if layer == 0:
            ln1_combine(g, 0)
            g.vwait('y0')
            stamp(g, sb + 9)
            def yb(e, i):
                if i < 4: return
                for ii in (range(5) if i == 4 else [i]):
                    def f(g, ii=ii):
                        g.a(f's_add_u32 s72, s71, {WS_YX + 4*7168 + 1024*ii}')
                        g.vmem(f'buffer_load_dwordx4 v[{YR+4*ii}:{YR+4*ii+3}], v2, {WSR}, s72 offen sc1', 'y1')
                    e.group(f)
            r = Rec(g); p3(r, 1, 0, plain=False, after_group=yb)
            for i, (_, f) in enumerate(r.items):
                f()
                if i == 150: publish(g, 'xst1', pub_op(3))
                if i == 260: poll_issue(g, f'v{V_FL}', poll_op(3), 76, 'pf')
            stamp(g, sb + 10)
            poll_check(g, 'PX1', f'v{V_FL}', 76, 'pf')
            st_loads(g, 1)
            x_loads(g, 1)
            ln1_combine(g, 1)
    if PROF:
        a('s_waitcnt vmcnt(0)')
        stamp(g, 40)
        a('s_memrealtime s[100:101]')
        a('s_waitcnt lgkmcnt(0)')
        a('v_writelane_b32 v7, s100, 63')
        a('s_lshl_b32 s70, s2, 2')
        a('s_add_u32 s70, s70, s3')
        a('s_lshl_b32 s70, s70, 8')
        a(f's_add_u32 s70, s70, {WS_PROF + 0x10000}')
        a('v_lshlrev_b32 v16, 2, v1')
        a(f'buffer_store_dword v7, v16, {WSR}, s70 offen')
    g.label('MAIN_END')
    a('s_endpgm')


def main(out):
    asm = Asm()
    main_kernel(asm)
    hdr = open(f'cdna_kernels/{NAME}.s.ref').read().split('; Override launch')[0]
    hdr += f"""; @launch grid=(224,1,1) block=(256,1,1) lds={LDS_BYTES}
.amdgcn_target "amdgcn-amd-amdhsa--gfx950"
.text
"""
    tail = '.section .rodata,"a"\n' + kernel_desc(KNAME, 512, sgpr=102, accum=256)
    open(out, 'w').write(hdr + asm.text() + tail)


if __name__ == '__main__':
    PROF = '--prof' in sys.argv
    main(sys.argv[1] if len(sys.argv) > 1 and not sys.argv[1].startswith('--') else f'cdna_kernels/{NAME}.s')
```

```python
import sys
import gen4
from gen4 import *

CODEPF = '--nopf' not in sys.argv
WS_W1F = 0xA00000
WS_W2F = 0xC00000
WS_XQ = 0xE00000
WS_SQ = 0x980000
PRE_SCR = 9216
PRE_LDS = PRE_SCR + 4 * 8192


def nonce_publish(g, tag):
    a = g.a
    a('s_or_b32 s8, s2, s3')
    a('s_cmp_lg_u32 s8, 0')
    a(f's_cbranch_scc1 {tag}_SKIP')
    a('s_memrealtime s[8:9]')
    a('s_waitcnt lgkmcnt(0)')
    a('s_or_b32 s8, s8, 1')
    a('v_mov_b32 v4, s8')
    a('buffer_store_dword v4, v0, s[88:91], 0 offen sc1')
    g.label(f'{tag}_SKIP')


def nonce_get(g, tag, t):
    a = g.a
    g.vwait('nonce')
    g.label(f'{tag}_P')
    a(f'v_readfirstlane_b32 s66, v{t}')
    a('s_cmp_lg_u32 s66, 0')
    a(f's_cbranch_scc1 {tag}_D')
    a(f's_add_u32 {SPIN}, {SPIN}, 1')
    a(f's_cmp_gt_u32 {SPIN}, 0x40000')
    a(f's_cbranch_scc1 {tag}_D')
    a(f'buffer_load_dword v{t}, v0, s[88:91], 0 offen sc1')
    a('s_waitcnt vmcnt(0)')
    a(f's_branch {tag}_P')
    g.label(f'{tag}_D')
    a('s_not_b32 s67, s66')
    a('v_mov_b32 v4, s66')
    a('v_mov_b32 v5, s67')


def consts(a):
    a('s_mov_b32 s60, 0x00003f80')
    a('s_mov_b32 s61, 0x3f800000')
    a('s_mov_b32 s62, 0x3f803f80')
    a('s_mov_b32 s63, 0x3b124925')
    a('s_mov_b32 s64, 0xffff0000')
    a('s_mov_b32 s65, 0xffff')
    a(f's_mov_b32 {SPIN}, 0')


def prof_begin(g):
    if not gen4.PROF: return
    a = g.a
    a('s_memrealtime s[100:101]')
    a('v_mov_b32 v7, 0')
    a('s_waitcnt lgkmcnt(0)')
    a('v_writelane_b32 v7, s100, 62')
    stamp(g, 0)


def prof_end(g, region):
    if not gen4.PROF: return
    a = g.a
    a('s_waitcnt vmcnt(0)')
    stamp(g, 40)
    a('s_memrealtime s[100:101]')
    a('s_waitcnt lgkmcnt(0)')
    a('v_writelane_b32 v7, s100, 63')
    a('s_lshl_b32 s70, s2, 2')
    a('s_add_u32 s70, s70, s3')
    a('s_lshl_b32 s70, s70, 8')
    a(f's_add_u32 s70, s70, {WS_PROF + region}')
    a('v_lshlrev_b32 v16, 2, v1')
    a(f'buffer_store_dword v7, v16, {WSR}, s70 offen')


def pre_kernel(asm):
    g = G(asm)
    a = g.a
    asm(kernel_header('pre_kernel'))
    prof_begin(g)
    load_args(asm)
    a('s_cmp_ge_u32 s2, 224')
    a('s_cbranch_scc1 PRE_END')
    MK, AC, PR, KO, TAP, KR, VR, HH, FT = 80, 112, 120, 128, 136, 152, 172, 180, 196
    a('v_and_b32 v1, 63, v0')
    a('v_lshrrev_b32 v2, 6, v0')
    a('v_readfirstlane_b32 s3, v2')
    a(f's_mul_hi_u32 s6, s2, {magic(7)}')
    a('s_mul_i32 s7, s6, 7')
    a('s_sub_u32 s7, s2, s7')
    a('v_and_b32 v252, 7, v0')
    a('v_lshrrev_b32 v253, 3, v0')
    a('s_lshl_b32 s8, s6, 6')
    a('v_lshl_add_u32 v254, v253, 1, s8')
    a('s_movk_i32 s8, 896')
    a('v_mul_lo_u32 v254, v254, s8')
    a('s_lshl_b32 s8, s7, 7')
    a('v_lshl_add_u32 v255, v252, 4, s8')
    a('v_add_u32 v254, v254, v255')
    a('v_add_u32 v44, -896, v254')
    a('v_add_u32 v45, -1792, v254')
    a('v_add_u32 v46, -2688, v254')
    a('v_lshlrev_b32 v255, 2, v255')
    a('v_lshlrev_b32 v2, 4, v1')
    a('s_waitcnt lgkmcnt(0)')
    srd(a, 88, P_SHK, 0, 448 * 8)
    srd(a, 56, P_K, 0, XBYTES)
    srd(a, 84, P_V, 0, XBYTES)
    for i in range(4):
        g.vmem(f'buffer_load_dwordx4 v[{TAP+4*i}:{TAP+4*i+3}], v255, s[88:91], 0 offen offset:{16*i}', 'tap')
    g.vmem(f'buffer_load_dwordx4 v[{KR}:{KR+3}], v46, s[56:59], 0 offen', 'k')
    g.vmem(f'buffer_load_dwordx4 v[{KR+4}:{KR+7}], v45, s[56:59], 0 offen', 'k')
    g.vmem(f'buffer_load_dwordx4 v[{KR+8}:{KR+11}], v44, s[56:59], 0 offen', 'k')
    g.vmem(f'buffer_load_dwordx4 v[{KR+12}:{KR+15}], v254, s[56:59], 0 offen', 'k')
    g.vmem(f'buffer_load_dwordx4 v[{KR+16}:{KR+19}], v254, s[56:59], 0 offen offset:896', 'k')
    g.vmem(f'buffer_load_dwordx4 v[{VR}:{VR+3}], v254, s[84:87], 0 offen', 'v')
    g.vmem(f'buffer_load_dwordx4 v[{VR+4}:{VR+7}], v254, s[84:87], 0 offen offset:896', 'v')
    srd(a, 40, P_WS, 0, WS_SIZE + (0x100000 if gen4.PROF else 0))
    a('v_mov_b32 v0, 0')
    a('s_lshl_b32 s68, s7, 2')
    a('s_add_u32 s68, s68, s3')
    a('s_sub_u32 s69, 31, s6')
    a('s_lshl_b32 s80, s68, 16')
    a('s_lshl_b32 s70, s69, 7')
    a('s_add_u32 s80, s80, s70')
    a('s_lshl_b32 s81, s68, 5')
    a('s_add_u32 s81, s81, s69')
    a('s_lshl_b32 s81, s81, 3')
    a(f's_add_u32 s81, s81, {WS_KF}')
    a(f'v_lshrrev_b32 v{F_G4}, 4, v1')
    a('v_bfe_u32 v48, v1, 2, 2')
    a('v_and_b32 v49, 3, v1')
    a(f'v_lshl_add_u32 v50, v{F_G4}, 3, v48')
    a('v_mul_u32_u24 v50, 144, v50')
    a('v_lshl_add_u32 v50, v49, 3, v50')
    a('s_lshl_b32 s13, s3, 5')
    a(f's_add_u32 s13, s13, {0}')
    a('v_add_u32 v50, s13, v50')
    a(f'v_and_b32 v{F_N15}, 15, v1')
    a('s_lshl_b32 s58, s3, 13')
    a(f's_add_u32 s58, s58, {PRE_SCR}')
    a(f'v_mul_u32_u24 v51, 144, v{F_N15}')
    a(f'v_lshl_add_u32 v51, v{F_G4}, 4, v51')
    a('v_add_u32 v51, s58, v51')
    a('v_and_b32 v3, 7, v1')
    a('v_lshrrev_b32 v6, 3, v1')
    a('v_mul_u32_u24 v52, 144, v6')
    a('v_lshl_add_u32 v52, v3, 4, v52')
    a('v_add_u32 v52, s58, v52')
    a('v_lshlrev_b32 v53, 12, v6')
    a('v_lshl_add_u32 v53, v3, 4, v53')
    a('v_lshlrev_b32 v54, 1, v253')
    a('v_sub_u32 v54, 62, v54')
    a('v_mul_u32_u24 v54, 144, v54')
    a('v_lshl_add_u32 v54, v252, 4, v54')
    a(f'v_add_u32 v54, {0}, v54')
    consts(a)
    srd(a, 92, P_W1, 0, WBYTES)
    srd(a, 96, P_W2, 0, WBYTES)
    srd(a, 48, P_Q, 0, XBYTES)
    a('s_lshl_b32 s84, s2, 2')
    a('s_add_u32 s84, s84, s3')
    a('v_bfe_u32 v55, v1, 4, 1')
    a('v_lshlrev_b32 v55, 2, v55')
    a('v_xor_b32 v55, v55, v3')
    a('v_lshlrev_b32 v55, 4, v55')
    a('s_movk_i32 s13, 3584')
    a('v_mad_u32_u24 v56, v6, s13, v55')
    a('s_movk_i32 s13, 896')
    a('v_mad_u32_u24 v57, v6, s13, v55')
    a(f's_mul_hi_u32 s72, s84, {magic(28)}')
    a('s_mul_i32 s73, s72, 28')
    a('s_sub_u32 s73, s84, s73')
    a(f's_mul_i32 s74, s72, {16*3584}')
    a('s_lshl_b32 s13, s73, 7')
    a('s_add_u32 s74, s74, s13')
    a('s_mul_i32 s75, s73, 56')
    a('s_add_u32 s75, s75, s72')
    a('s_lshl_b32 s75, s75, 10')
    a(f's_add_u32 s75, s75, {WS_W1F}')
    a(f's_mul_hi_u32 s72, s84, {magic(7)}')
    a('s_mul_i32 s73, s72, 7')
    a('s_sub_u32 s73, s84, s73')
    a(f's_mul_i32 s76, s72, {16*896}')
    a('s_lshl_b32 s13, s73, 7')
    a('s_add_u32 s76, s76, s13')
    a('s_mul_i32 s77, s73, 224')
    a('s_add_u32 s77, s77, s72')
    a('s_lshl_b32 s77, s77, 10')
    a(f's_add_u32 s77, s77, {WS_W2F}')
    a(f'v_and_b32 v58, 1, v{F_G4}')
    a('v_lshlrev_b32 v58, 5, v58')
    a('v_lshl_add_u32 v58, v49, 3, v58')
    a('v_lshl_add_u32 v58, v48, 7, v58')
    a('v_lshrrev_b32 v59, 1, v48')
    a('v_lshlrev_b32 v59, 6, v59')
    a('v_xor_b32 v60, 64, v59')
    a(f'v_lshrrev_b32 v61, 1, v{F_G4}')
    a('v_lshl_add_u32 v62, v61, 10, v58')
    a('v_lshl_add_u32 v63, v61, 9, v58')
    a('v_add3_u32 v64, v62, v59, s58')
    a('v_add3_u32 v65, v62, v60, s58')
    a('v_add3_u32 v66, v63, v59, s58')
    a('v_add3_u32 v67, v63, v60, s58')
    a('v_add_u32 v68, s58, v2')
    a('v_xor_b32 v69, v3, v6')
    a('v_lshlrev_b32 v70, 4, v69')
    a('s_movk_i32 s13, 896')
    a('v_mad_u32_u24 v70, v6, s13, v70')
    a('v_lshl_add_u32 v69, v3, 3, v69')
    a('v_lshl_add_u32 v69, v69, 4, s58')
    WR = 72 if False else 216
    a(f's_add_u32 s13, s74, {8*3584}')
    g.vmem(f'buffer_load_dwordx4 v[{WR}:{WR+3}], v56, s[92:95], s74 offen', 'wr')
    g.vmem(f'buffer_load_dwordx4 v[{WR+4}:{WR+7}], v56, s[92:95], s13 offen', 'wr')
    a(f's_add_u32 s13, s76, {8*896}')
    g.vmem(f'buffer_load_dwordx4 v[{WR+8}:{WR+11}], v57, s[96:99], s76 offen', 'wr')
    g.vmem(f'buffer_load_dwordx4 v[{WR+12}:{WR+15}], v57, s[96:99], s13 offen', 'wr')
    a('s_sub_u32 s72, s84, 640')
    a('s_mul_i32 s73, s72, 7168')
    a('s_cmp_lt_u32 s84, 640')
    a('s_cselect_b32 s73, 0x7ff00000, s73')
    for i in range(7):
        g.vmem(f'buffer_load_dwordx4 v[{16+4*i}:{19+4*i}], v70, s[48:51], s73 offen offset:{128*i}')
    g.vwait('tap')
    for e in range(8):
        A, B = TAP + 2 * e, TAP + 2 * e + 1
        if e % 2 == 0:
            a(f'v_and_b32 v{MK+e}, s65, v{A}')
            a(f'v_lshrrev_b32 v{MK+8+e}, 16, v{A}')
            a(f'v_and_b32 v{MK+16+e}, s65, v{B}')
            a(f'v_lshrrev_b32 v{MK+24+e}, 16, v{B}')
        else:
            a(f'v_lshlrev_b32 v{MK+e}, 16, v{A}')
            a(f'v_and_b32 v{MK+8+e}, s64, v{A}')
            a(f'v_lshlrev_b32 v{MK+16+e}, 16, v{B}')
            a(f'v_and_b32 v{MK+24+e}, s64, v{B}')
    g.vwait('v')
    stamp(g, 1)
    for rr in range(2):
        K3, K2, K1, K0 = [KR + 4 * (rr + i) for i in range(4)]
        for e in range(8): a(f'v_dot2_f32_bf16 v{AC+e}, v{K3+e//2}, v{MK+24+e}, 0')
        for e in range(8): a(f'v_dot2_f32_bf16 v{PR+e}, v{K2+e//2}, v{MK+16+e}, 0')
        for Kx, m in ((K1, 8), (K0, 0), (None, None)):
            for e in range(8): a(f'v_cvt_pk_bf16_f32 v{AC+e}, v{AC+e}, v{PR+e}')
            if Kx is not None:
                for e in range(8): a(f'v_dot2_f32_bf16 v{PR+e}, v{Kx+e//2}, v{MK+m+e}, 0')
            for e in range(8): a(f'v_dot2_f32_bf16 v{AC+e}, v{AC+e}, s62, 0')
        for p in range(4): a(f'v_cvt_pk_bf16_f32 v{PR+p}, v{AC+2*p}, v{AC+2*p+1}')
        for p in range(4):
            a(f'v_and_b32 v{AC+2*p}, s65, v{VR+4*rr+p}')
            a(f'v_and_b32 v{AC+2*p+1}, s64, v{VR+4*rr+p}')
        for e in range(8): a(f'v_dot2_f32_bf16 v{AC+e}, v{PR+e//2}, v{AC+e}, 0')
        for p in range(4): a(f'v_cvt_pk_bf16_f32 v{KO+4*rr+p}, v{AC+2*p}, v{AC+2*p+1}')
        g.ds(f'ds_write_b128 v54, v[{KO+4*rr}:{KO+4*rr+3}] offset:{144*(1-rr)}')
    g.barrier()
    for u in range(2):
        for hh in range(2):
            g.ds(f'ds_read_b64_tr_b16 v[{KO+4*u+2*hh}:{KO+4*u+2*hh+1}], v50 offset:{(32*u+4*hh)*144}', f'kt{u}')
    for u in range(2):
        g.lwait(f'kt{u}')
        g.ds(f'ds_write_b128 v51, v[{KO+4*u}:{KO+4*u+3}] offset:{64*u}', 'k2w')
    g.lwait('k2w')
    for u in range(2):
        g.ds(f'ds_read_b128 v[{KO+4*u}:{KO+4*u+3}], v52 offset:{8*144*u}', f'k2r{u}')
    a('s_add_u32 s13, s80, 32768')
    for u in range(2):
        g.lwait(f'k2r{u}')
        g.vmem(f'buffer_store_dwordx4 v[{KO+4*u}:{KO+4*u+3}], v53, {WSR}, {"s13" if u else "s80"} offen', 'kst')
    stamp(g, 2)
    g.vwait('wr')
    for i in range(4):
        g.ds(f'ds_write_b128 v68, v[{WR+4*i}:{WR+4*i+3}] offset:{1024*i}', 'ww')
    g.lwait('ww')
    for x in range(2):
        for hh in range(2):
            g.ds(f'ds_read_b64_tr_b16 v[{WR+4*x+2*hh}:{WR+4*x+2*hh+1}], v{64+x} offset:{512*hh}', 'wt')
            g.ds(f'ds_read_b64_tr_b16 v[{WR+8+4*x+2*hh}:{WR+8+4*x+2*hh+1}], v{66+x} offset:{2048+1024*hh}', 'wt')
    a('v_min_u32 v255, 15, v1')
    a('v_lshlrev_b32 v255, 3, v255')
    g.lwait('wt')
    a('s_cmp_ge_u32 s84, 784')
    a('s_cbranch_scc1 PRE_NOW')
    a(f's_add_u32 s13, s75, {28*1024}')
    a(f'buffer_store_dwordx4 v[{WR}:{WR+3}], v2, {WSR}, s75 offen')
    a(f'buffer_store_dwordx4 v[{WR+4}:{WR+7}], v2, {WSR}, s13 offen')
    a(f's_add_u32 s13, s77, {112*1024}')
    a(f'buffer_store_dwordx4 v[{WR+8}:{WR+11}], v2, {WSR}, s77 offen')
    a(f'buffer_store_dwordx4 v[{WR+12}:{WR+15}], v2, {WSR}, s13 offen')
    g.label('PRE_NOW')
    a('s_waitcnt vmcnt(2)')
    a('s_cmp_lt_u32 s84, 640')
    a('s_cbranch_scc1 PRE_NOQ2')
    for i in range(7): a(f'ds_write_b128 v68, v[{16+4*i}:{19+4*i}] offset:{1024*i}')
    a('s_waitcnt lgkmcnt(0)')
    for i in range(7): a(f'ds_read_b128 v[{16+4*i}:{19+4*i}], v69 offset:{1024*i}')
    a('s_waitcnt lgkmcnt(0)')
    a(f's_add_u32 s73, s73, {WS_XQ}')
    a('s_add_u32 s74, s73, 4096')
    for i in range(7):
        so, off = ('s73', 1024 * i) if i < 4 else ('s74', 1024 * (i - 4))
        a(f'buffer_store_dwordx4 v[{16+4*i}:{19+4*i}], v2, {WSR}, {so} offen offset:{off}')
    ln1_stats(g, 0, 80)
    a('s_lshl_b32 s72, s72, 6')
    a(f's_add_u32 s72, s72, {WS_SQ}')
    a('v_lshlrev_b32 v80, 3, v3')
    a('s_mov_b64 exec, 0xff')
    a(f'buffer_store_dwordx2 v[10:11], v80, {WSR}, s72 offen')
    a('s_mov_b64 exec, -1')
    a('s_waitcnt vmcnt(8)')
    g.label('PRE_NOQ2')
    prof_end(g, 0x60000)
    g.label('PRE_END')
    a('s_endpgm')


def m1_jit(g, nfill):
    s = 0
    ACC = XR(s)
    def rd(k):
        sl = BR + 4 * (k % 2)
        g.ds(f'ds_read_b128 v[{sl}:{sl+3}], v{V_B} offset:{1024*k}', f'b{k}')
    rd(0)
    g.ds(f'ds_read_b128 v[8:11], v{V_RES}')
    g.ds(f'ds_read_b64 v[{V_ST}:{V_ST+1}], v{V_STR}')
    for i in range(4): g.a(f'v_mov_b32 v{BR+8+i}, s62')
    for k in range(28):
        if k + 1 < 28: rd(k + 1)
        g.wait2(f'w1_{k}', f'b{k}')
        sl = BR + 4 * (k % 2)
        for ft2 in range(2):
            r = w1_reg(ft2, k)
            for o, bb in ((ACC + 16 * ft2, sl), (224 + 16 * ft2, BR + 8)):
                c = f'v[{o}:{o+15}]' if k else '0'
                g.a(f'v_mfma_f32_32x32x16_bf16 v[{o}:{o+15}], a[{r}:{r+3}], v[{bb}:{bb+3}], {c}')
                g.fill(4 * k, nfill)
            g.pump(1)


def m1f(g, layer, s, bgp=0, bg_from=0):
    ACC = XR(s)
    def rd(n):
        sl = BR + 4 * (n % 3)
        g.ds(f'ds_read_b128 v[{sl}:{sl+3}], v{V_B} offset:{s*R_SZ + 1024*(n%28)}', f'b{n}')
    rd(0); rd(1)
    RES = 8 + 4 * s
    g.ds(f'ds_read_b128 v[{RES}:{RES+3}], v{V_RES} offset:{s*R_SZ}')
    g.ds(f'ds_read_b64 v[{V_ST+2*s}:{V_ST+2*s+1}], v{V_STR} offset:{s*256}')
    for n in range(56):
        ft2, k = divmod(n, 28)
        if n == 29:
            r = Rec(g); e1(r, layer, s, 108, halves=(0,)); g.add(r)
        if n + 2 < 56: rd(n + 2)
        g.lwait(f'b{n}')
        sl = BR + 4 * (n % 3)
        o = ACC + 16 * ft2
        c = f'v[{o}:{o+15}]' if k else '0'
        r = w1_reg(ft2, k)
        g.a(f'v_mfma_f32_32x32x16_bf16 v[{o}:{o+15}], a[{r}:{r+3}], v[{sl}:{sl+3}], {c}')
        g.fill(n, 4)
        if n >= bg_from and n % 2 == 0: g.pump(bgp)
    g.flush()
    e1(g, layer, s, 108, plain=False, halves=(1,))


def m2b(g, layer, s, nfill, first_issued):
    ACC = XR(s)
    for k in range(first_issued, NSL): h_load(g, layer, s, k)
    def rdw(k):
        if k == 24: g.a(f'v_add_u32 v{V_C0}, 0x10000, v{V_C0}')
        for dt in range(2):
            r = WT + 8 * (k % 2) + 4 * dt
            g.ds(f'ds_read_b128 v[{r}:{r+3}], v{V_C0} offset:{8192*((k-16)%8) + 1024*dt}', f'w{k}')
    for k in range(28):
        if k in (14, 15): rdw(k + 2)
        g.wait2(f'h{s}_{k}', f'w{k}' if k >= 16 else None)
        sl = h_slot(s, k)
        for dt in range(2):
            o = ACC + 16 * dt
            c = f'v[{o}:{o+15}]' if k else '0'
            kind, r = w2_loc(k, dt)
            if kind == 'l': kind, r = 'v', WT + 8 * (k % 2) + 4 * dt
            g.a(f'v_mfma_f32_32x32x16_bf16 v[{o}:{o+15}], {kind}[{r}:{r+3}], v[{sl}:{sl+3}], {c}')
            g.fill(2 * k + dt, nfill)
        if k + NSL < 28: h_load(g, layer, s, k + NSL)
        if 16 <= k and k + 2 < 28: rdw(k + 2)
    g.a(f'v_subrev_u32 v{V_C0}, 0x10000, v{V_C0}')


def main_kernel(asm):
    g = G(asm)
    a = g.a
    asm(kernel_header('main_kernel'))
    prof_begin(g)
    load_args(asm)
    a('s_cmp_ge_u32 s2, 224')
    a('s_cbranch_scc1 MAIN_END')
    a('v_and_b32 v1, 63, v0')
    a('v_lshrrev_b32 v2, 6, v0')
    a('v_readfirstlane_b32 s3, v2')
    a('v_lshlrev_b32 v2, 4, v1')
    HH, FT, KO = 180, 196, 128
    a('s_lshr_b32 s8, s3, 1')
    a('s_and_b32 s9, s3, 1')
    a('s_lshl_b32 s10, s2, 1')
    a('s_add_u32 s10, s10, s8')
    a('s_lshl_b32 s11, s10, 12')
    a(f's_mul_i32 s12, s8, {K2_CB}')
    a('s_lshl_b32 s13, s9, 11')
    a(f'v_add_u32 v{F_T16}, s13, v2')
    a(f'v_add_u32 v77, -16, v{F_T16}')
    a('s_waitcnt lgkmcnt(0)')
    srd(a, 44, P_SSMK, 's11', 4096)
    srd(a, 40, P_WS, 0, WS_SIZE + (0x100000 if gen4.PROF else 0))
    g.vmem(f'buffer_load_dwordx4 v[{HH}:{HH+3}], v77, s[44:47], 0 offen', 'h0')
    g.vmem(f'buffer_load_dwordx4 v[{HH+4}:{HH+7}], v{F_T16}, s[44:47], 0 offen', 'h0')
    g.vmem(f'buffer_load_dwordx4 v[{HH+8}:{HH+11}], v{F_T16}, s[44:47], 0 offen offset:1008', 'h1')
    g.vmem(f'buffer_load_dwordx4 v[{HH+12}:{HH+15}], v{F_T16}, s[44:47], 0 offen offset:1024', 'h1')
    g.vmem(f'buffer_load_dwordx4 v[{KO}:{KO+3}], v{F_T16}, {WSR}, s11 offen', 'kv0')
    g.vmem(f'buffer_load_dwordx4 v[{KO+4}:{KO+7}], v{F_T16}, {WSR}, s11 offen offset:1024', 'kv1')
    a('s_lshl_b32 s14, s2, 2')
    a('s_load_dword s15, s[26:27], s14')
    a('s_add_u32 s13, s14, s3')
    a('s_mul_i32 s13, s13, 1792')
    a(f's_add_u32 s14, s13, {WS_W2F}')
    a(f's_add_u32 s13, s13, {WS_W1F}')
    for i, so in enumerate(('s13', 's14')):
        g.vmem(f'buffer_load_dwordx4 v[{136+8*i}:{139+8*i}], v2, {WSR}, {so} offen')
        g.vmem(f'buffer_load_dwordx4 v[{140+8*i}:{143+8*i}], v2, {WSR}, {so} offen offset:768', 'pt')
    if CODEPF:
        a('s_getpc_b64 s[6:7]')
        g.label('CPF_PC')
        a('s_lshl_b32 s14, s3, 13')
        a('v_lshl_add_u32 v3, v1, 7, s14')
        for rep in range(2):
            a('v_cmp_gt_u32 vcc, MAIN_END-CPF_PC, v3')
            a('s_and_saveexec_b64 s[84:85], vcc')
            a(f's_cbranch_execz CPF_S{rep}')
            a('global_load_dword v254, v3, s[6:7]')
            g.label(f'CPF_S{rep}')
            a('s_mov_b64 exec, -1')
            if rep == 0: a('v_add_u32 v3, 0x8000, v3')
    srd(a, 88, P_DBG, 0, 256)
    a('v_mov_b32 v0, 0')
    nonce_publish(g, 'MN')
    a('s_lshr_b32 s8, s3, 1')
    a('s_and_b32 s9, s3, 1')
    consts(a)
    wg_map(a)
    a('v_and_b32 v3, 7, v1')
    a('v_lshrrev_b32 v6, 3, v1')
    a(f'v_lshrrev_b32 v{F_G4}, 4, v1')
    a(f'v_and_b32 v{F_N15}, 15, v1')
    a('s_lshl_b32 s71, s4, 3')
    a('s_add_u32 s71, s71, s3')
    a('s_lshl_b32 s73, s71, 6')
    a(f's_add_u32 s73, s73, {WS_SQ}')
    a('s_mul_i32 s71, s71, 7168')
    a('v_lshlrev_b32 v76, 3, v3')
    a('s_lshl_b32 s56, s5, 3')
    a('s_lshl_b32 s13, s3, 1')
    a('s_add_u32 s56, s56, s13')
    a(f's_mul_i32 s56, s56, {28*1024}')
    a(f's_add_u32 s56, s56, {WS_W1F}')
    a('s_mul_i32 s57, s5, 224')
    a('s_mul_i32 s13, s3, 28')
    a('s_add_u32 s57, s57, s13')
    a('s_lshl_b32 s57, s57, 10')
    a(f's_add_u32 s57, s57, {WS_W2F}')
    a('s_lshl_b32 s59, s3, 11')
    def w1ld(k, x):
        def f():
            r = w1_reg(x, k)
            a(f's_add_u32 s13, s56, {(28*x + (k//4)*4)*1024}')
            g.vmem(f'buffer_load_dwordx4 a[{r}:{r+3}], v2, {WSR}, s13 offen offset:{1024*(k%4)}', 'w1')
        return f
    def w2ld(k, x):
        def f():
            kd, r = w2_loc(k, x)
            if kd == 'l':
                a(f's_add_u32 m0, s59, {(k-16)*8192 + x*1024}')
                a(f's_add_u32 s13, s57, {(112*x + k)*1024}')
                g.vmem(f'buffer_load_dwordx4 v2, {WSR}, s13 offen lds', 'w2')
            else:
                a(f's_add_u32 s13, s57, {(112*x + (k//4)*4)*1024}')
                g.vmem(f'buffer_load_dwordx4 {kd}[{r}:{r+3}], v2, {WSR}, s13 offen offset:{1024*(k%4)}', 'w2')
        return f
    def xld(s, i):
        def f():
            a(f's_add_u32 s13, s71, {WS_XQ + s*4*7168 + 1024*i}')
            g.vmem(f'buffer_load_dwordx4 v[{XR(s)+4*i}:{XR(s)+4*i+3}], v2, {WSR}, s13 offen', f'x{s}')
        return f
    for k in range(28):
        for x in range(2): g.bg.append(w1ld(k, x))
    a(f'v_add_u32 v{F_FB}, s12, v{F_T16}')
    for i in range(4): a(f'v_mov_b32 v{236+i}, 0')
    a(f'v_lshlrev_b32 v{F_VF}, 2, v3')
    a('s_mov_b32 s14, 0x1cb88541')
    a(f'v_lshrrev_b32 v{F_VF}, v{F_VF}, s14')
    a(f'v_and_b32 v{F_VF}, 15, v{F_VF}')
    a('v_mul_u32_u24 v252, 272, v3')
    a(f'v_add_u32 v{F_VF}, v{F_VF}, v252')
    a(f'v_lshl_add_u32 v{F_VF}, v{F_VF}, 4, s12')
    a('s_cmp_eq_u32 s9, 0')
    a('s_cbranch_scc0 CV_Z1')
    a('s_mov_b64 exec, 0xff')
    a(f'ds_write_b128 v{F_VF}, v[236:239]')
    a('s_mov_b64 exec, -1')
    a('s_branch CV_Z2')
    g.label('CV_Z1')
    a('v_add_u32 v252, s12, v2')
    a(f'ds_write_b128 v252, v[236:239] offset:{K2_G+4096}')
    g.label('CV_Z2')
    g.lg.issue()
    a('v_bfe_u32 v252, v1, 3, 1')
    a(f'v_add_u32 v252, v252, v{F_G4}')
    a(f'v_lshl_add_u32 v{F_VF}, v252, 4, v{F_VF}')
    a('s_lshl_b32 s14, s9, 8')
    a(f'v_add_u32 v{F_VF}, s14, v{F_VF}')
    a(f'v_lshlrev_b32 v{F_VG}, 5, v{F_N15}')
    a(f'v_lshlrev_b32 v252, 4, v{F_G4}')
    a(f'v_sub_u32 v{F_VG}, v252, v{F_VG}')
    a('s_add_u32 s14, s14, s12')
    a(f's_add_u32 s14, s14, {K2_G+480}')
    a(f'v_add_u32 v{F_VG}, s14, v{F_VG}')
    for p in range(2):
        d = HH + 8 * p
        t = FT + 20 * p
        g.vwait(f'h{p}')
        if p == 0:
            stamp(g, 1)
            g.pump(8)
        for k in range(6): a(f'v_mov_b32 v{t+k}, v{d+1+k}')
        for k in range(6): a(f'v_alignbyte_b32 v{t+6+k}, v{d+k+1}, v{d+k}, 2')
        for k in range(6): a(f'v_alignbyte_b32 v{t+12+k}, v{d+k+2}, v{d+k+1}, 2')
        srcr = {1: t + 6, 2: t, 3: t + 12, 4: d + 2, 5: t + 8, 6: t + 2, 7: t + 14, 8: d + 4}
        for r in range(1, 9):
            off = ((r - 1) * 272 + FC[r - 1] + 1) * 16 + 1024 * p
            g.ds(f'ds_write_b128 v{F_FB}, v[{srcr[r]}:{srcr[r]+3}] offset:{off}')
    g.vwait('kv0')
    g.ds(f'ds_write_b128 v{F_FB}, v[{KO}:{KO+3}] offset:{K2_G}')
    g.vwait('kv1')
    g.ds(f'ds_write_b128 v{F_FB}, v[{KO+4}:{KO+7}] offset:{K2_G+1024}')
    g.vwait('pt')
    g.vmem('buffer_load_dword v253, v0, s[88:91], 0 offen sc1', 'nonce')
    g.pump(6)
    g.barrier()
    stamp(g, 5)
    g.fixq = deque()
    n0 = len(asm.lines)
    conv(g)
    keep = [l for l in asm.lines[n0:] if 's[96:99], s84 offen' not in l]
    assert len(keep) == len(asm.lines) - n0 - 2
    asm.lines[n0:] = keep
    stamp(g, 11)
    nonce_get(g, 'MN', 253)
    a('v_add_u32 v136, s59, v2')
    a('v_mov_b32 v137, v136')
    a('v_mov_b32 v79, v76')
    setup_gemm(g)
    g.vwait('yst')
    g.barrier()
    a('s_mul_i32 s81, s9, 224')
    a('s_add_u32 s81, s81, s2')
    a('s_lshl_b32 s81, s81, 3')
    a(f's_add_u32 s81, s81, {WS_CF}')
    publish(g, 'yst', [])
    stamp(g, 7)
    g.pump(100)
    for s in range(2):
        g.vmem(f'buffer_load_dwordx2 v[{ST1(s)+2}:{ST1(s)+3}], v79, {WSR}, s73 offen offset:{256*s}', f'x{s}')
        for i in range(7): g.bg.append(xld(s, i))
    for k in list(range(16)) + [24, 25, 26, 27]:
        for x in range(2): g.bg.append(w2ld(k, x))
    for i in range(4): a(f'v_mov_b32 v{112+i}, s62')
    cf_setup = ['s_lshr_b32 s82, s4, 4', 's_mul_i32 s82, s82, 1792', f's_add_u32 s82, s82, {WS_CF}']
    g.vwait('w1')
    for k in range(28):
        for ft2 in range(2):
            o = 80 + 16 * ft2
            c = f'v[{o}:{o+15}]' if k else '0'
            rr = w1_reg(ft2, k)
            a(f'v_mfma_f32_32x32x16_bf16 v[{o}:{o+15}], a[{rr}:{rr+3}], v[112:115], {c}')
        if k < 14: g.pump(1)
        if k == 16: poll_issue(g, 'v47', cf_setup, 116, 'cf', wide=2)
    a('s_mov_b32 exec_lo, 1')
    a('s_mov_b32 exec_hi, 1')
    for q in range(8):
        g.ds(f'ds_write_b128 v{V_CS}, v[{80+4*q}:{83+4*q}] offset:{(q//4)*128 + (q%4)*16}')
    a('s_mov_b64 exec, -1')
    stamp(g, 8)
    poll_check(g, 'CFP', 'v47', 116, 'cf', wide=2)
    stamp(g, 9)
    a('s_mul_i32 s70, s4, 57344')
    a('s_mul_i32 s72, s3, 14336')
    a('s_add_u32 s70, s70, s72')
    a(f's_add_u32 s70, s70, {WS_YB}')
    YL = [80 + 4 * i for i in range(12)] + [132, 140]
    for i in range(14):
        r = YL[i]
        g.vmem(f'buffer_load_dwordx4 v[{r}:{r+3}], v2, {WSR}, s70 offen offset:{1024*(i%4)} sc1', f'yl{i}')
        if i % 4 == 3: a('s_add_u32 s70, s70, 4096')
    g.pump(4)
    for i in range(14):
        r = YL[i]
        g.vwait(f'yl{i}')
        g.ds(f'ds_write_b128 {"v78" if (i>>1)&1 else "v77"}, v[{r}:{r+3}] offset:{128*i}')
    g.barrier()
    stamp(g, 10)
    y_tr(g, 0)
    r = Rec(g); p3(r, 0, 0, plain=False)
    for i, (_, f) in enumerate(r.items):
        f()
        if i % 20 == 19: g.pump(1)
    for layer in range(2):
        sb = 12 + 16 * layer
        g.barrier()
        stamp(g, sb)
        r = Rec(g)
        if layer == 0:
            y_tr(r, 1)
            r.barrier()
            for k in range(16, 24):
                for x in range(2): g.bg.append(w2ld(k, x))
        else:
            r.at(2); poll_issue(r, f'v{V_FL}', poll_op(3), 76, 'pf')
            r.at(22)
            poll_check(r, 'PX1', f'v{V_FL}', 76, 'pf')
            st_loads(r, 1)
            x_loads(r, 1)
        g.add(r)
        m1f(g, layer, 0, bgp=1 if layer == 0 else 0, bg_from=8)
        stamp(g, sb + 1)
        if layer == 1:
            ln1_combine(g, 1)
            g.vwait('x1')
        r = Rec(g); p3(r, layer, 1, plain=False)
        for i, (_, f) in enumerate(r.items):
            f()
            if i == 180: publish(g, 'hst0', pub_op(4 * layer))
            if layer == 0 and i > 180 and i % 20 == 0: g.pump(1)
        g.barrier()
        stamp(g, sb + 2)
        r = Rec(g)
        r.at(20); poll_issue(r, f'v{V_FL}', poll_op(4 * layer), 126, 'pf')
        g.add(r)
        m1f(g, layer, 1, bgp=1 if layer == 0 else 0)
        stamp(g, sb + 3)
        g.pump(100)
        poll_check(g, f'PH{layer}0', f'v{V_FL}', 126, 'pf')
        stamp(g, sb + 4)
        r = Rec(g)
        publish(r, 'hst1', pub_op(4 * layer + 1))
        r.at(36); poll_issue(r, f'v{V_FL}', poll_op(4 * layer + 1), 76, 'pf')
        g.add(r)
        m2b(g, layer, 0, 5, 0)
        stamp(g, sb + 5)
        g.flush()
        e2_head(g, layer, 0)
        poll_check(g, f'PH{layer}1', f'v{V_FL}', 76, 'pf')
        if layer == 1:
            for k in range(NSL): h_load(g, layer, 1, k)
        e2_tail(g, layer, 0)
        stamp(g, sb + 6)
        r = Rec(g)
        if layer == 0:
            publish(r, 'xst0', pub_op(2))
            r.at(36); poll_issue(r, f'v{V_FL}', poll_op(2), 44, 'pf')
            r.at(52); poll_check(r, 'PX0', f'v{V_FL}', 44, 'pf')
            x_loads(r, 0)
        g.add(r)
        m2b(g, layer, 1, 5, NSL if layer == 1 else 0)
        stamp(g, sb + 7)
        g.flush()
        e2_head(g, layer, 1)
        if layer == 0:
            st_loads(g, 0)
            y_loads(g, 0)
        e2_tail(g, layer, 1)
        stamp(g, sb + 8)
        if layer == 0:
            ln1_combine(g, 0)
            g.vwait('y0')
            stamp(g, sb + 9)
            def yb(e, i):
                if i < 4: return
                for ii in (range(5) if i == 4 else [i]):
                    def f(g, ii=ii):
                        g.a(f's_add_u32 s72, s71, {WS_YX + 4*7168 + 1024*ii}')
                        g.vmem(f'buffer_load_dwordx4 v[{YR+4*ii}:{YR+4*ii+3}], v2, {WSR}, s72 offen sc1', 'y1')
                    e.group(f)
            r = Rec(g); p3(r, 1, 0, plain=False, after_group=yb)
            for i, (_, f) in enumerate(r.items):
                f()
                if i == 150: publish(g, 'xst1', pub_op(3))
            stamp(g, sb + 10)
    prof_end(g, 0x10000)
    g.label('MAIN_END')
    a('s_endpgm')


def main(out):
    asm = Asm()
    pre_kernel(asm)
    main_kernel(asm)
    hdr = open(f'cdna_kernels/{NAME}.s.ref').read().split('; Override launch')[0]
    hdr += f"""; @launch kernel=pre_kernel grid=(224,1,1) block=(256,1,1) lds={PRE_LDS}
; @launch kernel=main_kernel grid=(224,1,1) block=(256,1,1) lds={LDS_BYTES}
.amdgcn_target "amdgcn-amd-amdhsa--gfx950"
.text
"""
    tail = '.section .rodata,"a"\n' + kernel_desc('pre_kernel', 256, sgpr=102) + kernel_desc('main_kernel', 512, sgpr=102, accum=256)
    open(out, 'w').write(hdr + asm.text() + tail)


if __name__ == '__main__':
    gen4.PROF = '--prof' in sys.argv
    main(sys.argv[1] if len(sys.argv) > 1 and not sys.argv[1].startswith('--') else f'cdna_kernels/{NAME}.s')
```

```python
import sys
import gen4
from gen4 import *

CODEPF = '--nopf' not in sys.argv
WS_W1F = 0xA00000
WS_W2F = 0xC00000
WS_XQ = 0xE00000
WS_SQ = 0x980000
PRE_SCR = 9216
PRE_LDS = PRE_SCR + 4 * 8192


def nonce_publish(g, tag):
    a = g.a
    a('s_or_b32 s8, s2, s3')
    a('s_cmp_lg_u32 s8, 0')
    a(f's_cbranch_scc1 {tag}_SKIP')
    a('s_memrealtime s[8:9]')
    a('s_waitcnt lgkmcnt(0)')
    a('s_or_b32 s8, s8, 1')
    a('v_mov_b32 v4, s8')
    a('buffer_store_dword v4, v0, s[88:91], 0 offen sc1')
    g.label(f'{tag}_SKIP')


def nonce_get(g, tag, t):
    a = g.a
    g.vwait('nonce')
    g.label(f'{tag}_P')
    a(f'v_readfirstlane_b32 s66, v{t}')
    a('s_cmp_lg_u32 s66, 0')
    a(f's_cbranch_scc1 {tag}_D')
    a(f's_add_u32 {SPIN}, {SPIN}, 1')
    a(f's_cmp_gt_u32 {SPIN}, 0x40000')
    a(f's_cbranch_scc1 {tag}_D')
    a(f'buffer_load_dword v{t}, v0, s[88:91], 0 offen sc1')
    a('s_waitcnt vmcnt(0)')
    a(f's_branch {tag}_P')
    g.label(f'{tag}_D')
    a('s_not_b32 s67, s66')
    a('v_mov_b32 v4, s66')
    a('v_mov_b32 v5, s67')


def consts(a):
    a('s_mov_b32 s60, 0x00003f80')
    a('s_mov_b32 s61, 0x3f800000')
    a('s_mov_b32 s62, 0x3f803f80')
    a('s_mov_b32 s63, 0x3b124925')
    a('s_mov_b32 s64, 0xffff0000')
    a('s_mov_b32 s65, 0xffff')
    a(f's_mov_b32 {SPIN}, 0')


def prof_begin(g):
    if not gen4.PROF: return
    a = g.a
    a('s_memrealtime s[100:101]')
    a('v_mov_b32 v7, 0')
    a('s_waitcnt lgkmcnt(0)')
    a('v_writelane_b32 v7, s100, 62')
    stamp(g, 0)


def prof_end(g, region):
    if not gen4.PROF: return
    a = g.a
    a('s_waitcnt vmcnt(0)')
    stamp(g, 40)
    a('s_memrealtime s[100:101]')
    a('s_waitcnt lgkmcnt(0)')
    a('v_writelane_b32 v7, s100, 63')
    a('s_lshl_b32 s70, s2, 2')
    a('s_add_u32 s70, s70, s3')
    a('s_lshl_b32 s70, s70, 8')
    a(f's_add_u32 s70, s70, {WS_PROF + region}')
    a('v_lshlrev_b32 v16, 2, v1')
    a(f'buffer_store_dword v7, v16, {WSR}, s70 offen')


def pre_kernel(asm):
    g = G(asm)
    a = g.a
    asm(kernel_header('pre_kernel'))
    load_args(asm)
    if CODEPF:
        a('s_getpc_b64 s[86:87]')
        g.label('PPF_PC')
        a('v_lshlrev_b32 v71, 7, v0')
        a('global_load_dword v72, v71, s[86:87]')
        a('v_add_u32 v71, 0x8000, v71')
        a('v_cmp_gt_u32 vcc, MAIN_END-PPF_PC, v71')
        a('s_and_saveexec_b64 s[78:79], vcc')
        a('s_cbranch_execz PPF_S')
        a('global_load_dword v72, v71, s[86:87]')
        g.label('PPF_S')
        a('s_mov_b64 exec, -1')
    prof_begin(g)
    a('s_cmp_ge_u32 s2, 224')
    a('s_cbranch_scc1 PRE_END')
    MK, AC, PR, KO, TAP, KR, VR, HH, FT = 80, 112, 120, 128, 136, 152, 172, 180, 196
    a('v_and_b32 v1, 63, v0')
    a('v_lshrrev_b32 v2, 6, v0')
    a('v_readfirstlane_b32 s3, v2')
    a(f's_mul_hi_u32 s6, s2, {magic(7)}')
    a('s_mul_i32 s7, s6, 7')
    a('s_sub_u32 s7, s2, s7')
    a('v_and_b32 v252, 7, v0')
    a('v_lshrrev_b32 v253, 3, v0')
    a('s_lshl_b32 s8, s6, 6')
    a('v_lshl_add_u32 v254, v253, 1, s8')
    a('s_movk_i32 s8, 896')
    a('v_mul_lo_u32 v254, v254, s8')
    a('s_lshl_b32 s8, s7, 7')
    a('v_lshl_add_u32 v255, v252, 4, s8')
    a('v_add_u32 v254, v254, v255')
    a('v_add_u32 v44, -896, v254')
    a('v_add_u32 v45, -1792, v254')
    a('v_add_u32 v46, -2688, v254')
    a('v_lshlrev_b32 v255, 2, v255')
    a('v_lshlrev_b32 v2, 4, v1')
    a('s_waitcnt lgkmcnt(0)')
    srd(a, 88, P_SHK, 0, 448 * 8)
    srd(a, 56, P_K, 0, XBYTES)
    srd(a, 84, P_V, 0, XBYTES)
    for i in range(4):
        g.vmem(f'buffer_load_dwordx4 v[{TAP+4*i}:{TAP+4*i+3}], v255, s[88:91], 0 offen offset:{16*i}', 'tap')
    g.vmem(f'buffer_load_dwordx4 v[{KR}:{KR+3}], v46, s[56:59], 0 offen', 'k')
    g.vmem(f'buffer_load_dwordx4 v[{KR+4}:{KR+7}], v45, s[56:59], 0 offen', 'k')
    g.vmem(f'buffer_load_dwordx4 v[{KR+8}:{KR+11}], v44, s[56:59], 0 offen', 'k')
    g.vmem(f'buffer_load_dwordx4 v[{KR+12}:{KR+15}], v254, s[56:59], 0 offen', 'k')
    g.vmem(f'buffer_load_dwordx4 v[{KR+16}:{KR+19}], v254, s[56:59], 0 offen offset:896', 'k')
    g.vmem(f'buffer_load_dwordx4 v[{VR}:{VR+3}], v254, s[84:87], 0 offen', 'v')
    g.vmem(f'buffer_load_dwordx4 v[{VR+4}:{VR+7}], v254, s[84:87], 0 offen offset:896', 'v')
    srd(a, 40, P_WS, 0, WS_SIZE + (0x100000 if gen4.PROF else 0))
    a('v_mov_b32 v0, 0')
    a('s_lshl_b32 s68, s7, 2')
    a('s_add_u32 s68, s68, s3')
    a('s_sub_u32 s69, 31, s6')
    a('s_lshl_b32 s80, s68, 16')
    a('s_lshl_b32 s70, s69, 7')
    a('s_add_u32 s80, s80, s70')
    a('s_lshl_b32 s81, s68, 5')
    a('s_add_u32 s81, s81, s69')
    a('s_lshl_b32 s81, s81, 3')
    a(f's_add_u32 s81, s81, {WS_KF}')
    a(f'v_lshrrev_b32 v{F_G4}, 4, v1')
    a('v_bfe_u32 v48, v1, 2, 2')
    a('v_and_b32 v49, 3, v1')
    a(f'v_lshl_add_u32 v50, v{F_G4}, 3, v48')
    a('v_mul_u32_u24 v50, 144, v50')
    a('v_lshl_add_u32 v50, v49, 3, v50')
    a('s_lshl_b32 s13, s3, 5')
    a(f's_add_u32 s13, s13, {0}')
    a('v_add_u32 v50, s13, v50')
    a(f'v_and_b32 v{F_N15}, 15, v1')
    a('s_lshl_b32 s58, s3, 13')
    a(f's_add_u32 s58, s58, {PRE_SCR}')
    a(f'v_mul_u32_u24 v51, 144, v{F_N15}')
    a(f'v_lshl_add_u32 v51, v{F_G4}, 4, v51')
    a('v_add_u32 v51, s58, v51')
    a('v_and_b32 v3, 7, v1')
    a('v_lshrrev_b32 v6, 3, v1')
    a('v_mul_u32_u24 v52, 144, v6')
    a('v_lshl_add_u32 v52, v3, 4, v52')
    a('v_add_u32 v52, s58, v52')
    a('v_lshlrev_b32 v53, 12, v6')
    a('v_lshl_add_u32 v53, v3, 4, v53')
    a('v_lshlrev_b32 v54, 1, v253')
    a('v_sub_u32 v54, 62, v54')
    a('v_mul_u32_u24 v54, 144, v54')
    a('v_lshl_add_u32 v54, v252, 4, v54')
    a(f'v_add_u32 v54, {0}, v54')
    consts(a)
    srd(a, 92, P_W1, 0, WBYTES)
    srd(a, 96, P_W2, 0, WBYTES)
    srd(a, 48, P_Q, 0, XBYTES)
    a('s_lshl_b32 s84, s2, 2')
    a('s_add_u32 s84, s84, s3')
    a('v_bfe_u32 v55, v1, 4, 1')
    a('v_lshlrev_b32 v55, 2, v55')
    a('v_xor_b32 v55, v55, v3')
    a('v_lshlrev_b32 v55, 4, v55')
    a('s_movk_i32 s13, 3584')
    a('v_mad_u32_u24 v56, v6, s13, v55')
    a('s_movk_i32 s13, 896')
    a('v_mad_u32_u24 v57, v6, s13, v55')
    a(f's_mul_hi_u32 s72, s84, {magic(28)}')
    a('s_mul_i32 s73, s72, 28')
    a('s_sub_u32 s73, s84, s73')
    a(f's_mul_i32 s74, s72, {16*3584}')
    a('s_lshl_b32 s13, s73, 7')
    a('s_add_u32 s74, s74, s13')
    a('s_mul_i32 s75, s73, 56')
    a('s_add_u32 s75, s75, s72')
    a('s_lshl_b32 s75, s75, 10')
    a(f's_add_u32 s75, s75, {WS_W1F}')
    a(f's_mul_hi_u32 s72, s84, {magic(7)}')
    a('s_mul_i32 s73, s72, 7')
    a('s_sub_u32 s73, s84, s73')
    a(f's_mul_i32 s76, s72, {16*896}')
    a('s_lshl_b32 s13, s73, 7')
    a('s_add_u32 s76, s76, s13')
    a('s_mul_i32 s77, s73, 224')
    a('s_add_u32 s77, s77, s72')
    a('s_lshl_b32 s77, s77, 10')
    a(f's_add_u32 s77, s77, {WS_W2F}')
    a(f'v_and_b32 v58, 1, v{F_G4}')
    a('v_lshlrev_b32 v58, 5, v58')
    a('v_lshl_add_u32 v58, v49, 3, v58')
    a('v_lshl_add_u32 v58, v48, 7, v58')
    a('v_lshrrev_b32 v59, 1, v48')
    a('v_lshlrev_b32 v59, 6, v59')
    a('v_xor_b32 v60, 64, v59')
    a(f'v_lshrrev_b32 v61, 1, v{F_G4}')
    a('v_lshl_add_u32 v62, v61, 10, v58')
    a('v_lshl_add_u32 v63, v61, 9, v58')
    a('v_add3_u32 v64, v62, v59, s58')
    a('v_add3_u32 v65, v62, v60, s58')
    a('v_add3_u32 v66, v63, v59, s58')
    a('v_add3_u32 v67, v63, v60, s58')
    a('v_add_u32 v68, s58, v2')
    a('v_xor_b32 v69, v3, v6')
    a('v_lshlrev_b32 v70, 4, v69')
    a('s_movk_i32 s13, 896')
    a('v_mad_u32_u24 v70, v6, s13, v70')
    a('v_lshl_add_u32 v69, v3, 3, v69')
    a('v_lshl_add_u32 v69, v69, 4, s58')
    WR = 72 if False else 216
    a(f's_add_u32 s13, s74, {8*3584}')
    g.vmem(f'buffer_load_dwordx4 v[{WR}:{WR+3}], v56, s[92:95], s74 offen', 'wr')
    g.vmem(f'buffer_load_dwordx4 v[{WR+4}:{WR+7}], v56, s[92:95], s13 offen', 'wr')
    a(f's_add_u32 s13, s76, {8*896}')
    g.vmem(f'buffer_load_dwordx4 v[{WR+8}:{WR+11}], v57, s[96:99], s76 offen', 'wr')
    g.vmem(f'buffer_load_dwordx4 v[{WR+12}:{WR+15}], v57, s[96:99], s13 offen', 'wr')
    a('s_sub_u32 s72, s84, 640')
    a('s_mul_i32 s73, s72, 7168')
    a('s_cmp_lt_u32 s84, 640')
    a('s_cselect_b32 s73, 0x7ff00000, s73')
    for i in range(7):
        g.vmem(f'buffer_load_dwordx4 v[{16+4*i}:{19+4*i}], v70, s[48:51], s73 offen offset:{128*i}')
    g.vwait('tap')
    for e in range(8):
        A, B = TAP + 2 * e, TAP + 2 * e + 1
        if e % 2 == 0:
            a(f'v_and_b32 v{MK+e}, s65, v{A}')
            a(f'v_lshrrev_b32 v{MK+8+e}, 16, v{A}')
            a(f'v_and_b32 v{MK+16+e}, s65, v{B}')
            a(f'v_lshrrev_b32 v{MK+24+e}, 16, v{B}')
        else:
            a(f'v_lshlrev_b32 v{MK+e}, 16, v{A}')
            a(f'v_and_b32 v{MK+8+e}, s64, v{A}')
            a(f'v_lshlrev_b32 v{MK+16+e}, 16, v{B}')
            a(f'v_and_b32 v{MK+24+e}, s64, v{B}')
    g.vwait('v')
    stamp(g, 1)
    for rr in range(2):
        K3, K2, K1, K0 = [KR + 4 * (rr + i) for i in range(4)]
        for e in range(8): a(f'v_dot2_f32_bf16 v{AC+e}, v{K3+e//2}, v{MK+24+e}, 0')
        for e in range(8): a(f'v_dot2_f32_bf16 v{PR+e}, v{K2+e//2}, v{MK+16+e}, 0')
        for Kx, m in ((K1, 8), (K0, 0), (None, None)):
            for e in range(8): a(f'v_cvt_pk_bf16_f32 v{AC+e}, v{AC+e}, v{PR+e}')
            if Kx is not None:
                for e in range(8): a(f'v_dot2_f32_bf16 v{PR+e}, v{Kx+e//2}, v{MK+m+e}, 0')
            for e in range(8): a(f'v_dot2_f32_bf16 v{AC+e}, v{AC+e}, s62, 0')
        for p in range(4): a(f'v_cvt_pk_bf16_f32 v{PR+p}, v{AC+2*p}, v{AC+2*p+1}')
        for p in range(4):
            a(f'v_and_b32 v{AC+2*p}, s65, v{VR+4*rr+p}')
            a(f'v_and_b32 v{AC+2*p+1}, s64, v{VR+4*rr+p}')
        for e in range(8): a(f'v_dot2_f32_bf16 v{AC+e}, v{PR+e//2}, v{AC+e}, 0')
        for p in range(4): a(f'v_cvt_pk_bf16_f32 v{KO+4*rr+p}, v{AC+2*p}, v{AC+2*p+1}')
        g.ds(f'ds_write_b128 v54, v[{KO+4*rr}:{KO+4*rr+3}] offset:{144*(1-rr)}')
    g.barrier()
    for u in range(2):
        for hh in range(2):
            g.ds(f'ds_read_b64_tr_b16 v[{KO+4*u+2*hh}:{KO+4*u+2*hh+1}], v50 offset:{(32*u+4*hh)*144}', f'kt{u}')
    for u in range(2):
        g.lwait(f'kt{u}')
        g.ds(f'ds_write_b128 v51, v[{KO+4*u}:{KO+4*u+3}] offset:{64*u}', 'k2w')
    g.lwait('k2w')
    for u in range(2):
        g.ds(f'ds_read_b128 v[{KO+4*u}:{KO+4*u+3}], v52 offset:{8*144*u}', f'k2r{u}')
    a('s_add_u32 s13, s80, 32768')
    for u in range(2):
        g.lwait(f'k2r{u}')
        g.vmem(f'buffer_store_dwordx4 v[{KO+4*u}:{KO+4*u+3}], v53, {WSR}, {"s13" if u else "s80"} offen', 'kst')
    stamp(g, 2)
    g.vwait('wr')
    for i in range(4):
        g.ds(f'ds_write_b128 v68, v[{WR+4*i}:{WR+4*i+3}] offset:{1024*i}', 'ww')
    g.lwait('ww')
    for x in range(2):
        for hh in range(2):
            g.ds(f'ds_read_b64_tr_b16 v[{WR+4*x+2*hh}:{WR+4*x+2*hh+1}], v{64+x} offset:{512*hh}', 'wt')
            g.ds(f'ds_read_b64_tr_b16 v[{WR+8+4*x+2*hh}:{WR+8+4*x+2*hh+1}], v{66+x} offset:{2048+1024*hh}', 'wt')
    a('v_min_u32 v255, 15, v1')
    a('v_lshlrev_b32 v255, 3, v255')
    g.lwait('wt')
    a('s_cmp_ge_u32 s84, 784')
    a('s_cbranch_scc1 PRE_NOW')
    a(f's_add_u32 s13, s75, {28*1024}')
    a(f'buffer_store_dwordx4 v[{WR}:{WR+3}], v2, {WSR}, s75 offen')
    a(f'buffer_store_dwordx4 v[{WR+4}:{WR+7}], v2, {WSR}, s13 offen')
    a(f's_add_u32 s13, s77, {112*1024}')
    a(f'buffer_store_dwordx4 v[{WR+8}:{WR+11}], v2, {WSR}, s77 offen')
    a(f'buffer_store_dwordx4 v[{WR+12}:{WR+15}], v2, {WSR}, s13 offen')
    g.label('PRE_NOW')
    a('s_waitcnt vmcnt(2)')
    a('s_cmp_lt_u32 s84, 640')
    a('s_cbranch_scc1 PRE_NOQ2')
    for i in range(7): a(f'ds_write_b128 v68, v[{16+4*i}:{19+4*i}] offset:{1024*i}')
    a('s_waitcnt lgkmcnt(0)')
    for i in range(7): a(f'ds_read_b128 v[{16+4*i}:{19+4*i}], v69 offset:{1024*i}')
    a('s_waitcnt lgkmcnt(0)')
    a(f's_add_u32 s73, s73, {WS_XQ}')
    a('s_add_u32 s74, s73, 4096')
    for i in range(7):
        so, off = ('s73', 1024 * i) if i < 4 else ('s74', 1024 * (i - 4))
        a(f'buffer_store_dwordx4 v[{16+4*i}:{19+4*i}], v2, {WSR}, {so} offen offset:{off}')
    ln1_stats(g, 0, 80)
    a('s_lshl_b32 s72, s72, 6')
    a(f's_add_u32 s72, s72, {WS_SQ}')
    a('v_lshlrev_b32 v80, 3, v3')
    a('s_mov_b64 exec, 0xff')
    a(f'buffer_store_dwordx2 v[10:11], v80, {WSR}, s72 offen')
    a('s_mov_b64 exec, -1')
    a('s_waitcnt vmcnt(8)')
    g.label('PRE_NOQ2')
    prof_end(g, 0x60000)
    g.label('PRE_END')
    a('s_endpgm')


def m1_jit(g, nfill):
    s = 0
    ACC = XR(s)
    def rd(k):
        sl = BR + 4 * (k % 2)
        g.ds(f'ds_read_b128 v[{sl}:{sl+3}], v{V_B} offset:{1024*k}', f'b{k}')
    rd(0)
    g.ds(f'ds_read_b128 v[8:11], v{V_RES}')
    g.ds(f'ds_read_b64 v[{V_ST}:{V_ST+1}], v{V_STR}')
    for i in range(4): g.a(f'v_mov_b32 v{BR+8+i}, s62')
    for k in range(28):
        if k + 1 < 28: rd(k + 1)
        g.wait2(f'w1_{k}', f'b{k}')
        sl = BR + 4 * (k % 2)
        for ft2 in range(2):
            r = w1_reg(ft2, k)
            for o, bb in ((ACC + 16 * ft2, sl), (224 + 16 * ft2, BR + 8)):
                c = f'v[{o}:{o+15}]' if k else '0'
                g.a(f'v_mfma_f32_32x32x16_bf16 v[{o}:{o+15}], a[{r}:{r+3}], v[{bb}:{bb+3}], {c}')
                g.fill(4 * k, nfill)
            g.pump(1)


def m1f(g, layer, s, bgp=0, bg_from=0):
    ACC = XR(s)
    def rd(n):
        sl = BR + 4 * (n % 3)
        g.ds(f'ds_read_b128 v[{sl}:{sl+3}], v{V_B} offset:{s*R_SZ + 1024*(n%28)}', f'b{n}')
    rd(0); rd(1)
    RES = 8 + 4 * s
    g.ds(f'ds_read_b128 v[{RES}:{RES+3}], v{V_RES} offset:{s*R_SZ}')
    g.ds(f'ds_read_b64 v[{V_ST+2*s}:{V_ST+2*s+1}], v{V_STR} offset:{s*256}')
    for n in range(56):
        ft2, k = divmod(n, 28)
        if n == 29:
            r = Rec(g); e1(r, layer, s, 108, halves=(0,)); g.add(r)
        if n + 2 < 56: rd(n + 2)
        g.lwait(f'b{n}')
        sl = BR + 4 * (n % 3)
        o = ACC + 16 * ft2
        c = f'v[{o}:{o+15}]' if k else '0'
        r = w1_reg(ft2, k)
        g.a(f'v_mfma_f32_32x32x16_bf16 v[{o}:{o+15}], a[{r}:{r+3}], v[{sl}:{sl+3}], {c}')
        g.fill(n, 4)
        if n >= bg_from and n % 2 == 0: g.pump(bgp)
    g.flush()
    e1(g, layer, s, 108, plain=False, halves=(1,))


def m2b(g, layer, s, nfill, first_issued):
    ACC = XR(s)
    for k in range(first_issued, NSL): h_load(g, layer, s, k)
    def rdw(k):
        if k == 24: g.a(f'v_add_u32 v{V_C0}, 0x10000, v{V_C0}')
        for dt in range(2):
            r = WT + 8 * (k % 2) + 4 * dt
            g.ds(f'ds_read_b128 v[{r}:{r+3}], v{V_C0} offset:{8192*((k-16)%8) + 1024*dt}', f'w{k}')
    for k in range(28):
        if k in (14, 15): rdw(k + 2)
        g.wait2(f'h{s}_{k}', f'w{k}' if k >= 16 else None)
        sl = h_slot(s, k)
        for dt in range(2):
            o = ACC + 16 * dt
            c = f'v[{o}:{o+15}]' if k else '0'
            kind, r = w2_loc(k, dt)
            if kind == 'l': kind, r = 'v', WT + 8 * (k % 2) + 4 * dt
            g.a(f'v_mfma_f32_32x32x16_bf16 v[{o}:{o+15}], {kind}[{r}:{r+3}], v[{sl}:{sl+3}], {c}')
            g.fill(2 * k + dt, nfill)
        if k + NSL < 28: h_load(g, layer, s, k + NSL)
        if 16 <= k and k + 2 < 28: rdw(k + 2)
    g.a(f'v_subrev_u32 v{V_C0}, 0x10000, v{V_C0}')


def main_kernel(asm):
    g = G(asm)
    a = g.a
    asm(kernel_header('main_kernel'))
    prof_begin(g)
    load_args(asm)
    a('s_cmp_ge_u32 s2, 224')
    a('s_cbranch_scc1 MAIN_END')
    a('v_and_b32 v1, 63, v0')
    a('v_lshrrev_b32 v2, 6, v0')
    a('v_readfirstlane_b32 s3, v2')
    a('v_lshlrev_b32 v2, 4, v1')
    HH, FT, KO = 180, 196, 128
    a('s_lshr_b32 s8, s3, 1')
    a('s_and_b32 s9, s3, 1')
    a('s_lshl_b32 s10, s2, 1')
    a('s_add_u32 s10, s10, s8')
    a('s_lshl_b32 s11, s10, 12')
    a(f's_mul_i32 s12, s8, {K2_CB}')
    a('s_lshl_b32 s13, s9, 11')
    a(f'v_add_u32 v{F_T16}, s13, v2')
    a(f'v_add_u32 v77, -16, v{F_T16}')
    a('s_waitcnt lgkmcnt(0)')
    srd(a, 44, P_SSMK, 's11', 4096)
    srd(a, 40, P_WS, 0, WS_SIZE + (0x100000 if gen4.PROF else 0))
    g.vmem(f'buffer_load_dwordx4 v[{HH}:{HH+3}], v77, s[44:47], 0 offen', 'h0')
    g.vmem(f'buffer_load_dwordx4 v[{HH+4}:{HH+7}], v{F_T16}, s[44:47], 0 offen', 'h0')
    g.vmem(f'buffer_load_dwordx4 v[{HH+8}:{HH+11}], v{F_T16}, s[44:47], 0 offen offset:1008', 'h1')
    g.vmem(f'buffer_load_dwordx4 v[{HH+12}:{HH+15}], v{F_T16}, s[44:47], 0 offen offset:1024', 'h1')
    g.vmem(f'buffer_load_dwordx4 v[{KO}:{KO+3}], v{F_T16}, {WSR}, s11 offen', 'kv0')
    g.vmem(f'buffer_load_dwordx4 v[{KO+4}:{KO+7}], v{F_T16}, {WSR}, s11 offen offset:1024', 'kv1')
    a('s_lshl_b32 s14, s2, 2')
    a('s_load_dword s15, s[26:27], s14')
    a('s_add_u32 s13, s14, s3')
    a('s_mul_i32 s13, s13, 1792')
    a(f's_add_u32 s14, s13, {WS_W2F}')
    a(f's_add_u32 s13, s13, {WS_W1F}')
    for i, so in enumerate(('s13', 's14')):
        g.vmem(f'buffer_load_dwordx4 v[{136+8*i}:{139+8*i}], v2, {WSR}, {so} offen')
        g.vmem(f'buffer_load_dwordx4 v[{140+8*i}:{143+8*i}], v2, {WSR}, {so} offen offset:768', 'pt')
    if CODEPF:
        a('s_getpc_b64 s[6:7]')
        g.label('CPF_PC')
        a('s_lshl_b32 s14, s3, 13')
        a('v_lshl_add_u32 v3, v1, 7, s14')
        for rep in range(2):
            a('v_cmp_gt_u32 vcc, MAIN_END-CPF_PC, v3')
            a('s_and_saveexec_b64 s[84:85], vcc')
            a(f's_cbranch_execz CPF_S{rep}')
            a('global_load_dword v254, v3, s[6:7]')
            g.label(f'CPF_S{rep}')
            a('s_mov_b64 exec, -1')
            if rep == 0: a('v_add_u32 v3, 0x8000, v3')
    srd(a, 88, P_DBG, 0, 256)
    a('v_mov_b32 v0, 0')
    nonce_publish(g, 'MN')
    a('s_lshr_b32 s8, s3, 1')
    a('s_and_b32 s9, s3, 1')
    consts(a)
    wg_map(a)
    a('v_and_b32 v3, 7, v1')
    a('v_lshrrev_b32 v6, 3, v1')
    a(f'v_lshrrev_b32 v{F_G4}, 4, v1')
    a(f'v_and_b32 v{F_N15}, 15, v1')
    a('s_lshl_b32 s71, s4, 3')
    a('s_add_u32 s71, s71, s3')
    a('s_lshl_b32 s73, s71, 6')
    a(f's_add_u32 s73, s73, {WS_SQ}')
    a('s_mul_i32 s71, s71, 7168')
    a('v_lshlrev_b32 v76, 3, v3')
    a('s_lshl_b32 s56, s5, 3')
    a('s_lshl_b32 s13, s3, 1')
    a('s_add_u32 s56, s56, s13')
    a(f's_mul_i32 s56, s56, {28*1024}')
    a(f's_add_u32 s56, s56, {WS_W1F}')
    a('s_mul_i32 s57, s5, 224')
    a('s_mul_i32 s13, s3, 28')
    a('s_add_u32 s57, s57, s13')
    a('s_lshl_b32 s57, s57, 10')
    a(f's_add_u32 s57, s57, {WS_W2F}')
    a('s_lshl_b32 s59, s3, 11')
    def w1ld(k, x):
        def f():
            r = w1_reg(x, k)
            a(f's_add_u32 s13, s56, {(28*x + (k//4)*4)*1024}')
            g.vmem(f'buffer_load_dwordx4 a[{r}:{r+3}], v2, {WSR}, s13 offen offset:{1024*(k%4)}', 'w1')
        return f
    def w2ld(k, x):
        def f():
            kd, r = w2_loc(k, x)
            if kd == 'l':
                a(f's_add_u32 m0, s59, {(k-16)*8192 + x*1024}')
                a(f's_add_u32 s13, s57, {(112*x + k)*1024}')
                g.vmem(f'buffer_load_dwordx4 v2, {WSR}, s13 offen lds', 'w2')
            else:
                a(f's_add_u32 s13, s57, {(112*x + (k//4)*4)*1024}')
                g.vmem(f'buffer_load_dwordx4 {kd}[{r}:{r+3}], v2, {WSR}, s13 offen offset:{1024*(k%4)}', 'w2')
        return f
    def xld(s, i):
        def f():
            a(f's_add_u32 s13, s71, {WS_XQ + s*4*7168 + 1024*i}')
            g.vmem(f'buffer_load_dwordx4 v[{XR(s)+4*i}:{XR(s)+4*i+3}], v2, {WSR}, s13 offen', f'x{s}')
        return f
    for k in range(28):
        for x in range(2): g.bg.append(w1ld(k, x))
    a(f'v_add_u32 v{F_FB}, s12, v{F_T16}')
    for i in range(4): a(f'v_mov_b32 v{236+i}, 0')
    a(f'v_lshlrev_b32 v{F_VF}, 2, v3')
    a('s_mov_b32 s14, 0x1cb88541')
    a(f'v_lshrrev_b32 v{F_VF}, v{F_VF}, s14')
    a(f'v_and_b32 v{F_VF}, 15, v{F_VF}')
    a('v_mul_u32_u24 v252, 272, v3')
    a(f'v_add_u32 v{F_VF}, v{F_VF}, v252')
    a(f'v_lshl_add_u32 v{F_VF}, v{F_VF}, 4, s12')
    a('s_cmp_eq_u32 s9, 0')
    a('s_cbranch_scc0 CV_Z1')
    a('s_mov_b64 exec, 0xff')
    a(f'ds_write_b128 v{F_VF}, v[236:239]')
    a('s_mov_b64 exec, -1')
    a('s_branch CV_Z2')
    g.label('CV_Z1')
    a('v_add_u32 v252, s12, v2')
    a(f'ds_write_b128 v252, v[236:239] offset:{K2_G+4096}')
    g.label('CV_Z2')
    g.lg.issue()
    a('v_bfe_u32 v252, v1, 3, 1')
    a(f'v_add_u32 v252, v252, v{F_G4}')
    a(f'v_lshl_add_u32 v{F_VF}, v252, 4, v{F_VF}')
    a('s_lshl_b32 s14, s9, 8')
    a(f'v_add_u32 v{F_VF}, s14, v{F_VF}')
    a(f'v_lshlrev_b32 v{F_VG}, 5, v{F_N15}')
    a(f'v_lshlrev_b32 v252, 4, v{F_G4}')
    a(f'v_sub_u32 v{F_VG}, v252, v{F_VG}')
    a('s_add_u32 s14, s14, s12')
    a(f's_add_u32 s14, s14, {K2_G+480}')
    a(f'v_add_u32 v{F_VG}, s14, v{F_VG}')
    for p in range(2):
        d = HH + 8 * p
        t = FT + 20 * p
        g.vwait(f'h{p}')
        if p == 0:
            stamp(g, 1)
            g.pump(8)
        for k in range(6): a(f'v_mov_b32 v{t+k}, v{d+1+k}')
        for k in range(6): a(f'v_alignbyte_b32 v{t+6+k}, v{d+k+1}, v{d+k}, 2')
        for k in range(6): a(f'v_alignbyte_b32 v{t+12+k}, v{d+k+2}, v{d+k+1}, 2')
        srcr = {1: t + 6, 2: t, 3: t + 12, 4: d + 2, 5: t + 8, 6: t + 2, 7: t + 14, 8: d + 4}
        for r in range(1, 9):
            off = ((r - 1) * 272 + FC[r - 1] + 1) * 16 + 1024 * p
            g.ds(f'ds_write_b128 v{F_FB}, v[{srcr[r]}:{srcr[r]+3}] offset:{off}')
    g.vwait('kv0')
    g.ds(f'ds_write_b128 v{F_FB}, v[{KO}:{KO+3}] offset:{K2_G}')
    g.vwait('kv1')
    g.ds(f'ds_write_b128 v{F_FB}, v[{KO+4}:{KO+7}] offset:{K2_G+1024}')
    g.vwait('pt')
    g.vmem('buffer_load_dword v253, v0, s[88:91], 0 offen sc1', 'nonce')
    g.pump(6)
    g.barrier()
    stamp(g, 5)
    g.fixq = deque()
    n0 = len(asm.lines)
    conv(g)
    keep = [l for l in asm.lines[n0:] if 's[96:99], s84 offen' not in l]
    assert len(keep) == len(asm.lines) - n0 - 2
    asm.lines[n0:] = keep
    stamp(g, 11)
    nonce_get(g, 'MN', 253)
    a('v_add_u32 v136, s59, v2')
    a('v_mov_b32 v137, v136')
    a('v_mov_b32 v79, v76')
    setup_gemm(g)
    g.vwait('yst')
    g.barrier()
    a('s_mul_i32 s81, s9, 224')
    a('s_add_u32 s81, s81, s2')
    a('s_lshl_b32 s81, s81, 3')
    a(f's_add_u32 s81, s81, {WS_CF}')
    publish(g, 'yst', [])
    stamp(g, 7)
    g.pump(100)
    for s in range(2):
        g.vmem(f'buffer_load_dwordx2 v[{ST1(s)+2}:{ST1(s)+3}], v79, {WSR}, s73 offen offset:{256*s}', f'x{s}')
        for i in range(7): g.bg.append(xld(s, i))
    for k in list(range(16)) + [24, 25, 26, 27]:
        for x in range(2): g.bg.append(w2ld(k, x))
    for i in range(4): a(f'v_mov_b32 v{112+i}, s62')
    cf_setup = ['s_lshr_b32 s82, s4, 4', 's_mul_i32 s82, s82, 1792', f's_add_u32 s82, s82, {WS_CF}']
    g.vwait('w1')
    for k in range(28):
        for ft2 in range(2):
            o = 80 + 16 * ft2
            c = f'v[{o}:{o+15}]' if k else '0'
            rr = w1_reg(ft2, k)
            a(f'v_mfma_f32_32x32x16_bf16 v[{o}:{o+15}], a[{rr}:{rr+3}], v[112:115], {c}')
        if k < 14: g.pump(1)
        if k == 16: poll_issue(g, 'v47', cf_setup, 116, 'cf', wide=2)
    a('s_mov_b32 exec_lo, 1')
    a('s_mov_b32 exec_hi, 1')
    for q in range(8):
        g.ds(f'ds_write_b128 v{V_CS}, v[{80+4*q}:{83+4*q}] offset:{(q//4)*128 + (q%4)*16}')
    a('s_mov_b64 exec, -1')
    stamp(g, 8)
    poll_check(g, 'CFP', 'v47', 116, 'cf', wide=2)
    stamp(g, 9)
    a('s_mul_i32 s70, s4, 57344')
    a('s_mul_i32 s72, s3, 14336')
    a('s_add_u32 s70, s70, s72')
    a(f's_add_u32 s70, s70, {WS_YB}')
    YL = [80 + 4 * i for i in range(12)] + [132, 140]
    for i in range(14):
        r = YL[i]
        g.vmem(f'buffer_load_dwordx4 v[{r}:{r+3}], v2, {WSR}, s70 offen offset:{1024*(i%4)} sc1', f'yl{i}')
        if i % 4 == 3: a('s_add_u32 s70, s70, 4096')
    g.pump(4)
    for i in range(14):
        r = YL[i]
        g.vwait(f'yl{i}')
        g.ds(f'ds_write_b128 {"v78" if (i>>1)&1 else "v77"}, v[{r}:{r+3}] offset:{128*i}')
    g.barrier()
    stamp(g, 10)
    y_tr(g, 0)
    r = Rec(g); p3(r, 0, 0, plain=False)
    for i, (_, f) in enumerate(r.items):
        f()
        if i % 20 == 19: g.pump(1)
    for layer in range(2):
        sb = 12 + 16 * layer
        g.barrier()
        stamp(g, sb)
        r = Rec(g)
        if layer == 0:
            y_tr(r, 1)
            r.barrier()
            for k in range(16, 24):
                for x in range(2): g.bg.append(w2ld(k, x))
        else:
            r.at(2); poll_issue(r, f'v{V_FL}', poll_op(3), 76, 'pf')
            r.at(22)
            poll_check(r, 'PX1', f'v{V_FL}', 76, 'pf')
            st_loads(r, 1)
            x_loads(r, 1)
        g.add(r)
        m1f(g, layer, 0, bgp=1 if layer == 0 else 0, bg_from=8)
        stamp(g, sb + 1)
        if layer == 1:
            ln1_combine(g, 1)
            g.vwait('x1')
        r = Rec(g); p3(r, layer, 1, plain=False)
        for i, (_, f) in enumerate(r.items):
            f()
            if i == 180: publish(g, 'hst0', pub_op(4 * layer))
            if layer == 0 and i > 180 and i % 20 == 0: g.pump(1)
        g.barrier()
        stamp(g, sb + 2)
        r = Rec(g)
        r.at(20); poll_issue(r, f'v{V_FL}', poll_op(4 * layer), 126, 'pf')
        g.add(r)
        m1f(g, layer, 1, bgp=1 if layer == 0 else 0)
        stamp(g, sb + 3)
        g.pump(100)
        poll_check(g, f'PH{layer}0', f'v{V_FL}', 126, 'pf')
        stamp(g, sb + 4)
        r = Rec(g)
        publish(r, 'hst1', pub_op(4 * layer + 1))
        r.at(36); poll_issue(r, f'v{V_FL}', poll_op(4 * layer + 1), 76, 'pf')
        g.add(r)
        m2b(g, layer, 0, 5, 0)
        stamp(g, sb + 5)
        g.flush()
        e2_head(g, layer, 0)
        poll_check(g, f'PH{layer}1', f'v{V_FL}', 76, 'pf')
        if layer == 1:
            for k in range(NSL): h_load(g, layer, 1, k)
        e2_tail(g, layer, 0)
        stamp(g, sb + 6)
        r = Rec(g)
        if layer == 0:
            publish(r, 'xst0', pub_op(2))
            r.at(36); poll_issue(r, f'v{V_FL}', poll_op(2), 44, 'pf')
            r.at(52); poll_check(r, 'PX0', f'v{V_FL}', 44, 'pf')
            x_loads(r, 0)
        g.add(r)
        m2b(g, layer, 1, 5, NSL if layer == 1 else 0)
        stamp(g, sb + 7)
        g.flush()
        e2_head(g, layer, 1)
        if layer == 0:
            st_loads(g, 0)
            y_loads(g, 0)
        e2_tail(g, layer, 1)
        stamp(g, sb + 8)
        if layer == 0:
            ln1_combine(g, 0)
            g.vwait('y0')
            stamp(g, sb + 9)
            def yb(e, i):
                if i < 4: return
                for ii in (range(5) if i == 4 else [i]):
                    def f(g, ii=ii):
                        g.a(f's_add_u32 s72, s71, {WS_YX + 4*7168 + 1024*ii}')
                        g.vmem(f'buffer_load_dwordx4 v[{YR+4*ii}:{YR+4*ii+3}], v2, {WSR}, s72 offen sc1', 'y1')
                    e.group(f)
            r = Rec(g); p3(r, 1, 0, plain=False, after_group=yb)
            for i, (_, f) in enumerate(r.items):
                f()
                if i == 150: publish(g, 'xst1', pub_op(3))
            stamp(g, sb + 10)
    prof_end(g, 0x10000)
    g.label('MAIN_END')
    a('s_endpgm')


def main(out):
    asm = Asm()
    pre_kernel(asm)
    main_kernel(asm)
    hdr = open(f'cdna_kernels/{NAME}.s.ref').read().split('; Override launch')[0]
    hdr += f"""; @launch kernel=pre_kernel grid=(224,1,1) block=(256,1,1) lds={PRE_LDS}
; @launch kernel=main_kernel grid=(224,1,1) block=(256,1,1) lds={LDS_BYTES}
.amdgcn_target "amdgcn-amd-amdhsa--gfx950"
.text
"""
    tail = '.section .rodata,"a"\n' + kernel_desc('pre_kernel', 256, sgpr=102) + kernel_desc('main_kernel', 512, sgpr=102, accum=256)
    open(out, 'w').write(hdr + asm.text() + tail)


if __name__ == '__main__':
    gen4.PROF = '--prof' in sys.argv
    main(sys.argv[1] if len(sys.argv) > 1 and not sys.argv[1].startswith('--') else f'cdna_kernels/{NAME}.s')
```

```python
import sys
from collections import deque
from asmlib import *
from gen1 import (NAME, XBYTES, WBYTES, P_Q, P_K, P_V, P_SHK, P_SSMK, P_SSMD, P_W1, P_W2, P_OUT,
                  P_DBG, P_WS, load_args, srd, magic, FC, K2_CB, K2_G, K2_SCR, wg_map)

KNAME = NAME + '_kernel'
WS_KVR = 0x000000
WS_YB = 0x200000
WS_YX = 0x400000
WS_X2 = 0x600000
WS_SP = 0x900000
WS_KF = 0x800000
WS_CF = 0x802000
WS_OF = 0x804000
WS_HB = [0x1000000, 0x1800000]
WS_SIZE = 0x2000000
WS_PROF = 0x2000000
PROF = False
CONV_PUMP = 4

L_W2 = 0
L_R0 = 98304
R_SZ = 28736
L_CS = L_R0 + 2 * R_SZ
L_ST = L_CS + 1024
LDS_BYTES = L_ST + 512
YP = 7184
RING = 14336

WSR = 's[40:43]'
SPIN = 's83'


class Ctr:
    def __init__(self, a, name, maxn):
        self.a, self.name, self.maxn, self.q = a, name, maxn, []

    def issue(self, tag=None): self.q.append(tag)

    def need(self, tag):
        idx = [i for i, t in enumerate(self.q) if t == tag]
        if not idx: return None
        n = len(self.q) - 1 - idx[-1]
        self.q = self.q[idx[-1] + 1:]
        return min(n, self.maxn)

    def wait(self, tag):
        n = self.need(tag)
        if n is not None: self.a(f's_waitcnt {self.name}({n})')

    def wait_all(self):
        self.a(f's_waitcnt {self.name}(0)')
        self.q = []


class G:
    def __init__(self, asm):
        self.asm = asm
        self.vm = Ctr(asm, 'vmcnt', 63)
        self.lg = Ctr(asm, 'lgkmcnt', 15)
        self.bg = deque()
        self.fq = deque()

    def a(self, text): self.asm(text)
    def label(self, n): self.asm.label(n)
    def vmem(self, text, tag=None): self.asm(text); self.vm.issue(tag)
    def ds(self, text, tag=None): self.asm(text); self.lg.issue(tag)
    def vwait(self, tag): self.vm.wait(tag)
    def lwait(self, tag): self.lg.wait(tag)
    def group(self, fn): fn(self)

    def wait2(self, vtag=None, ltag=None):
        parts = []
        for c, t in ((self.vm, vtag), (self.lg, ltag)):
            if t is not None:
                n = c.need(t)
                if n is not None: parts.append(f'{c.name}({n})')
        if parts: self.asm('s_waitcnt ' + ' '.join(parts))

    def barrier(self):
        self.lg.wait_all()
        self.asm('s_barrier')

    def pump(self, n=1):
        for _ in range(n):
            if not self.bg: return
            self.bg.popleft()()

    def fill(self, step, n):
        while n > 0 and self.fq and self.fq[0][0] <= step:
            self.fq.popleft()[1]()
            n -= 1

    def flush(self):
        while self.fq: self.fq.popleft()[1]()

    def add(self, rec, step=0):
        for s, f in rec.items: self.fq.append((max(step, s), f))


class Rec:
    def __init__(self, g): self.g, self.items, self.step = g, [], 0
    def _add(self, f): self.items.append((self.step, f))
    def at(self, step): self.step = step
    def a(self, text): self._add(lambda: self.g.a(text))
    def vmem(self, text, tag=None): self._add(lambda: self.g.vmem(text, tag))
    def ds(self, text, tag=None): self._add(lambda: self.g.ds(text, tag))
    def vwait(self, tag): self._add(lambda: self.g.vwait(tag))
    def lwait(self, tag): self._add(lambda: self.g.lwait(tag))
    def barrier(self): self._add(lambda: self.g.barrier())
    def group(self, fn): self._add(lambda: fn(self.g))


def stamp(e, k):
    if not PROF: return
    def f(g):
        g.a('s_memtime s[100:101]')
        g.lg.wait_all()
        g.a(f'v_writelane_b32 v7, s100, {k}')
    e.group(f)


def w1_reg(ft2, k): return (k * 2 + ft2) * 4


def w2_loc(k, dt):
    if k < 4: return ('a', 224 + k * 8 + dt * 4)
    if k < 16: return ('v', 160 + (k - 4) * 8 + dt * 4)
    return ('l', k - 16)


def reduce8(e, s, t):
    e.a(f'v_add_f32 v{s}, v{s}, v{s} row_ror:8')
    for sw in ('v_permlane16_swap_b32', 'v_permlane32_swap_b32'):
        e.a(f'v_mov_b32 v{t}, v{s}')
        e.a(f'{sw} v{s}, v{t}')
        e.a(f'v_add_f32 v{s}, v{s}, v{t}')


def rnd(e, d, s):
    e.a(f'v_cvt_pk_bf16_f32 v{d}, v{s}, v{s}')
    e.a(f'v_lshlrev_b32 v{d}, 16, v{d}')


def var_to_rinv(e, d, v):
    e.a(f'v_max_f32 v{v}, 0, v{v}')
    rnd(e, v, v)
    e.a(f'v_add_f32 v{v}, 0x3727c5ac, v{v}')
    rnd(e, v, v)
    e.a(f'v_sqrt_f32 v{v}, v{v}')
    rnd(e, v, v)
    e.a(f'v_rcp_f32 v{d}, v{v}')


def poll_issue(e, voff, soff_setup, t, tag, wide=0):
    def f(g):
        for l in soff_setup: g.a(l)
        if wide:
            for i in range(wide):
                g.vmem(f'buffer_load_dwordx4 v[{t+4*i}:{t+4*i+3}], {voff}, {WSR}, s82 offen offset:{896*i} sc1', tag)
        else:
            g.vmem(f'buffer_load_dwordx2 v[{t}:{t+1}], {voff}, {WSR}, s82 offen sc1', tag)
    e.group(f)


def poll_check(e, name, voff, t, tag, wide=0):
    def f(g):
        g.vwait(tag)
        g.label(name)
        n = 2 * wide if wide else 1
        for i in range(n):
            g.a(f'v_xor_b32 v{t+2*i}, s66, v{t+2*i}')
            g.a(f'v_xor_b32 v{t+2*i+1}, s67, v{t+2*i+1}')
        if wide:
            g.a(f'v_or3_b32 v{t}, v{t}, v{t+1}, v{t+2}')
            g.a(f'v_or3_b32 v{t+3}, v{t+3}, v{t+4}, v{t+5}')
            g.a(f'v_or3_b32 v{t}, v{t}, v{t+6}, v{t+7}')
            g.a(f'v_or_b32 v{t}, v{t}, v{t+3}')
        else:
            g.a(f'v_or_b32 v{t}, v{t}, v{t+1}')
        g.a(f'v_cmp_ne_u32 vcc, 0, v{t}')
        g.a(f's_cbranch_vccz {name}_D')
        g.a(f's_add_u32 {SPIN}, {SPIN}, 1')
        g.a(f's_cmp_gt_u32 {SPIN}, 0x40000')
        g.a(f's_cbranch_scc1 {name}_D')
        g.a('s_sleep 4')
        if wide:
            for i in range(wide):
                g.a(f'buffer_load_dwordx4 v[{t+4*i}:{t+4*i+3}], {voff}, {WSR}, s82 offen offset:{896*i} sc1')
        else:
            g.a(f'buffer_load_dwordx2 v[{t}:{t+1}], {voff}, {WSR}, s82 offen sc1')
        g.a('s_waitcnt vmcnt(0)')
        g.a(f's_branch {name}')
        g.label(name + '_D')
    e.group(f)


def publish(e, tag, soff_setup, only=None):
    def f(g):
        g.vwait(tag)
        for l in soff_setup: g.a(l)
        if only: g.a(only)
        g.a('s_mov_b64 exec, 1')
        g.vmem(f'buffer_store_dwordx2 v[4:5], v0, {WSR}, s81 offen sc1')
        g.a('s_mov_b64 exec, -1')
    e.group(f)


RA, RB = 16, 48
YR = 80
TT = 108
BR = 132
WT = 124
V_YT0, V_YT1, V_W2S = 128, 129, 130
V_Q, V_FL, V_XW, V_STW, V_B, V_RES, V_STR, V_CS, V_C0, V_RED, V_XST, V_OST = range(144, 156)
V_C1 = 3
V_ST = 156


def XR(s): return RA if s == 0 else RB
def ST1(s): return 8 + 4 * s


def ln1_stats(e, s, T):
    X = XR(s)
    mb, rinv = ST1(s), ST1(s) + 2
    acc, tmp, dm, sq = T, T + 1, T + 2, T + 4
    e.a(f'v_dot2_f32_bf16 v{acc}, v{X}, s62, 0')
    e.a(f'v_dot2_f32_bf16 v{tmp}, v{X+1}, s62, 0')
    for p in range(2, 28, 2):
        e.a(f'v_dot2_f32_bf16 v{acc}, v{X+p}, s62, v{acc}')
        e.a(f'v_dot2_f32_bf16 v{tmp}, v{X+p+1}, s62, v{tmp}')
    e.a(f'v_add_f32 v{acc}, v{acc}, v{tmp}')
    reduce8(e, acc, tmp)
    e.a(f'v_mul_f32 v{acc}, s63, v{acc}')
    rnd(e, mb, acc)
    e.a(f'v_sub_f32 v{dm}, v{acc}, v{mb}')
    e.a(f'v_sub_f32 v{mb+1}, 0, v{mb}')
    def d(p): return T + 6 + 2 * (p % 3)
    for p in range(30):
        if p < 28:
            e.a(f'v_dot2_f32_bf16 v{d(p)}, v{X+p}, s60, v{mb+1}')
            e.a(f'v_dot2_f32_bf16 v{d(p)+1}, v{X+p}, s61, v{mb+1}')
        if p >= 2:
            q = p - 2
            c = '0' if q == 0 else f'v[{sq}:{sq+1}]'
            e.a(f'v_pk_fma_f32 v[{sq}:{sq+1}], v[{d(q)}:{d(q)+1}], v[{d(q)}:{d(q)+1}], {c}')
    e.a(f'v_add_f32 v{acc}, v{sq}, v{sq+1}')
    reduce8(e, acc, tmp)
    e.a(f'v_mul_f32 v{dm}, v{dm}, v{dm}')
    e.a(f'v_fma_f32 v{acc}, s63, v{acc}, -v{dm}')
    var_to_rinv(e, rinv, acc)
    e.a(f'v_mul_f32 v{rinv+1}, v{mb+1}, v{rinv}')


def st_loads(e, s):
    SB = TT if s == 0 else 116
    e.a(f's_lshr_b32 s72, s71, 1')
    e.a(f's_add_u32 s72, s72, {WS_SP + s*2*7168}')
    for i in range(7):
        e.vmem(f'buffer_load_dwordx2 v[{SB+2*i}:{SB+2*i+1}], v{V_Q}, {WSR}, s72 offen offset:{512*i} sc1', f'sp{s}')


def ln1_combine(e, s):
    mb, rinv = ST1(s), ST1(s) + 2
    SB = TT if s == 0 else 116
    acc, tmp, q, m2 = (TT + 14, TT + 15, TT + 16, TT + 17) if s == 0 else (130, 131, 76, 77)
    e.vwait(f'sp{s}')
    e.a(f'v_add_f32 v{acc}, v{SB}, v{SB+2}')
    e.a(f'v_add_f32 v{m2}, v{SB+1}, v{SB+3}')
    for i in range(2, 7):
        e.a(f'v_add_f32 v{acc}, v{acc}, v{SB+2*i}')
        e.a(f'v_add_f32 v{m2}, v{m2}, v{SB+2*i+1}')
    reduce8(e, acc, tmp)
    e.a(f'v_mul_f32 v{acc}, s63, v{acc}')
    e.a(f'v_mul_f32 v{tmp}, 0xc1000000, v{acc}')
    for i in range(7): e.a(f'v_add_f32 v{SB+2*i}, v{SB+2*i}, v{tmp}')
    e.a(f'v_mul_f32 v{q}, v{SB}, v{SB}')
    for i in range(1, 7): e.a(f'v_fmac_f32 v{q}, v{SB+2*i}, v{SB+2*i}')
    e.a(f'v_fmac_f32 v{m2}, 0x3e000000, v{q}')
    rnd(e, mb, acc)
    reduce8(e, m2, tmp)
    e.a(f'v_mul_f32 v{m2}, s63, v{m2}')
    var_to_rinv(e, rinv, m2)
    e.a(f'v_mul_f32 v{rinv+1}, v{mb}, v{rinv}')
    e.a(f'v_sub_f32 v{rinv+1}, 0, v{rinv+1}')


def p3(e, layer, s, plain=True, after_group=None):
    X = XR(s)
    mb, rinv = ST1(s), ST1(s) + 2
    nm = f'P3_{layer}{s}'
    if layer == 0:
        def yx(g):
            g.a('s_lshl_b32 s72, s5, 10')
            g.a('s_add_u32 s72, s72, s71')
            g.a(f's_add_u32 s72, s72, {WS_YX + s*4*7168}')
            for i in range(7):
                g.a(f's_cmp_lg_u32 s5, {i}')
                g.a(f's_cbranch_scc1 {nm}_YX{i}')
                g.a(f'buffer_store_dwordx4 v[{YR+4*i}:{YR+4*i+3}], v2, {WSR}, s72 offen sc1')
                g.label(f'{nm}_YX{i}')
            g.vm.issue('yx')
        e.group(yx)
    sa, sb = TT + 16, TT + 17
    for i in range(7):
        t, u = TT, TT + 8
        for p in range(4):
            e.a(f'v_lshlrev_b32 v{t+2*p}, 16, v{X+4*i+p}')
            e.a(f'v_and_b32 v{t+2*p+1}, s64, v{X+4*i+p}')
        for h in range(2):
            for x in range(4): e.a(f'v_fma_f32 v{u+x}, v{t+4*h+x}, v{rinv}, v{rinv+1}')
            for p in range(2):
                e.a(f'v_lshlrev_b32 v{u+4+2*p}, 16, v{YR+4*i+2*h+p}')
                e.a(f'v_and_b32 v{u+4+2*p+1}, s64, v{YR+4*i+2*h+p}')
            for x in range(4): e.a(f'v_fmac_f32 v{t+4*h+x}, v{u+x}, v{u+4+x}')
        for p in range(4):
            e.a(f'v_cvt_pk_bf16_f32 v{X+4*i+p}, v{t+2*p}, v{t+2*p+1}')
        e.ds(f'ds_write_b128 v{V_XW}, v[{X+4*i}:{X+4*i+3}] offset:{s*R_SZ + 4096*i}')
        if after_group: after_group(e, i)
        if plain:
            for x in range(8):
                if i == 0 and x == 0:
                    e.a(f'v_mov_b32 v{sa}, v{t}')
                    e.a(f'v_mul_f32 v{sb}, v{t}, v{t}')
                else:
                    e.a(f'v_add_f32 v{sa}, v{sa}, v{t+x}')
                    e.a(f'v_fmac_f32 v{sb}, v{t+x}, v{t+x}')
        else:
            for p in range(4):
                first = (i == 0 and p == 0)
                e.a(f'v_dot2_f32_bf16 v{sa}, v{X+4*i+p}, s62, {"0" if first else f"v{sa}"}')
                e.a(f'v_dot2_f32_bf16 v{sb}, v{X+4*i+p}, v{X+4*i+p}, {"0" if first else f"v{sb}"}')
    ta, tb = TT + 18, TT + 19
    e.a(f'v_add_f32 v{sa}, v{sa}, v{sa} row_ror:8')
    e.a(f'v_add_f32 v{sb}, v{sb}, v{sb} row_ror:8')
    for sw in ('v_permlane16_swap_b32', 'v_permlane32_swap_b32'):
        e.a(f'v_mov_b32 v{ta}, v{sa}')
        e.a(f'v_mov_b32 v{tb}, v{sb}')
        e.a(f'{sw} v{sa}, v{ta}')
        e.a(f'{sw} v{sb}, v{tb}')
        e.a(f'v_add_f32 v{sa}, v{sa}, v{ta}')
        e.a(f'v_add_f32 v{sb}, v{sb}, v{tb}')
    e.a(f'v_mul_f32 v{sa}, s63, v{sa}')
    e.a(f'v_mul_f32 v{ta}, v{sa}, v{sa}')
    e.a(f'v_fma_f32 v{sb}, s63, v{sb}, -v{ta}')
    var_to_rinv(e, tb, sb)
    rnd(e, sa, sa)
    e.a(f'v_sub_f32 v{ta}, 0, v{sa}')
    def w(g):
        g.a('s_mov_b64 exec, 0xff')
        g.ds(f'ds_write_b64 v{V_STW}, v[{ta}:{tb}] offset:{s*256}')
        g.a('s_mov_b64 exec, -1')
    e.group(w)


def y_tr(e, s):
    for i in range(7):
        e.ds(f'ds_read_b64_tr_b16 v[{YR+4*i}:{YR+4*i+1}], v{V_YT0} offset:{s*4*YP + 1024*i}', 'ytr')
        e.ds(f'ds_read_b64_tr_b16 v[{YR+4*i+2}:{YR+4*i+3}], v{V_YT1} offset:{s*4*YP + 1024*i}', 'ytr')
    e.lwait('ytr')


def x_loads(e, s):
    X = XR(s)
    e.a(f's_add_u32 s72, s71, {WS_X2 + s*4*7168}')
    e.a(f's_add_u32 s74, s71, {WS_X2 + s*4*7168 + 4096}')
    for i in range(7):
        so, off = ('s72', 1024 * i) if i < 4 else ('s74', 1024 * (i - 4))
        e.vmem(f'buffer_load_dwordx4 v[{X+4*i}:{X+4*i+3}], v2, {WSR}, {so} offen offset:{off} sc1', f'x{s}')


def y_loads(e, s):
    e.a(f's_add_u32 s72, s71, {WS_YX + s*4*7168}')
    e.a(f's_add_u32 s74, s71, {WS_YX + s*4*7168 + 4096}')
    for i in range(7):
        so, off = ('s72', 1024 * i) if i < 4 else ('s74', 1024 * (i - 4))
        e.vmem(f'buffer_load_dwordx4 v[{YR+4*i}:{YR+4*i+3}], v2, {WSR}, {so} offen offset:{off} sc1', f'y{s}')


def opflag(op): return op * 32 * 256


def m1(g, layer, s, nfill, bgp=0, bg_from=0):
    ACC = XR(s)
    def rd(k):
        sl = BR + 4 * (k % 3)
        g.ds(f'ds_read_b128 v[{sl}:{sl+3}], v{V_B} offset:{s*R_SZ + 1024*k}', f'b{k}')
    rd(0); rd(1)
    RES = 8 + 4 * s
    g.ds(f'ds_read_b128 v[{RES}:{RES+3}], v{V_RES} offset:{s*R_SZ}')
    g.ds(f'ds_read_b64 v[{V_ST+2*s}:{V_ST+2*s+1}], v{V_STR} offset:{s*256}')
    for k in range(28):
        if k + 2 < 28: rd(k + 2)
        g.lwait(f'b{k}')
        sl = BR + 4 * (k % 3)
        for ft2 in range(2):
            o = ACC + 16 * ft2
            c = f'v[{o}:{o+15}]' if k else '0'
            r = w1_reg(ft2, k)
            g.a(f'v_mfma_f32_32x32x16_bf16 v[{o}:{o+15}], a[{r}:{r+3}], v[{sl}:{sl+3}], {c}')
            g.fill(2 * k + ft2, nfill)
        if k >= bg_from: g.pump(bgp)


def e1(e, layer, s, CT, plain=True, halves=(0, 1)):
    ACC = XR(s)
    mm = V_ST + 2 * s
    e.a(f's_add_u32 s73, s75, {WS_HB[layer] + s*112*1024}')
    for ft2 in halves:
        o = ACC + 16 * ft2
        for hb in range(2):
            for q in range(2):
                e.ds(f'ds_read_b128 v[{CT+4*q}:{CT+4*q+3}], v{V_CS} offset:{ft2*128 + hb*32 + q*16}', 'cs')
            e.lwait('cs')
            for x in range(8): e.a(f'v_fmac_f32 v{o+8*hb+x}, v{CT+x}, v{mm}')
        if plain:
            for x in range(16): e.a(f'v_max_f32 v{o+x}, 0, v{o+x}')
        for p in range(8):
            e.a(f'v_cvt_pk_bf16_f32 v{o+p}, v{o+2*p}, v{o+2*p+1}')
        if not plain:
            for p in range(8):
                e.a(f'v_pk_max_i16 v{o+p}, v{o+p}, 0')
        for hf in range(2):
            r = o + 4 * hf
            e.vmem(f'buffer_store_dwordx4 v[{r}:{r+3}], v2, {WSR}, s73 offen offset:{2048*ft2 + 1024*hf} sc1', f'hst{s}')


HSL = [96 + 4 * i for i in range(7)] + [80, 84, 88, 92, 140]
NSL = len(HSL)


def h_slot(s, k): return HSL[(k + 4 * s) % NSL]


def h_load(e, layer, s, k):
    sl = h_slot(s, k)
    def f(g):
        g.a(f's_add_u32 s70, s77, {WS_HB[layer] + s*112*1024 + 4096*(k//4)}')
        g.vmem(f'buffer_load_dwordx4 v[{sl}:{sl+3}], v2, {WSR}, s70 offen offset:{1024*(k%4)} sc1', f'h{s}_{k}')
    e.group(f)


def m2(g, layer, s, nfill, first_issued, after=None):
    ACC = XR(s)
    for k in range(first_issued, NSL): h_load(g, layer, s, k)
    def rdw(k):
        if k == 24:
            g.a(f'v_add_u32 v{V_C0}, 0x10000, v{V_C0}')
            g.a(f'v_add_u32 v{V_C1}, 0x10000, v{V_C1}')
        for dt in range(2):
            r = WT + 8 * (k % 2) + 4 * dt
            for hh in range(2):
                g.ds(f'ds_read_b64_tr_b16 v[{r+2*hh}:{r+2*hh+1}], v{V_C1 if dt else V_C0} offset:{8192*((k-16)%8) + 1024*hh}', f'w{k}')
    for k in range(28):
        if k == 14: g.vwait('w2l')
        if k in (14, 15): rdw(k + 2)
        g.wait2(f'h{s}_{k}', f'w{k}' if k >= 16 else None)
        sl = h_slot(s, k)
        for dt in range(2):
            o = ACC + 16 * dt
            c = f'v[{o}:{o+15}]' if k else '0'
            kind, r = w2_loc(k, dt)
            if kind == 'l': kind, r = 'v', WT + 8 * (k % 2) + 4 * dt
            g.a(f'v_mfma_f32_32x32x16_bf16 v[{o}:{o+15}], {kind}[{r}:{r+3}], v[{sl}:{sl+3}], {c}')
            g.fill(2 * k + dt, nfill)
        if k + NSL < 28: h_load(g, layer, s, k + NSL)
        elif after: after(k)
        if 16 <= k and k + 2 < 28: rdw(k + 2)
    g.a(f'v_subrev_u32 v{V_C0}, 0x10000, v{V_C0}')
    g.a(f'v_subrev_u32 v{V_C1}, 0x10000, v{V_C1}')


def e2_head(g, layer, s):
    ACC = XR(s)
    nm = f'E2_{layer}{s}'
    done = f'{nm}_RD'
    for w in range(4):
        if w < 3:
            g.a(f's_cmp_lg_u32 s3, {w}')
            g.a(f's_cbranch_scc1 {nm}_R{w+1}')
        for t in range(4):
            if t == w: continue
            slot = (w - t - 1) % 4
            for q in range(2):
                r = ACC + 8 * t + 4 * q
                g.a(f'ds_write_b128 v{V_B}, v[{r}:{r+3}] offset:{s*R_SZ + t*6144 + slot*2048 + q*1024}')
        if w != 0:
            for x in range(8): g.a(f'v_mov_b32 v{ACC+x}, v{ACC+8*w+x}')
        if w < 3:
            g.a(f's_branch {done}')
            g.label(f'{nm}_R{w+1}')
    g.label(done)
    for _ in range(6): g.lg.issue()


def e2_tail(e, layer, s, defer=False):
    ACC = XR(s)
    e.barrier()
    for i in range(6):
        e.ds(f'ds_read_b128 v[{ACC+8+4*i}:{ACC+11+4*i}], v{V_RED} offset:{s*R_SZ + 1024*i}', f'rr{i}')
    r2 = V_ST + 2 * s + 1
    for sl in range(3):
        e.lwait(f'rr{2*sl+1}')
        for p in range(4):
            e.a(f'v_pk_add_f32 v[{ACC+2*p}:{ACC+2*p+1}], v[{ACC+2*p}:{ACC+2*p+1}], v[{ACC+8+8*sl+2*p}:{ACC+9+8*sl+2*p}]')
    for x in range(8): e.a(f'v_mul_f32 v{ACC+x}, v{ACC+x}, v{r2}')
    P = ACC + 8
    for p in range(4): e.a(f'v_cvt_pk_bf16_f32 v{P+p}, v{ACC+2*p}, v{ACC+2*p+1}')
    e.a(f'v_permlane32_swap_b32 v{P}, v{P+2}')
    e.a(f'v_permlane32_swap_b32 v{P+1}, v{P+3}')
    RES = 8 + 4 * s
    for p in range(4):
        e.a(f'v_lshlrev_b32 v{ACC+2*p}, 16, v{P+p}')
        e.a(f'v_and_b32 v{ACC+2*p+1}, s64, v{P+p}')
    for p in range(4):
        e.a(f'v_dot2_f32_bf16 v{ACC+2*p}, v{RES+p}, s60, v{ACC+2*p}')
        e.a(f'v_dot2_f32_bf16 v{ACC+2*p+1}, v{RES+p}, s61, v{ACC+2*p+1}')
    for p in range(4): e.a(f'v_cvt_pk_bf16_f32 v{P+20+p}, v{ACC+2*p}, v{ACC+2*p+1}')
    Q = P + 20
    if layer == 0:
        z = ACC + 8
        e.a(f'v_pk_add_f32 v[{z}:{z+1}], v[{ACC}:{ACC+1}], v[{ACC+2}:{ACC+3}]')
        e.a(f'v_pk_add_f32 v[{z+2}:{z+3}], v[{ACC+4}:{ACC+5}], v[{ACC+6}:{ACC+7}]')
        e.a(f'v_pk_add_f32 v[{z}:{z+1}], v[{z}:{z+1}], v[{z+2}:{z+3}]')
        e.a(f'v_add_f32 v{z}, v{z}, v{z+1}')
        e.a(f'v_mul_f32 v{z+2}, 0xbe000000, v{z}')
        for p in range(4):
            e.a(f'v_pk_add_f32 v[{ACC+2*p}:{ACC+2*p+1}], v[{ACC+2*p}:{ACC+2*p+1}], v[{z+2}:{z+3}] op_sel_hi:[1,0]')
        e.a(f'v_pk_mul_f32 v[{z+4}:{z+5}], v[{ACC}:{ACC+1}], v[{ACC}:{ACC+1}]')
        for p in range(1, 4):
            e.a(f'v_pk_fma_f32 v[{z+4}:{z+5}], v[{ACC+2*p}:{ACC+2*p+1}], v[{ACC+2*p}:{ACC+2*p+1}], v[{z+4}:{z+5}]')
        e.a(f'v_add_f32 v{z+1}, v{z+4}, v{z+5}')
        e.a(f'v_lshrrev_b32 v{z+2}, 1, v{V_XST}')
        if not defer: e2_stores(e, s)
    else:
        e.a(f's_add_u32 s73, s79, {s*4*7168}')
        e.vmem(f'buffer_store_dwordx4 v[{Q}:{Q+3}], v{V_OST}, s[52:55], s73 offen')


def e2_stores(e, s):
    ACC = XR(s)
    Q, z = ACC + 28, ACC + 8
    def f(g):
        g.a(f's_add_u32 s73, s78, {WS_X2 + s*4*7168}')
        g.vmem(f'buffer_store_dwordx4 v[{Q}:{Q+3}], v{V_XST}, {WSR}, s73 offen sc1', f'xst{s}')
        g.a('s_lshr_b32 s73, s78, 1')
        g.a(f's_add_u32 s73, s73, {WS_SP + s*2*7168}')
        g.vmem(f'buffer_store_dwordx2 v[{z}:{z+1}], v{z+2}, {WSR}, s73 offen sc1', f'xst{s}')
    e.group(f)


F_W1S, F_W2S, F_T1, F_T2, F_FB, F_VF, F_VG, F_N15, F_G4, F_T16 = 240, 241, 242, 244, 246, 247, 248, 249, 250, 251


def front(g):
    a = g.a
    MK, AC, PR, KO, TAP, KR, VR, HH, FT = 80, 112, 120, 128, 136, 152, 172, 180, 196
    a('v_and_b32 v1, 63, v0')
    a('v_lshrrev_b32 v2, 6, v0')
    a('v_readfirstlane_b32 s3, v2')
    a(f's_mul_hi_u32 s6, s2, {magic(7)}')
    a('s_mul_i32 s7, s6, 7')
    a('s_sub_u32 s7, s2, s7')
    a('v_and_b32 v252, 7, v0')
    a('v_lshrrev_b32 v253, 3, v0')
    a('s_lshl_b32 s8, s6, 6')
    a('v_lshl_add_u32 v254, v253, 1, s8')
    a('s_movk_i32 s8, 896')
    a('v_mul_lo_u32 v254, v254, s8')
    a('s_lshl_b32 s8, s7, 7')
    a('v_lshl_add_u32 v255, v252, 4, s8')
    a('v_add_u32 v254, v254, v255')
    a('v_add_u32 v44, -896, v254')
    a('v_add_u32 v45, -1792, v254')
    a('v_add_u32 v46, -2688, v254')
    a('v_lshlrev_b32 v255, 2, v255')
    a('v_lshlrev_b32 v2, 4, v1')
    a('s_waitcnt lgkmcnt(0)')
    srd(a, 88, P_SHK, 0, 448 * 8)
    srd(a, 56, P_K, 0, XBYTES)
    srd(a, 84, P_V, 0, XBYTES)
    for i in range(4):
        g.vmem(f'buffer_load_dwordx4 v[{TAP+4*i}:{TAP+4*i+3}], v255, s[88:91], 0 offen offset:{16*i}', 'tap')
    g.vmem(f'buffer_load_dwordx4 v[{KR}:{KR+3}], v46, s[56:59], 0 offen', 'k')
    g.vmem(f'buffer_load_dwordx4 v[{KR+4}:{KR+7}], v45, s[56:59], 0 offen', 'k')
    g.vmem(f'buffer_load_dwordx4 v[{KR+8}:{KR+11}], v44, s[56:59], 0 offen', 'k')
    g.vmem(f'buffer_load_dwordx4 v[{KR+12}:{KR+15}], v254, s[56:59], 0 offen', 'k')
    g.vmem(f'buffer_load_dwordx4 v[{KR+16}:{KR+19}], v254, s[56:59], 0 offen offset:896', 'k')
    g.vmem(f'buffer_load_dwordx4 v[{VR}:{VR+3}], v254, s[84:87], 0 offen', 'v')
    g.vmem(f'buffer_load_dwordx4 v[{VR+4}:{VR+7}], v254, s[84:87], 0 offen offset:896', 'v')
    srd(a, 88, P_DBG, 0, 256)
    srd(a, 40, P_WS, 0, WS_SIZE + (0x100000 if PROF else 0))
    a('v_mov_b32 v0, 0')
    a('s_or_b32 s8, s2, s3')
    a('s_cmp_lg_u32 s8, 0')
    a('s_cbranch_scc1 NONCE_SKIP')
    a('s_memrealtime s[8:9]')
    a('s_waitcnt lgkmcnt(0)')
    a('s_or_b32 s8, s8, 1')
    a('v_mov_b32 v4, s8')
    a('buffer_store_dword v4, v0, s[88:91], 0 offen sc1')
    g.label('NONCE_SKIP')
    a('s_lshr_b32 s8, s3, 1')
    a('s_and_b32 s9, s3, 1')
    a('s_lshl_b32 s10, s2, 1')
    a('s_add_u32 s10, s10, s8')
    a('s_lshl_b32 s11, s10, 12')
    a(f's_mul_i32 s12, s8, {K2_CB}')
    a('s_lshl_b32 s13, s9, 11')
    a(f'v_add_u32 v{F_T16}, s13, v2')
    a(f'v_add_u32 v8, -16, v{F_T16}')
    srd(a, 44, P_SSMK, 's11', 4096)
    a('s_lshl_b32 s14, s2, 2')
    a('s_load_dword s15, s[26:27], s14')
    a('s_lshl_b32 s68, s7, 2')
    a('s_add_u32 s68, s68, s3')
    a('s_sub_u32 s69, 31, s6')
    a('s_lshl_b32 s80, s68, 16')
    a('s_lshl_b32 s70, s69, 7')
    a('s_add_u32 s80, s80, s70')
    a('s_lshl_b32 s81, s68, 5')
    a('s_add_u32 s81, s81, s69')
    a('s_lshl_b32 s81, s81, 3')
    a(f's_add_u32 s81, s81, {WS_KF}')
    a(f'v_lshrrev_b32 v{F_G4}, 4, v1')
    a('v_bfe_u32 v10, v1, 2, 2')
    a('v_and_b32 v11, 3, v1')
    a(f'v_lshl_add_u32 v12, v{F_G4}, 3, v10')
    a('v_mul_u32_u24 v12, 144, v12')
    a('v_lshl_add_u32 v12, v11, 3, v12')
    a('s_lshl_b32 s13, s3, 5')
    a(f's_add_u32 s13, s13, {K2_SCR}')
    a('v_add_u32 v12, s13, v12')
    a(f'v_and_b32 v{F_N15}, 15, v1')
    a(f'v_mul_u32_u24 v13, 144, v{F_N15}')
    a(f'v_lshl_add_u32 v13, v{F_G4}, 4, v13')
    a(f's_mul_i32 s13, s3, {RING}')
    a(f's_add_u32 s13, s13, {L_R0}')
    a('v_add_u32 v13, s13, v13')
    a('v_lshrrev_b32 v46, 3, v1')
    a('v_and_b32 v47, 7, v1')
    a('v_mul_u32_u24 v44, 144, v46')
    a('v_lshl_add_u32 v44, v47, 4, v44')
    a('v_add_u32 v76, s13, v44')
    a('v_lshlrev_b32 v46, 12, v46')
    a('v_lshl_add_u32 v77, v47, 4, v46')
    a('v_mov_b32 v254, v76')
    a('v_mov_b32 v255, v77')
    a('v_lshlrev_b32 v14, 1, v253')
    a('v_sub_u32 v14, 62, v14')
    a('v_mul_u32_u24 v14, 144, v14')
    a('v_lshl_add_u32 v14, v252, 4, v14')
    a(f'v_add_u32 v14, {K2_SCR}, v14')
    wg_map(a)
    a('v_and_b32 v3, 7, v1')
    a('v_lshrrev_b32 v6, 3, v1')
    a('v_xor_b32 v15, v3, v6')
    a('v_lshlrev_b32 v15, 4, v15')
    a('s_movk_i32 s13, 896')
    a('v_mad_u32_u24 v15, v6, s13, v15')
    a('s_lshl_b32 s71, s4, 3')
    a('s_add_u32 s71, s71, s3')
    a('s_mul_i32 s71, s71, 7168')
    a(f's_add_u32 s72, s71, {4*7168}')
    srd(a, 48, P_Q, 0, XBYTES)
    a('s_mov_b32 s60, 0x00003f80')
    a('s_mov_b32 s61, 0x3f800000')
    a('s_mov_b32 s62, 0x3f803f80')
    a('s_mov_b32 s63, 0x3b124925')
    a('s_mov_b32 s64, 0xffff0000')
    a('s_mov_b32 s65, 0xffff')
    a(f's_mov_b32 {SPIN}, 0')
    srd(a, 92, P_W1, 0, WBYTES)
    srd(a, 96, P_W2, 0, WBYTES)
    a('v_bfe_u32 v76, v1, 4, 1')
    a('v_lshlrev_b32 v76, 2, v76')
    a('v_xor_b32 v76, v76, v3')
    a('v_lshlrev_b32 v76, 4, v76')
    a('s_movk_i32 s13, 3584')
    a(f'v_mad_u32_u24 v{F_W1S}, v6, s13, v76')
    a('s_movk_i32 s13, 896')
    a(f'v_mad_u32_u24 v{F_W2S}, v6, s13, v76')
    a('s_lshl_b32 s56, s5, 9')
    a('s_lshl_b32 s13, s3, 7')
    a('s_add_u32 s56, s56, s13')
    a(f's_mul_i32 s57, s3, {448*896}')
    a('s_lshl_b32 s13, s5, 7')
    a('s_add_u32 s57, s57, s13')
    a(f's_mul_i32 s58, s3, {RING}')
    a(f's_add_u32 s58, s58, {L_R0}')
    a('s_lshl_b32 s59, s3, 11')
    a(f'v_and_b32 v76, 1, v{F_G4}')
    a('v_lshlrev_b32 v76, 5, v76')
    a('v_lshl_add_u32 v76, v11, 3, v76')
    a('v_lshl_add_u32 v76, v10, 7, v76')
    a('v_lshrrev_b32 v77, 1, v10')
    a('v_lshlrev_b32 v77, 6, v77')
    a('v_xor_b32 v78, 64, v77')
    a(f'v_lshrrev_b32 v79, 1, v{F_G4}')
    a('v_lshl_add_u32 v44, v79, 10, v76')
    a('v_lshl_add_u32 v45, v79, 9, v76')
    a(f'v_add3_u32 v{F_T1}, v44, v77, s58')
    a(f'v_add3_u32 v{F_T1+1}, v44, v78, s58')
    a(f'v_add3_u32 v{F_T2}, v45, v77, s58')
    a(f'v_add3_u32 v{F_T2+1}, v45, v78, s58')

    a('v_xor_b32 v78, v3, v6')
    a('v_lshl_add_u32 v78, v3, 3, v78')
    a('v_lshl_add_u32 v78, v78, 4, s58')
    g.w2s, g.w2t, g.fixw = F_W2S, F_T2, 252
    a('v_add_u32 v79, s58, v2')
    def qraw(s):
        for gi in range(7 * s, 7 * s + 7):
            r = XR(gi // 7) + 4 * (gi % 7)
            g.vmem(f'buffer_load_dwordx4 v[{r}:{r+3}], v15, s[48:51], s{71+gi//7} offen offset:{128*(gi%7)}', f'q{gi//7}')
    def qrd(s):
        g.vwait(f'q{s}')
        for i in range(7):
            r = XR(s) + 4 * i
            g.ds(f'ds_write_b128 v79, v[{r}:{r+3}] offset:{(7+i)*1024}', 'qw')
        g.lwait('qw')
        for i in range(7):
            r = XR(s) + 4 * i
            g.ds(f'ds_read_b128 v[{r}:{r+3}], v78 offset:{(7+i)*1024}', 'qr')
    g.qrd, g.qraw = qrd, qraw
    def w1raw(k, x):
        def f():
            r = w1_reg(x, k)
            g.vmem(f'buffer_load_dwordx4 a[{r}:{r+3}], v{F_W1S}, s[92:95], s56 offen', f'r1_{k}')
            a('s_add_u32 s56, s56, 28672')
        return f
    def w2raw(k, x):
        def f():
            kd, r = w2_loc(k, x)
            a(f's_add_u32 s13, s57, {7168*(2*k + x)}')
            g.vmem(f'buffer_load_dwordx4 {kd}[{r}:{r+3}], v{g.w2s}, s[96:99], s13 offen', f'r2_{k}')
        return f
    def w2l(k):
        def f():
            for blk in range(2):
                a(f's_add_u32 m0, s59, {(k-16)*8192 + blk*1024}')
                a(f's_add_u32 s13, s57, {7168*(2*k + blk)}')
                g.vmem(f'buffer_load_dwordx4 v{g.w2s}, s[96:99], s13 offen lds', 'w2l')
        return f
    def fix_w(mat, k, slot):
        def f():
            g.vwait(f'r{mat}_{k}')
            g.lwait(f'fx{slot}')
            for x in range(2):
                kd, r = ('a', w1_reg(x, k)) if mat == 1 else w2_loc(k, x)
                wa = 'v79' if mat == 1 else f'v{g.fixw}'
                g.ds(f'ds_write_b128 {wa}, {kd}[{r}:{r+3}] offset:{slot*2048 + 1024*x}', f'fw{mat}_{k}')
        return f
    def fix_r(mat, k, slot):
        def f():
            g.lwait(f'fw{mat}_{k}')
            for x in range(2):
                for hh in range(2):
                    if mat == 1:
                        r = w1_reg(x, k) + 2 * hh
                        g.ds(f'ds_read_b64_tr_b16 a[{r}:{r+1}], v{F_T1+x} offset:{slot*2048 + 512*hh}', f'fx{slot}')
                    else:
                        kd, r = w2_loc(k, x)
                        r += 2 * hh
                        g.ds(f'ds_read_b64_tr_b16 {kd}[{r}:{r+1}], v{g.w2t+x} offset:{slot*2048 + 1024*hh}', f'fx{slot}')
        return f
    g.fix_ok = lambda: (57 - len(g.fixq)) // 2 + 1 <= (56 - len(g.bg) - 12) // 2
    g.w1raw, g.w2raw, g.w2l, g.fix_w, g.fix_r = w1raw, w2raw, w2l, fix_w, fix_r
    for k in range(28):
        for x in range(2): g.bg.append(w1raw(k, x))
    g.fixq = deque()
    g.fix_w_done, g.fix_r_done = 0, 0
    def fw(k):
        def f(): fix_w(1, k, k % 3)(); g.fix_w_done = k + 1
        return f
    def fr(k):
        def f(): fix_r(1, k, k % 3)(); g.fix_r_done = k + 1
        return f
    for k in range(30):
        if k < 28: g.fixq.append(fw(k))
        if k >= 2: g.fixq.append(fr(k - 2))
    g.fix_ok = lambda: g.fix_w_done + 1 <= (56 - len(g.bg) - 12) // 2
    g.vwait('tap')
    for e in range(8):
        A, B = TAP + 2 * e, TAP + 2 * e + 1
        if e % 2 == 0:
            a(f'v_and_b32 v{MK+e}, s65, v{A}')
            a(f'v_lshrrev_b32 v{MK+8+e}, 16, v{A}')
            a(f'v_and_b32 v{MK+16+e}, s65, v{B}')
            a(f'v_lshrrev_b32 v{MK+24+e}, 16, v{B}')
        else:
            a(f'v_lshlrev_b32 v{MK+e}, 16, v{A}')
            a(f'v_and_b32 v{MK+8+e}, s64, v{A}')
            a(f'v_lshlrev_b32 v{MK+16+e}, 16, v{B}')
            a(f'v_and_b32 v{MK+24+e}, s64, v{B}')
    g.vwait('v')
    stamp(g, 1)
    g.vmem(f'buffer_load_dwordx4 v[{HH}:{HH+3}], v8, s[44:47], 0 offen', 'h0')
    g.vmem(f'buffer_load_dwordx4 v[{HH+4}:{HH+7}], v{F_T16}, s[44:47], 0 offen', 'h0')
    g.vmem(f'buffer_load_dwordx4 v[{HH+8}:{HH+11}], v{F_T16}, s[44:47], 0 offen offset:1008', 'h1')
    g.vmem(f'buffer_load_dwordx4 v[{HH+12}:{HH+15}], v{F_T16}, s[44:47], 0 offen offset:1024', 'h1')
    g.vmem('buffer_load_dword v252, v0, s[88:91], 0 offen sc1', 'nonce')
    for rr in range(2):
        K3, K2, K1, K0 = [KR + 4 * (rr + i) for i in range(4)]
        for e in range(8): a(f'v_dot2_f32_bf16 v{AC+e}, v{K3+e//2}, v{MK+24+e}, 0')
        for e in range(8): a(f'v_dot2_f32_bf16 v{PR+e}, v{K2+e//2}, v{MK+16+e}, 0')
        for Kx, m in ((K1, 8), (K0, 0), (None, None)):
            for e in range(8): a(f'v_cvt_pk_bf16_f32 v{AC+e}, v{AC+e}, v{PR+e}')
            if Kx is not None:
                for e in range(8): a(f'v_dot2_f32_bf16 v{PR+e}, v{Kx+e//2}, v{MK+m+e}, 0')
            for e in range(8): a(f'v_dot2_f32_bf16 v{AC+e}, v{AC+e}, s62, 0')
        for p in range(4): a(f'v_cvt_pk_bf16_f32 v{PR+p}, v{AC+2*p}, v{AC+2*p+1}')
        if rr == 0: g.vwait('v')
        for p in range(4):
            a(f'v_and_b32 v{AC+2*p}, s65, v{VR+4*rr+p}')
            a(f'v_and_b32 v{AC+2*p+1}, s64, v{VR+4*rr+p}')
        for e in range(8): a(f'v_dot2_f32_bf16 v{AC+e}, v{PR+e//2}, v{AC+e}, 0')
        for p in range(4): a(f'v_cvt_pk_bf16_f32 v{KO+4*rr+p}, v{AC+2*p}, v{AC+2*p+1}')
        g.ds(f'ds_write_b128 v14, v[{KO+4*rr}:{KO+4*rr+3}] offset:{144*(1-rr)}')
        if rr == 0:
            a('s_lshl_b32 s84, s2, 2')
            a('s_add_u32 s84, s84, s3')
            a('s_lshl_b32 s14, s84, 11')
            a('s_mul_i32 s84, s84, 1792')
            g.vmem(f'buffer_load_dwordx4 v[{TAP}:{TAP+3}], v2, s[92:95], s84 offen')
            g.vmem(f'buffer_load_dwordx4 v[{TAP+4}:{TAP+7}], v2, s[92:95], s84 offen offset:768')
            g.vmem(f'buffer_load_dwordx4 v[{TAP+8}:{TAP+11}], v2, s[48:51], s14 offen')
            g.vmem(f'buffer_load_dwordx4 v[{TAP+12}:{TAP+15}], v2, s[48:51], s14 offen offset:1024')
    g.barrier()
    for u in range(2):
        for hh in range(2):
            g.ds(f'ds_read_b64_tr_b16 v[{KO+4*u+2*hh}:{KO+4*u+2*hh+1}], v12 offset:{(32*u+4*hh)*144}', f'kt{u}')
    for u in range(2):
        g.lwait(f'kt{u}')
        g.ds(f'ds_write_b128 v13, v[{KO+4*u}:{KO+4*u+3}] offset:{64*u}', 'k2w')
    g.lwait('k2w')
    for u in range(2):
        g.ds(f'ds_read_b128 v[{KO+4*u}:{KO+4*u+3}], v254 offset:{8*144*u}', f'k2r{u}')
    a('s_add_u32 s13, s80, 32768')
    for u in range(2):
        g.lwait(f'k2r{u}')
        g.vmem(f'buffer_store_dwordx4 v[{KO+4*u}:{KO+4*u+3}], v255, {WSR}, {"s13" if u else "s80"} offen sc1', 'kst')
    stamp(g, 2)
    g.vwait('nonce')
    g.label('NONCE_P')
    a('v_readfirstlane_b32 s66, v252')
    a('s_cmp_lg_u32 s66, 0')
    a('s_cbranch_scc1 NONCE_D')
    a(f's_add_u32 {SPIN}, {SPIN}, 1')
    a(f's_cmp_gt_u32 {SPIN}, 0x40000')
    a('s_cbranch_scc1 NONCE_D')
    a('buffer_load_dword v252, v0, s[88:91], 0 offen sc1')
    a('s_waitcnt vmcnt(0)')
    a('s_branch NONCE_P')
    g.label('NONCE_D')
    a('s_not_b32 s67, s66')
    a('v_mov_b32 v4, s66')
    a('v_mov_b32 v5, s67')
    stamp(g, 24)
    a(f'v_add_u32 v{F_FB}, s12, v{F_T16}')
    for i in range(4): a(f'v_mov_b32 v{236+i}, 0')
    a(f'v_lshlrev_b32 v{F_VF}, 2, v3')
    a('s_mov_b32 s14, 0x1cb88541')
    a(f'v_lshrrev_b32 v{F_VF}, v{F_VF}, s14')
    a(f'v_and_b32 v{F_VF}, 15, v{F_VF}')
    a('v_mul_u32_u24 v252, 272, v3')
    a(f'v_add_u32 v{F_VF}, v{F_VF}, v252')
    a(f'v_lshl_add_u32 v{F_VF}, v{F_VF}, 4, s12')
    a('s_cmp_eq_u32 s9, 0')
    a('s_cbranch_scc0 CV_Z1')
    a('s_mov_b64 exec, 0xff')
    a(f'ds_write_b128 v{F_VF}, v[236:239]')
    a('s_mov_b64 exec, -1')
    a('s_branch CV_Z2')
    g.label('CV_Z1')
    a('v_add_u32 v252, s12, v2')
    a(f'ds_write_b128 v252, v[236:239] offset:{K2_G+4096}')
    g.label('CV_Z2')
    g.lg.issue()
    a('v_bfe_u32 v252, v1, 3, 1')
    a(f'v_add_u32 v252, v252, v{F_G4}')
    a(f'v_lshl_add_u32 v{F_VF}, v252, 4, v{F_VF}')
    a('s_lshl_b32 s14, s9, 8')
    a(f'v_add_u32 v{F_VF}, s14, v{F_VF}')
    a(f'v_lshlrev_b32 v{F_VG}, 5, v{F_N15}')
    a(f'v_lshlrev_b32 v252, 4, v{F_G4}')
    a(f'v_sub_u32 v{F_VG}, v252, v{F_VG}')
    a('s_add_u32 s14, s14, s12')
    a(f's_add_u32 s14, s14, {K2_G+480}')
    a(f'v_add_u32 v{F_VG}, s14, v{F_VG}')
    for p in range(2):
        d = HH + 8 * p
        t = FT + 20 * p
        g.vwait(f'h{p}')
        for k in range(6): a(f'v_mov_b32 v{t+k}, v{d+1+k}')
        for k in range(6): a(f'v_alignbyte_b32 v{t+6+k}, v{d+k+1}, v{d+k}, 2')
        for k in range(6): a(f'v_alignbyte_b32 v{t+12+k}, v{d+k+2}, v{d+k+1}, 2')
        src = {1: t + 6, 2: t, 3: t + 12, 4: d + 2, 5: t + 8, 6: t + 2, 7: t + 14, 8: d + 4}
        for r in range(1, 9):
            off = ((r - 1) * 272 + FC[r - 1] + 1) * 16 + 1024 * p
            g.ds(f'ds_write_b128 v{F_FB}, v[{src[r]}:{src[r]+3}] offset:{off}')
            if r in (3, 6) : g.pump(2)
    stamp(g, 25)
    publish(g, 'kst', [])
    stamp(g, 3)
    qraw(0)
    a('v_min_u32 v255, 15, v1')
    a('v_lshlrev_b32 v255, 3, v255')
    setup = ['s_lshr_b32 s82, s10, 4', 's_lshl_b32 s82, s82, 8', 's_lshl_b32 s14, s9, 7', 's_add_u32 s82, s82, s14',
             f's_add_u32 s82, s82, {WS_KF}']
    poll_issue(g, 'v255', setup, KO, 'kf')
    g.pump(10)
    g.qrd(0)
    stamp(g, 26)
    poll_check(g, 'KFP', 'v255', KO, 'kf')
    stamp(g, 4)
    g.vmem(f'buffer_load_dwordx4 v[{KO}:{KO+3}], v{F_T16}, {WSR}, s11 offen sc1', 'kv0')
    g.vmem(f'buffer_load_dwordx4 v[{KO+4}:{KO+7}], v{F_T16}, {WSR}, s11 offen offset:1024 sc1', 'kv1')
    qraw(1)
    g.lwait('qr')
    r = Rec(g); ln1_stats(r, 0, 80)
    for i, (_, f) in enumerate(r.items):
        f()
        if i % 20 == 19: g.pump(1)
        if i % 10 == 4 and g.fix_ok(): g.fixq.popleft()()
    stamp(g, 27)
    g.vwait('kv0')
    g.ds(f'ds_write_b128 v{F_FB}, v[{KO}:{KO+3}] offset:{K2_G}')
    g.vwait('kv1')
    g.ds(f'ds_write_b128 v{F_FB}, v[{KO+4}:{KO+7}] offset:{K2_G+1024}')
    g.barrier()
    stamp(g, 5)


def conv(g):
    a = g.a
    ACC = 80
    def Fr(b, s): return 112 + 64 * b + 4 * s
    def Gr(b, t): return 144 + 64 * b + 4 * t
    def reads(qq):
        b = qq & 1
        L = []
        for t in range(8):
            L.append((f'ds_read_b128 v[{Fr(b,t)}:{Fr(b,t)+3}], v{F_VF} offset:{512*t+64*qq}', f'c{qq}_{t}'))
            L.append((f'ds_read_b128 v[{Gr(b,t)}:{Gr(b,t)+3}], v{F_VG} offset:{512*(7-t)+64*qq}', f'c{qq}_{t}'))
        return L
    for l, tg in reads(0): g.ds(l, tg)
    if getattr(g, 'w2pt', True):
        g.vmem('buffer_load_dwordx4 v[44:47], v2, s[96:99], s84 offen')
        g.vmem('buffer_load_dwordx4 v[252:255], v2, s[96:99], s84 offen offset:768', 'pt2')
    started = set()
    nm = 0
    for qq in range(4):
        b = qq & 1
        nxt = reads(qq + 1) if qq < 3 else []
        for m in range(8):
            pairs = [(s, t) for s in range(m + 1) for t in range(m + 1) if max(s, t) == m and s + t <= 7]
            g.lwait(f'c{qq}_{m}')
            for (s, t) in pairs:
                o = ACC + 4 * (s + t)
                c = f'v[{o}:{o+3}]' if (s + t) in started else '0'
                started.add(s + t)
                a(f'v_mfma_f32_16x16x32_bf16 v[{o}:{o+3}], v[{Fr(b,s)}:{Fr(b,s)+3}], v[{Gr(b,t)}:{Gr(b,t)+3}], {c}')
                nm += 1
                if nxt and m >= 2:
                    l, tg = nxt.pop(0); g.ds(l, tg)
                if nm % CONV_PUMP == 0: g.pump(1)
                if nm % 3 == 2 and g.fixq and g.fix_ok(): g.fixq.popleft()()
        for l, tg in nxt: g.ds(l, tg)
    stamp(g, 6)
    g.vwait('pt2')
    a('s_lshl_b32 s14, s3, 12')
    a(f's_add_u32 s14, s14, {K2_SCR}')
    a('v_add_u32 v44, s14, v2')
    a('s_xor_b32 s14, s3, 1')
    a('s_lshl_b32 s14, s14, 12')
    a(f's_add_u32 s14, s14, {K2_SCR}')
    a('v_add_u32 v45, s14, v2')
    a('s_cmp_eq_u32 s9, 0')
    a('s_cbranch_scc0 CV_R1')
    for j in range(4):
        a(f'ds_write_b128 v44, v[{ACC+16+4*j}:{ACC+19+4*j}] offset:{1024*j}')
    a('s_branch CV_R2')
    g.label('CV_R1')
    for j in range(4):
        a(f'ds_write_b128 v44, v[{ACC+4*j}:{ACC+3+4*j}] offset:{1024*j}')
    for j in range(16):
        a(f'v_mov_b32 v{ACC+j}, v{ACC+16+j}')
    g.label('CV_R2')
    a(f'v_lshlrev_b32 v46, 5, v{F_N15}')
    a(f'v_lshl_add_u32 v46, v{F_G4}, 3, v46')
    a('s_lshl_b32 s14, s9, 11')
    a(f's_sub_u32 s14, {K2_G + 4088 - 3*512}, s14')
    a('s_add_u32 s14, s14, s12')
    a('v_sub_u32 v46, s14, v46')
    for j in range(4):
        a(f'ds_read_b64 v[{128+2*j}:{129+2*j}], v46 offset:{(3-j)*512}')
    a('s_lshl_b32 s14, s15, 16')
    a('s_and_b32 s15, s15, 0xffff0000')
    a('s_cmp_eq_u32 s8, 0')
    a('s_cselect_b32 s15, s14, s15')
    g.barrier()
    for j in range(4):
        g.ds(f'ds_read_b128 v[{112+4*j}:{115+4*j}], v45 offset:{1024*j}', f'r{j}')
    a('s_lshl_b32 s14, s9, 11')
    a('s_add_u32 s14, s14, s12')
    a(f'v_lshlrev_b32 v46, 5, v{F_N15}')
    a(f'v_lshl_add_u32 v46, v{F_G4}, 3, v46')
    a('v_add_u32 v46, s14, v46')
    a('v_add_u32 v44, s14, v2')
    a('s_lshl_b32 s14, s9, 4')
    a('v_add_u32 v47, s14, v6')
    a('v_mul_u32_u24 v47, 448, v47')
    a('v_add_u32 v47, s10, v47')
    a('v_lshlrev_b32 v47, 7, v47')
    a('v_lshl_add_u32 v47, v3, 4, v47')
    for j in range(4):
        g.lwait(f'r{j}')
        for r in range(4): a(f'v_add_f32 v{ACC+4*j+r}, v{ACC+4*j+r}, v{112+4*j+r}')
        k0, k1 = 128 + 2 * j, 129 + 2 * j
        a(f'v_and_b32 v144, s64, v{k1}')
        a(f'v_lshlrev_b32 v145, 16, v{k1}')
        a(f'v_and_b32 v146, s64, v{k0}')
        a(f'v_lshlrev_b32 v147, 16, v{k0}')
        for r in range(4): a(f'v_mul_f32 v{144+r}, s15, v{144+r}')
        for r in range(4): a(f'v_cvt_pk_bf16_f32 v{144+r}, v{144+r}, v{ACC+4*j+r}')
        for r in range(4): a(f'v_dot2_f32_bf16 v{144+r}, v{144+r}, s62, 0')
        a(f'v_cvt_pk_bf16_f32 v{148+2*j}, v144, v145')
        a(f'v_cvt_pk_bf16_f32 v{149+2*j}, v146, v147')
        g.ds(f'ds_write_b64 v46, v[{148+2*j}:{149+2*j}] offset:{512*j}', 'y3w')
    g.lwait('y3w')
    for u in range(2):
        g.ds(f'ds_read_b128 v[{112+4*u}:{115+4*u}], v44 offset:{1024*u}', f'y3r{u}')
    for u in range(2):
        g.lwait(f'y3r{u}')
        a(f's_mov_b32 s14, {WS_YB + u*8*448*128}')
        g.vmem(f'buffer_store_dwordx4 v[{112+4*u}:{115+4*u}], v47, {WSR}, s14 offen sc1', 'yst')


def setup_gemm(g):
    a = g.a
    a(f'v_min_u32 v{V_FL}, 27, v1')
    a(f'v_lshlrev_b32 v{V_FL}, 3, v{V_FL}')
    a(f'v_lshrrev_b32 v{V_XW}, 1, v6')
    a(f'v_lshlrev_b32 v{V_XW}, 10, v{V_XW}')
    a(f'v_and_b32 v{V_STW}, 1, v6')
    a(f'v_lshl_add_u32 v{V_XW}, v{V_STW}, 9, v{V_XW}')
    a(f'v_lshl_add_u32 v{V_XW}, v3, 4, v{V_XW}')
    a('s_lshl_b32 s70, s3, 7')
    a(f's_add_u32 s70, s70, {L_R0}')
    a(f'v_add_u32 v{V_XW}, s70, v{V_XW}')
    a('s_lshl_b32 s70, s3, 6')
    a(f's_add_u32 s70, s70, {L_ST}')
    a(f'v_lshl_add_u32 v{V_STW}, v3, 3, s70')
    a(f'v_add_u32 v{V_B}, {L_R0}, v2')
    a('s_lshl_b32 s70, s5, 2')
    a('s_add_u32 s70, s70, s3')
    a('s_lshl_b32 s70, s70, 10')
    a(f'v_add_u32 v{V_RES}, s70, v{V_B}')
    a(f'v_and_b32 v{V_STR}, 31, v1')
    a(f'v_mul_u32_u24 v{V_OST}, 896, v{V_STR}')
    a(f'v_lshlrev_b32 v{V_STR}, 3, v{V_STR}')
    a(f'v_add_u32 v{V_STR}, {L_ST}, v{V_STR}')
    a(f'v_lshrrev_b32 v{V_Q}, 5, v1')
    a('s_lshl_b32 s70, s3, 8')
    a(f's_add_u32 s70, s70, {L_CS}')
    a(f'v_lshl_add_u32 v{V_CS}, v{V_Q}, 6, s70')
    a('s_mul_i32 s70, s3, 6144')
    a(f'v_add_u32 v{V_RED}, s70, v{V_B}')
    a(f'v_bfe_u32 v{V_XST}, v1, 3, 2')
    a(f'v_mul_u32_u24 v{V_XST}, 7168, v{V_XST}')
    a(f'v_lshl_add_u32 v{V_XST}, v3, 4, v{V_XST}')
    a('s_lshl_b32 s70, s3, 1')
    a(f'v_add_u32 v{V_Q}, s70, v{V_Q}')
    a(f'v_lshl_add_u32 v{V_XST}, v{V_Q}, 7, v{V_XST}')
    a(f'v_lshl_add_u32 v{V_OST}, v{V_Q}, 4, v{V_OST}')
    a('s_lshl_b32 s69, s4, 8')
    a(f's_add_u32 s69, s69, {WS_OF}')
    a('s_lshl_b32 s76, s5, 2')
    a('s_add_u32 s76, s76, s3')
    a('s_lshl_b32 s75, s76, 12')
    a('s_lshl_b32 s76, s76, 3')
    a('s_add_u32 s76, s76, s69')
    a(f's_mul_i32 s77, s4, {224*1024}')
    a('s_add_u32 s75, s75, s77')
    a(f's_mul_i32 s70, s3, {28*1024}')
    a('s_add_u32 s77, s77, s70')
    a('s_mul_i32 s78, s4, 57344')
    a('s_lshl_b32 s70, s5, 7')
    a('s_add_u32 s79, s78, s70')
    a('s_lshl_b32 s70, s5, 10')
    a('s_add_u32 s78, s78, s70')
    srd(a, 52, P_OUT, 0, XBYTES)
    a(f'v_mul_u32_u24 v76, {YP}, v3')
    a('s_mul_i32 s70, s3, 1792')
    a('v_add_u32 v76, s70, v76')
    a('s_and_b32 s70, s3, 1')
    a('s_lshl_b32 s70, s70, 2')
    a('v_xor_b32 v77, s70, v6')
    a('v_xor_b32 v78, 4, v77')
    a('v_lshl_add_u32 v77, v77, 4, v76')
    a('v_lshl_add_u32 v78, v78, 4, v76')
    a('v_lshrrev_b32 v44, 4, v1')
    a('v_bfe_u32 v45, v1, 1, 1')
    a('v_lshl_add_u32 v45, v44, 1, v45')
    a('v_lshlrev_b32 v45, 7, v45')
    a('v_bfe_u32 v46, v1, 2, 2')
    a('v_lshl_add_u32 v45, v46, 4, v45')
    a('v_and_b32 v46, 1, v1')
    a('v_lshl_add_u32 v45, v46, 3, v45')
    a(f's_mul_i32 s70, s3, {YP}')
    a('v_add_u32 v45, s70, v45')
    a('v_and_b32 v44, 1, v44')
    a('v_lshlrev_b32 v44, 6, v44')
    a(f'v_add_u32 v{V_YT0}, v45, v44')
    a('v_xor_b32 v44, 64, v44')
    a(f'v_add_u32 v{V_YT1}, v45, v44')
    a('v_min_u32 v47, 55, v1')
    a('v_lshlrev_b32 v47, 4, v47')
    a(f'v_lshlrev_b32 v{V_Q}, 3, v1')
    a(f'v_mov_b32 v{V_C0}, v136')
    a(f'v_mov_b32 v{V_C1}, v137')


def pub_op(op): return [f's_add_u32 s81, s76, {opflag(op)}']
def poll_op(op): return [f's_add_u32 s82, s69, {opflag(op)}']


def main_kernel(asm):
    g = G(asm)
    a = g.a
    asm(kernel_header(KNAME))
    if PROF:
        a('s_memrealtime s[100:101]')
        a('v_mov_b32 v7, 0')
        a('s_waitcnt lgkmcnt(0)')
        a('v_writelane_b32 v7, s100, 62')
        a('s_getreg_b32 s100, hwreg(HW_REG_XCC_ID)')
        a('v_writelane_b32 v7, s100, 61')
        a('s_getreg_b32 s100, hwreg(HW_REG_HW_ID)')
        a('v_writelane_b32 v7, s100, 60')
        stamp(g, 0)
    load_args(asm)
    a('s_cmp_ge_u32 s2, 224')
    a('s_cbranch_scc1 MAIN_END')
    front(g)
    conv(g)
    stamp(g, 11)
    setup_late = True
    g.vwait('yst')
    g.barrier()
    a('s_mul_i32 s81, s9, 224')
    a('s_add_u32 s81, s81, s2')
    a('s_lshl_b32 s81, s81, 3')
    a(f's_add_u32 s81, s81, {WS_CF}')
    publish(g, 'yst', [])
    stamp(g, 7)
    g.pump(100)
    g.qrd(1)
    a(f'v_mov_b32 v{V_W2S}, v{F_W2S}')
    a('s_sub_u32 s70, s59, s58')
    a(f'v_add_u32 v136, s70, v{F_T2}')
    a(f'v_add_u32 v137, s70, v{F_T2+1}')
    setup_gemm(g)
    g.w2s, g.w2t, g.fixw = V_W2S, 126, 131
    cf_setup = ['s_lshr_b32 s82, s4, 4', 's_mul_i32 s82, s82, 1792', f's_add_u32 s82, s82, {WS_CF}']
    g.lwait('qr')
    r = Rec(g); ln1_stats(r, 1, 80)
    for i, (_, f) in enumerate(r.items):
        f()
        if i == 40: poll_issue(g, 'v47', cf_setup, 116, 'cf', wide=2)
        if i % 6 == 5 and g.fixq: g.fixq.popleft()()
    while g.fixq: g.fixq.popleft()()
    stamp(g, 8)
    poll_check(g, 'CFP', 'v47', 116, 'cf', wide=2)
    stamp(g, 9)
    a('s_mul_i32 s70, s4, 57344')
    a('s_mul_i32 s72, s3, 14336')
    a('s_add_u32 s70, s70, s72')
    a(f's_add_u32 s70, s70, {WS_YB}')
    YL = [80 + 4 * i for i in range(12)] + [132, 140]
    for i in range(14):
        r = YL[i]
        g.vmem(f'buffer_load_dwordx4 v[{r}:{r+3}], v2, {WSR}, s70 offen offset:{1024*(i%4)} sc1', f'yl{i}')
        if i % 4 == 3: a('s_add_u32 s70, s70, 4096')
    for k in range(12):
        for x in range(2): g.bg.append(g.w2raw(k, x))
    for k in (25, 26, 27): g.bg.append(g.w2l(k))
    g.pump(4)
    for i in range(14):
        r = YL[i]
        g.vwait(f'yl{i}')
        g.ds(f'ds_write_b128 {"v78" if (i>>1)&1 else "v77"}, v[{r}:{r+3}] offset:{128*i}')
    g.barrier()
    stamp(g, 10)
    y_tr(g, 0)
    for i in range(4): a(f'v_mov_b32 v{132+i}, s62')
    r = Rec(g); p3(r, 0, 0); g.add(r)
    for k in range(28):
        for ft2 in range(2):
            o = 224 + 16 * ft2
            c = f'v[{o}:{o+15}]' if k else '0'
            rr = w1_reg(ft2, k)
            a(f'v_mfma_f32_32x32x16_bf16 v[{o}:{o+15}], a[{rr}:{rr+3}], v[132:135], {c}')
            g.fill(99, 7)
        g.pump(1)
    g.flush()
    a('s_mov_b32 exec_lo, 1')
    a('s_mov_b32 exec_hi, 1')
    for q in range(8):
        g.ds(f'ds_write_b128 v{V_CS}, v[{224+4*q}:{227+4*q}] offset:{(q//4)*128 + (q%4)*16}')
    a('s_mov_b64 exec, -1')
    for layer in range(2):
        sb = 12 + 16 * layer
        g.barrier()
        stamp(g, sb)
        r = Rec(g)
        if layer == 0:
            y_tr(r, 1)
            r.barrier()
            for k in range(12, 16):
                for x in range(2): g.bg.append(g.w2raw(k, x))
            for k in range(16, 24): g.bg.append(g.w2l(k))
        else:
            r.vwait('x1')
        p3(r, layer, 1)
        g.add(r)
        m1(g, layer, 0, 7, bgp=1 if layer == 0 else 0, bg_from=4)
        stamp(g, sb + 1)
        g.flush()
        g.barrier()
        stamp(g, sb + 2)
        if layer == 0:
            a(f'v_add_u32 v126, {8*8192}, v{V_C0}')
            a(f'v_add_u32 v127, {8*8192}, v{V_C1}')
            a(f's_add_u32 s70, s59, {8*8192}')
            a('v_add_u32 v131, s70, v2')
            for k in range(16):
                g.bg.append(g.fix_w(2, k, 0))
                g.bg.append(g.fix_r(2, k, 0))
            def last():
                g.lwait('fx0')
                g.w2l(24)()
            g.bg.append(last)
        r = Rec(g)
        e1(r, layer, 0, 80)
        r.at(38); publish(r, 'hst0', pub_op(4 * layer))
        r.at(48); poll_issue(r, f'v{V_FL}', poll_op(4 * layer), 124, 'pf')
        g.add(r)
        m1(g, layer, 1, 6, bgp=2 if layer == 0 else 0)
        stamp(g, sb + 3)
        g.flush()
        g.pump(100)
        poll_check(g, f'PH{layer}0', f'v{V_FL}', 124, 'pf')
        stamp(g, sb + 4)
        e1(g, layer, 1, WT, plain=False)
        r = Rec(g)
        publish(r, 'hst1', pub_op(4 * layer + 1))
        r.at(36); poll_issue(r, f'v{V_FL}', poll_op(4 * layer + 1), 76, 'pf')
        g.add(r)
        m2(g, layer, 0, 5, 0)
        stamp(g, sb + 5)
        g.flush()
        e2_head(g, layer, 0)
        poll_check(g, f'PH{layer}1', f'v{V_FL}', 76, 'pf')
        if layer == 1:
            for k in range(NSL): h_load(g, layer, 1, k)
        e2_tail(g, layer, 0)
        stamp(g, sb + 6)
        r = Rec(g)
        if layer == 0:
            publish(r, 'xst0', pub_op(2))
            r.at(34); poll_issue(r, f'v{V_FL}', poll_op(2), 44, 'pf')
            r.at(50); poll_check(r, 'PX0', f'v{V_FL}', 44, 'pf')
            x_loads(r, 0)
        g.add(r)
        m2(g, layer, 1, 5, NSL if layer == 1 else 0)
        stamp(g, sb + 7)
        g.flush()
        e2_head(g, layer, 1)
        if layer == 0:
            st_loads(g, 0)
            y_loads(g, 0)
        e2_tail(g, layer, 1)
        stamp(g, sb + 8)
        if layer == 0:
            ln1_combine(g, 0)
            g.vwait('y0')
            stamp(g, sb + 9)
            def yb(e, i):
                if i < 4: return
                for ii in (range(5) if i == 4 else [i]):
                    def f(g, ii=ii):
                        g.a(f's_add_u32 s72, s71, {WS_YX + 4*7168 + 1024*ii}')
                        g.vmem(f'buffer_load_dwordx4 v[{YR+4*ii}:{YR+4*ii+3}], v2, {WSR}, s72 offen sc1', 'y1')
                    e.group(f)
            r = Rec(g); p3(r, 1, 0, plain=False, after_group=yb)
            for i, (_, f) in enumerate(r.items):
                f()
                if i == 150: publish(g, 'xst1', pub_op(3))
                if i == 260: poll_issue(g, f'v{V_FL}', poll_op(3), 76, 'pf')
            stamp(g, sb + 10)
            poll_check(g, 'PX1', f'v{V_FL}', 76, 'pf')
            st_loads(g, 1)
            x_loads(g, 1)
            ln1_combine(g, 1)
    if PROF:
        a('s_waitcnt vmcnt(0)')
        stamp(g, 40)
        a('s_memrealtime s[100:101]')
        a('s_waitcnt lgkmcnt(0)')
        a('v_writelane_b32 v7, s100, 63')
        a('s_lshl_b32 s70, s2, 2')
        a('s_add_u32 s70, s70, s3')
        a('s_lshl_b32 s70, s70, 8')
        a(f's_add_u32 s70, s70, {WS_PROF + 0x10000}')
        a('v_lshlrev_b32 v16, 2, v1')
        a(f'buffer_store_dword v7, v16, {WSR}, s70 offen')
    g.label('MAIN_END')
    a('s_endpgm')


def main(out):
    asm = Asm()
    main_kernel(asm)
    hdr = open(f'cdna_kernels/{NAME}.s.ref').read().split('; Override launch')[0]
    hdr += f"""; @launch grid=(224,1,1) block=(256,1,1) lds={LDS_BYTES}
.amdgcn_target "amdgcn-amd-amdhsa--gfx950"
.text
"""
    tail = '.section .rodata,"a"\n' + kernel_desc(KNAME, 512, sgpr=102, accum=256)
    open(out, 'w').write(hdr + asm.text() + tail)


if __name__ == '__main__':
    PROF = '--prof' in sys.argv
    main(sys.argv[1] if len(sys.argv) > 1 and not sys.argv[1].startswith('--') else f'cdna_kernels/{NAME}.s')
```

```python
import sys
import gen4
from gen4 import *

CODEPF = '--nopf' not in sys.argv
WS_PF = 0x803000
WS_W1F = 0xA00000
WS_W2F = 0xC00000
WS_XQ = 0xE00000
WS_SQ = 0x980000
PRE_SCR = 9216
PRE_LDS = PRE_SCR + 4 * 8192


def nonce_publish(g, tag):
    a = g.a
    a('s_or_b32 s8, s2, s3')
    a('s_cmp_lg_u32 s8, 0')
    a(f's_cbranch_scc1 {tag}_SKIP')
    a('s_memrealtime s[8:9]')
    a('s_waitcnt lgkmcnt(0)')
    a('s_or_b32 s8, s8, 1')
    a('v_mov_b32 v4, s8')
    a('buffer_store_dword v4, v0, s[88:91], 0 offen sc1')
    g.label(f'{tag}_SKIP')


def nonce_get(g, tag, t):
    a = g.a
    g.vwait('nonce')
    g.label(f'{tag}_P')
    a(f'v_readfirstlane_b32 s66, v{t}')
    a('s_cmp_lg_u32 s66, 0')
    a(f's_cbranch_scc1 {tag}_D')
    a(f's_add_u32 {SPIN}, {SPIN}, 1')
    a(f's_cmp_gt_u32 {SPIN}, 0x40000')
    a(f's_cbranch_scc1 {tag}_D')
    a(f'buffer_load_dword v{t}, v0, s[88:91], 0 offen sc1')
    a('s_waitcnt vmcnt(0)')
    a(f's_branch {tag}_P')
    g.label(f'{tag}_D')
    a('s_not_b32 s67, s66')
    a('v_mov_b32 v4, s66')
    a('v_mov_b32 v5, s67')


def consts(a):
    a('s_mov_b32 s60, 0x00003f80')
    a('s_mov_b32 s61, 0x3f800000')
    a('s_mov_b32 s62, 0x3f803f80')
    a('s_mov_b32 s63, 0x3b124925')
    a('s_mov_b32 s64, 0xffff0000')
    a('s_mov_b32 s65, 0xffff')
    a(f's_mov_b32 {SPIN}, 0')


def prof_begin(g):
    if not gen4.PROF: return
    a = g.a
    a('s_memrealtime s[100:101]')
    a('v_mov_b32 v7, 0')
    a('s_waitcnt lgkmcnt(0)')
    a('v_writelane_b32 v7, s100, 62')
    stamp(g, 0)


def prof_end(g, region):
    if not gen4.PROF: return
    a = g.a
    a('s_waitcnt vmcnt(0)')
    stamp(g, 40)
    a('s_memrealtime s[100:101]')
    a('s_waitcnt lgkmcnt(0)')
    a('v_writelane_b32 v7, s100, 63')
    a('s_lshl_b32 s70, s2, 2')
    a('s_add_u32 s70, s70, s3')
    a('s_lshl_b32 s70, s70, 8')
    a(f's_add_u32 s70, s70, {WS_PROF + region}')
    a('v_lshlrev_b32 v16, 2, v1')
    a(f'buffer_store_dword v7, v16, {WSR}, s70 offen')


def m1_jit(g, nfill):
    s = 0
    ACC = XR(s)
    def rd(k):
        sl = BR + 4 * (k % 2)
        g.ds(f'ds_read_b128 v[{sl}:{sl+3}], v{V_B} offset:{1024*k}', f'b{k}')
    rd(0)
    g.ds(f'ds_read_b128 v[8:11], v{V_RES}')
    g.ds(f'ds_read_b64 v[{V_ST}:{V_ST+1}], v{V_STR}')
    for i in range(4): g.a(f'v_mov_b32 v{BR+8+i}, s62')
    for k in range(28):
        if k + 1 < 28: rd(k + 1)
        g.wait2(f'w1_{k}', f'b{k}')
        sl = BR + 4 * (k % 2)
        for ft2 in range(2):
            r = w1_reg(ft2, k)
            for o, bb in ((ACC + 16 * ft2, sl), (224 + 16 * ft2, BR + 8)):
                c = f'v[{o}:{o+15}]' if k else '0'
                g.a(f'v_mfma_f32_32x32x16_bf16 v[{o}:{o+15}], a[{r}:{r+3}], v[{bb}:{bb+3}], {c}')
                g.fill(4 * k, nfill)
            g.pump(1)


def m1f(g, layer, s, bgp=0, bg_from=0):
    ACC = XR(s)
    def rd(n):
        sl = BR + 4 * (n % 3)
        g.ds(f'ds_read_b128 v[{sl}:{sl+3}], v{V_B} offset:{s*R_SZ + 1024*(n%28)}', f'b{n}')
    rd(0); rd(1)
    RES = 8 + 4 * s
    g.ds(f'ds_read_b128 v[{RES}:{RES+3}], v{V_RES} offset:{s*R_SZ}')
    g.ds(f'ds_read_b64 v[{V_ST+2*s}:{V_ST+2*s+1}], v{V_STR} offset:{s*256}')
    for n in range(56):
        ft2, k = divmod(n, 28)
        if n == 29:
            r = Rec(g); e1(r, layer, s, 108, halves=(0,)); g.add(r)
        if n + 2 < 56: rd(n + 2)
        g.lwait(f'b{n}')
        sl = BR + 4 * (n % 3)
        o = ACC + 16 * ft2
        c = f'v[{o}:{o+15}]' if k else '0'
        r = w1_reg(ft2, k)
        g.a(f'v_mfma_f32_32x32x16_bf16 v[{o}:{o+15}], a[{r}:{r+3}], v[{sl}:{sl+3}], {c}')
        g.fill(n, 4)
        if n >= bg_from and n % 2 == 0: g.pump(bgp)
    g.flush()
    e1(g, layer, s, 108, plain=False, halves=(1,))


def m2b(g, layer, s, nfill, first_issued):
    ACC = XR(s)
    for k in range(first_issued, NSL): h_load(g, layer, s, k)
    def rdw(k):
        if k == 24: g.a(f'v_add_u32 v{V_C0}, 0x10000, v{V_C0}')
        for dt in range(2):
            r = WT + 8 * (k % 2) + 4 * dt
            g.ds(f'ds_read_b128 v[{r}:{r+3}], v{V_C0} offset:{8192*((k-16)%8) + 1024*dt}', f'w{k}')
    for k in range(28):
        if k in (14, 15): rdw(k + 2)
        g.wait2(f'h{s}_{k}', f'w{k}' if k >= 16 else None)
        sl = h_slot(s, k)
        for dt in range(2):
            o = ACC + 16 * dt
            c = f'v[{o}:{o+15}]' if k else '0'
            kind, r = w2_loc(k, dt)
            if kind == 'l': kind, r = 'v', WT + 8 * (k % 2) + 4 * dt
            g.a(f'v_mfma_f32_32x32x16_bf16 v[{o}:{o+15}], {kind}[{r}:{r+3}], v[{sl}:{sl+3}], {c}')
            g.fill(2 * k + dt, nfill)
        if k + NSL < 28: h_load(g, layer, s, k + NSL)
        if 16 <= k and k + 2 < 28: rdw(k + 2)
    g.a(f'v_subrev_u32 v{V_C0}, 0x10000, v{V_C0}')


def main_kernel(asm):
    g = G(asm)
    a = g.a
    asm(kernel_header(KNAME))
    prof_begin(g)
    load_args(asm)
    a('s_cmp_ge_u32 s2, 224')
    a('s_cbranch_scc1 MAIN_END')
    if CODEPF:
        a('s_getpc_b64 s[86:87]')
        g.label('PPF_PC')
        a('v_lshlrev_b32 v71, 7, v0')
        a('global_load_dword v72, v71, s[86:87]')
        a('v_add_u32 v71, 0x8000, v71')
        a('v_cmp_gt_u32 vcc, MAIN_END-PPF_PC, v71')
        a('s_and_saveexec_b64 s[78:79], vcc')
        a('s_cbranch_execz PPF_S')
        a('global_load_dword v72, v71, s[86:87]')
        g.label('PPF_S')
        a('s_mov_b64 exec, -1')
    MK, AC, PR, KO, TAP, KR, VR, HH, FT = 80, 112, 120, 128, 136, 152, 172, 180, 196
    a('v_and_b32 v1, 63, v0')
    a('v_lshrrev_b32 v2, 6, v0')
    a('v_readfirstlane_b32 s3, v2')
    a(f's_mul_hi_u32 s6, s2, {magic(7)}')
    a('s_mul_i32 s7, s6, 7')
    a('s_sub_u32 s7, s2, s7')
    a('v_and_b32 v252, 7, v0')
    a('v_lshrrev_b32 v253, 3, v0')
    a('s_lshl_b32 s8, s6, 6')
    a('v_lshl_add_u32 v254, v253, 1, s8')
    a('s_movk_i32 s8, 896')
    a('v_mul_lo_u32 v254, v254, s8')
    a('s_lshl_b32 s8, s7, 7')
    a('v_lshl_add_u32 v255, v252, 4, s8')
    a('v_add_u32 v254, v254, v255')
    a('v_add_u32 v44, -896, v254')
    a('v_add_u32 v45, -1792, v254')
    a('v_add_u32 v46, -2688, v254')
    a('v_lshlrev_b32 v255, 2, v255')
    a('v_lshlrev_b32 v2, 4, v1')
    a('s_waitcnt lgkmcnt(0)')
    srd(a, 88, P_SHK, 0, 448 * 8)
    srd(a, 56, P_K, 0, XBYTES)
    srd(a, 84, P_V, 0, XBYTES)
    for i in range(4):
        g.vmem(f'buffer_load_dwordx4 v[{TAP+4*i}:{TAP+4*i+3}], v255, s[88:91], 0 offen offset:{16*i}', 'tap')
    g.vmem(f'buffer_load_dwordx4 v[{KR}:{KR+3}], v46, s[56:59], 0 offen', 'k')
    g.vmem(f'buffer_load_dwordx4 v[{KR+4}:{KR+7}], v45, s[56:59], 0 offen', 'k')
    g.vmem(f'buffer_load_dwordx4 v[{KR+8}:{KR+11}], v44, s[56:59], 0 offen', 'k')
    g.vmem(f'buffer_load_dwordx4 v[{KR+12}:{KR+15}], v254, s[56:59], 0 offen', 'k')
    g.vmem(f'buffer_load_dwordx4 v[{KR+16}:{KR+19}], v254, s[56:59], 0 offen offset:896', 'k')
    g.vmem(f'buffer_load_dwordx4 v[{VR}:{VR+3}], v254, s[84:87], 0 offen', 'v')
    g.vmem(f'buffer_load_dwordx4 v[{VR+4}:{VR+7}], v254, s[84:87], 0 offen offset:896', 'v')
    srd(a, 88, P_DBG, 0, 256)
    srd(a, 40, P_WS, 0, WS_SIZE + (0x100000 if gen4.PROF else 0))
    a('v_mov_b32 v0, 0')
    nonce_publish(g, 'PN')
    a('s_lshr_b32 s8, s3, 1')
    a('s_and_b32 s9, s3, 1')
    a('s_lshl_b32 s10, s2, 1')
    a('s_add_u32 s10, s10, s8')
    a('s_lshl_b32 s11, s10, 12')
    a(f's_mul_i32 s12, s8, {K2_CB}')
    a('s_lshl_b32 s13, s9, 11')
    a(f'v_add_u32 v{F_T16}, s13, v2')
    a(f'v_add_u32 v77, -16, v{F_T16}')
    srd(a, 44, P_SSMK, 's11', 4096)
    a('s_lshl_b32 s14, s2, 2')
    a('s_load_dword s15, s[26:27], s14')
    a('s_lshl_b32 s68, s7, 2')
    a('s_add_u32 s68, s68, s3')
    a('s_sub_u32 s69, 31, s6')
    a('s_lshl_b32 s80, s68, 16')
    a('s_lshl_b32 s70, s69, 7')
    a('s_add_u32 s80, s80, s70')
    a('s_lshl_b32 s81, s68, 5')
    a('s_add_u32 s81, s81, s69')
    a('s_lshl_b32 s81, s81, 3')
    a(f's_add_u32 s81, s81, {WS_KF}')
    a(f'v_lshrrev_b32 v{F_G4}, 4, v1')
    a('v_bfe_u32 v48, v1, 2, 2')
    a('v_and_b32 v49, 3, v1')
    a(f'v_lshl_add_u32 v50, v{F_G4}, 3, v48')
    a('v_mul_u32_u24 v50, 144, v50')
    a('v_lshl_add_u32 v50, v49, 3, v50')
    a('s_lshl_b32 s13, s3, 5')
    a(f's_add_u32 s13, s13, {K2_SCR}')
    a('v_add_u32 v50, s13, v50')
    a(f'v_and_b32 v{F_N15}, 15, v1')
    a('s_lshl_b32 s58, s3, 13')
    a(f's_add_u32 s58, s58, {L_R0}')
    a(f'v_mul_u32_u24 v51, 144, v{F_N15}')
    a(f'v_lshl_add_u32 v51, v{F_G4}, 4, v51')
    a('v_add_u32 v51, s58, v51')
    a('v_and_b32 v3, 7, v1')
    a('v_lshrrev_b32 v6, 3, v1')
    a('v_mul_u32_u24 v52, 144, v6')
    a('v_lshl_add_u32 v52, v3, 4, v52')
    a('v_add_u32 v52, s58, v52')
    a('v_lshlrev_b32 v53, 12, v6')
    a('v_lshl_add_u32 v53, v3, 4, v53')
    a('v_lshlrev_b32 v54, 1, v253')
    a('v_sub_u32 v54, 62, v54')
    a('v_mul_u32_u24 v54, 144, v54')
    a('v_lshl_add_u32 v54, v252, 4, v54')
    a(f'v_add_u32 v54, {K2_SCR}, v54')
    consts(a)
    srd(a, 92, P_W1, 0, WBYTES)
    srd(a, 96, P_W2, 0, WBYTES)
    srd(a, 48, P_Q, 0, XBYTES)
    a('s_lshl_b32 s84, s2, 2')
    a('s_add_u32 s84, s84, s3')
    a('v_bfe_u32 v55, v1, 4, 1')
    a('v_lshlrev_b32 v55, 2, v55')
    a('v_xor_b32 v55, v55, v3')
    a('v_lshlrev_b32 v55, 4, v55')
    a('s_movk_i32 s13, 3584')
    a('v_mad_u32_u24 v56, v6, s13, v55')
    a('s_movk_i32 s13, 896')
    a('v_mad_u32_u24 v57, v6, s13, v55')
    a(f's_mul_hi_u32 s72, s84, {magic(28)}')
    a('s_mul_i32 s73, s72, 28')
    a('s_sub_u32 s73, s84, s73')
    a(f's_mul_i32 s74, s72, {16*3584}')
    a('s_lshl_b32 s13, s73, 7')
    a('s_add_u32 s74, s74, s13')
    a('s_mul_i32 s75, s73, 56')
    a('s_add_u32 s75, s75, s72')
    a('s_lshl_b32 s75, s75, 10')
    a(f's_add_u32 s75, s75, {WS_W1F}')
    a(f's_mul_hi_u32 s72, s84, {magic(7)}')
    a('s_mul_i32 s73, s72, 7')
    a('s_sub_u32 s73, s84, s73')
    a(f's_mul_i32 s76, s72, {16*896}')
    a('s_lshl_b32 s13, s73, 7')
    a('s_add_u32 s76, s76, s13')
    a('s_mul_i32 s77, s73, 224')
    a('s_add_u32 s77, s77, s72')
    a('s_lshl_b32 s77, s77, 10')
    a(f's_add_u32 s77, s77, {WS_W2F}')
    a(f'v_and_b32 v58, 1, v{F_G4}')
    a('v_lshlrev_b32 v58, 5, v58')
    a('v_lshl_add_u32 v58, v49, 3, v58')
    a('v_lshl_add_u32 v58, v48, 7, v58')
    a('v_lshrrev_b32 v59, 1, v48')
    a('v_lshlrev_b32 v59, 6, v59')
    a('v_xor_b32 v60, 64, v59')
    a(f'v_lshrrev_b32 v61, 1, v{F_G4}')
    a('v_lshl_add_u32 v62, v61, 10, v58')
    a('v_lshl_add_u32 v63, v61, 9, v58')
    a('v_add3_u32 v64, v62, v59, s58')
    a('v_add3_u32 v65, v62, v60, s58')
    a('v_add3_u32 v66, v63, v59, s58')
    a('v_add3_u32 v67, v63, v60, s58')
    a('v_add_u32 v68, s58, v2')
    a('v_xor_b32 v69, v3, v6')
    a('v_lshlrev_b32 v70, 4, v69')
    a('s_movk_i32 s13, 896')
    a('v_mad_u32_u24 v70, v6, s13, v70')
    a('v_lshl_add_u32 v69, v3, 3, v69')
    a('v_lshl_add_u32 v69, v69, 4, s58')
    WR = 72 if False else 216
    g.vwait('tap')
    for e in range(8):
        A, B = TAP + 2 * e, TAP + 2 * e + 1
        if e % 2 == 0:
            a(f'v_and_b32 v{MK+e}, s65, v{A}')
            a(f'v_lshrrev_b32 v{MK+8+e}, 16, v{A}')
            a(f'v_and_b32 v{MK+16+e}, s65, v{B}')
            a(f'v_lshrrev_b32 v{MK+24+e}, 16, v{B}')
        else:
            a(f'v_lshlrev_b32 v{MK+e}, 16, v{A}')
            a(f'v_and_b32 v{MK+8+e}, s64, v{A}')
            a(f'v_lshlrev_b32 v{MK+16+e}, 16, v{B}')
            a(f'v_and_b32 v{MK+24+e}, s64, v{B}')
    g.vwait('v')
    stamp(g, 1)
    g.vmem('buffer_load_dword v252, v0, s[88:91], 0 offen sc1', 'nonce')
    g.vmem(f'buffer_load_dwordx4 v[{HH}:{HH+3}], v77, s[44:47], 0 offen', 'h0')
    g.vmem(f'buffer_load_dwordx4 v[{HH+4}:{HH+7}], v{F_T16}, s[44:47], 0 offen', 'h0')
    g.vmem(f'buffer_load_dwordx4 v[{HH+8}:{HH+11}], v{F_T16}, s[44:47], 0 offen offset:1008', 'h1')
    g.vmem(f'buffer_load_dwordx4 v[{HH+12}:{HH+15}], v{F_T16}, s[44:47], 0 offen offset:1024', 'h1')
    for rr in range(2):
        K3, K2, K1, K0 = [KR + 4 * (rr + i) for i in range(4)]
        for e in range(8): a(f'v_dot2_f32_bf16 v{AC+e}, v{K3+e//2}, v{MK+24+e}, 0')
        for e in range(8): a(f'v_dot2_f32_bf16 v{PR+e}, v{K2+e//2}, v{MK+16+e}, 0')
        for Kx, m in ((K1, 8), (K0, 0), (None, None)):
            for e in range(8): a(f'v_cvt_pk_bf16_f32 v{AC+e}, v{AC+e}, v{PR+e}')
            if Kx is not None:
                for e in range(8): a(f'v_dot2_f32_bf16 v{PR+e}, v{Kx+e//2}, v{MK+m+e}, 0')
            for e in range(8): a(f'v_dot2_f32_bf16 v{AC+e}, v{AC+e}, s62, 0')
        for p in range(4): a(f'v_cvt_pk_bf16_f32 v{PR+p}, v{AC+2*p}, v{AC+2*p+1}')
        for p in range(4):
            a(f'v_and_b32 v{AC+2*p}, s65, v{VR+4*rr+p}')
            a(f'v_and_b32 v{AC+2*p+1}, s64, v{VR+4*rr+p}')
        for e in range(8): a(f'v_dot2_f32_bf16 v{AC+e}, v{PR+e//2}, v{AC+e}, 0')
        for p in range(4): a(f'v_cvt_pk_bf16_f32 v{KO+4*rr+p}, v{AC+2*p}, v{AC+2*p+1}')
        g.ds(f'ds_write_b128 v54, v[{KO+4*rr}:{KO+4*rr+3}] offset:{144*(1-rr)}')
    g.barrier()
    for u in range(2):
        for hh in range(2):
            g.ds(f'ds_read_b64_tr_b16 v[{KO+4*u+2*hh}:{KO+4*u+2*hh+1}], v50 offset:{(32*u+4*hh)*144}', f'kt{u}')
    for u in range(2):
        g.lwait(f'kt{u}')
        g.ds(f'ds_write_b128 v51, v[{KO+4*u}:{KO+4*u+3}] offset:{64*u}', 'k2w')
    g.lwait('k2w')
    for u in range(2):
        g.ds(f'ds_read_b128 v[{KO+4*u}:{KO+4*u+3}], v52 offset:{8*144*u}', f'k2r{u}')
    a('s_add_u32 s13, s80, 32768')
    for u in range(2):
        g.lwait(f'k2r{u}')
        g.vmem(f'buffer_store_dwordx4 v[{KO+4*u}:{KO+4*u+3}], v53, {WSR}, {"s13" if u else "s80"} offen sc1', 'kst')
    stamp(g, 2)
    nonce_get(g, 'PN', 252)
    publish(g, 'kst', [])
    stamp(g, 24)
    a(f's_add_u32 s13, s74, {8*3584}')
    g.vmem(f'buffer_load_dwordx4 v[{WR}:{WR+3}], v56, s[92:95], s74 offen', 'wr')
    g.vmem(f'buffer_load_dwordx4 v[{WR+4}:{WR+7}], v56, s[92:95], s13 offen', 'wr')
    a(f's_add_u32 s13, s76, {8*896}')
    g.vmem(f'buffer_load_dwordx4 v[{WR+8}:{WR+11}], v57, s[96:99], s76 offen', 'wr')
    g.vmem(f'buffer_load_dwordx4 v[{WR+12}:{WR+15}], v57, s[96:99], s13 offen', 'wr')
    g.vwait('h1')
    a(f'v_add_u32 v{F_FB}, s12, v{F_T16}')
    for i in range(4): a(f'v_mov_b32 v{236+i}, 0')
    a(f'v_lshlrev_b32 v{F_VF}, 2, v3')
    a('s_mov_b32 s14, 0x1cb88541')
    a(f'v_lshrrev_b32 v{F_VF}, v{F_VF}, s14')
    a(f'v_and_b32 v{F_VF}, 15, v{F_VF}')
    a('v_mul_u32_u24 v252, 272, v3')
    a(f'v_add_u32 v{F_VF}, v{F_VF}, v252')
    a(f'v_lshl_add_u32 v{F_VF}, v{F_VF}, 4, s12')
    a('s_cmp_eq_u32 s9, 0')
    a('s_cbranch_scc0 CV_Z1')
    a('s_mov_b64 exec, 0xff')
    a(f'ds_write_b128 v{F_VF}, v[236:239]')
    a('s_mov_b64 exec, -1')
    a('s_branch CV_Z2')
    g.label('CV_Z1')
    a('v_add_u32 v252, s12, v2')
    a(f'ds_write_b128 v252, v[236:239] offset:{K2_G+4096}')
    g.label('CV_Z2')
    g.lg.issue()
    a('v_bfe_u32 v252, v1, 3, 1')
    a(f'v_add_u32 v252, v252, v{F_G4}')
    a(f'v_lshl_add_u32 v{F_VF}, v252, 4, v{F_VF}')
    a('s_lshl_b32 s14, s9, 8')
    a(f'v_add_u32 v{F_VF}, s14, v{F_VF}')
    a(f'v_lshlrev_b32 v{F_VG}, 5, v{F_N15}')
    a(f'v_lshlrev_b32 v252, 4, v{F_G4}')
    a(f'v_sub_u32 v{F_VG}, v252, v{F_VG}')
    a('s_add_u32 s14, s14, s12')
    a(f's_add_u32 s14, s14, {K2_G+480}')
    a(f'v_add_u32 v{F_VG}, s14, v{F_VG}')
    for p in range(2):
        d = HH + 8 * p
        t = FT if p == 0 else MK
        for k in range(6): a(f'v_mov_b32 v{t+k}, v{d+1+k}')
        for k in range(6): a(f'v_alignbyte_b32 v{t+6+k}, v{d+k+1}, v{d+k}, 2')
        for k in range(6): a(f'v_alignbyte_b32 v{t+12+k}, v{d+k+2}, v{d+k+1}, 2')
        src = {1: t + 6, 2: t, 3: t + 12, 4: d + 2, 5: t + 8, 6: t + 2, 7: t + 14, 8: d + 4}
        for r in range(1, 9):
            off = ((r - 1) * 272 + FC[r - 1] + 1) * 16 + 1024 * p
            g.ds(f'ds_write_b128 v{F_FB}, v[{src[r]}:{src[r]+3}] offset:{off}')
    stamp(g, 3)
    a('v_min_u32 v255, 15, v1')
    a('v_lshlrev_b32 v255, 3, v255')
    setup = ['s_lshr_b32 s82, s10, 4', 's_lshl_b32 s82, s82, 8', 's_lshl_b32 s14, s9, 7', 's_add_u32 s82, s82, s14',
             f's_add_u32 s82, s82, {WS_KF}']
    poll_issue(g, 'v255', setup, KO, 'kf')
    wg_map(a)
    a('s_lshl_b32 s71, s4, 3')
    a('s_add_u32 s71, s71, s3')
    a('s_lshl_b32 s73, s71, 6')
    a(f's_add_u32 s73, s73, {WS_SQ}')
    a('s_mul_i32 s71, s71, 7168')
    a('v_lshlrev_b32 v76, 3, v3')
    a('s_lshl_b32 s56, s5, 3')
    a('s_lshl_b32 s13, s3, 1')
    a('s_add_u32 s56, s56, s13')
    a(f's_mul_i32 s56, s56, {28*1024}')
    a(f's_add_u32 s56, s56, {WS_W1F}')
    a('s_mul_i32 s57, s5, 224')
    a('s_mul_i32 s13, s3, 28')
    a('s_add_u32 s57, s57, s13')
    a('s_lshl_b32 s57, s57, 10')
    a(f's_add_u32 s57, s57, {WS_W2F}')
    a('s_lshl_b32 s59, s3, 11')
    def w1ld(k, x):
        def f():
            r = w1_reg(x, k)
            a(f's_add_u32 s13, s56, {(28*x + (k//4)*4)*1024}')
            g.vmem(f'buffer_load_dwordx4 a[{r}:{r+3}], v2, {WSR}, s13 offen offset:{1024*(k%4)} sc1', f'w1_{k}')
        return f
    def w2ld(k, x):
        def f():
            kd, r = w2_loc(k, x)
            if kd == 'l':
                a(f's_add_u32 m0, s59, {(k-16)*8192 + x*1024}')
                a(f's_add_u32 s13, s57, {(112*x + k)*1024}')
                g.vmem(f'buffer_load_dwordx4 v2, {WSR}, s13 offen sc1 lds', 'w2')
            else:
                a(f's_add_u32 s13, s57, {(112*x + (k//4)*4)*1024}')
                g.vmem(f'buffer_load_dwordx4 {kd}[{r}:{r+3}], v2, {WSR}, s13 offen offset:{1024*(k%4)} sc1', 'w2')
        return f
    def xld(s, i):
        def f():
            a(f's_add_u32 s13, s71, {WS_XQ + s*4*7168 + 1024*i}')
            g.vmem(f'buffer_load_dwordx4 v[{XR(s)+4*i}:{XR(s)+4*i+3}], v2, {WSR}, s13 offen sc1', f'x{s}')
        return f
    for k in range(28):
        for x in range(2): g.bg.append(w1ld(k, x))
    poll_check(g, 'KFP', 'v255', KO, 'kf')
    stamp(g, 4)
    g.vmem(f'buffer_load_dwordx4 v[{KO}:{KO+3}], v{F_T16}, {WSR}, s11 offen sc1', 'kv0')
    g.vmem(f'buffer_load_dwordx4 v[{KO+4}:{KO+7}], v{F_T16}, {WSR}, s11 offen offset:1024 sc1', 'kv1')
    g.vwait('wr')
    for i in range(4):
        g.ds(f'ds_write_b128 v68, v[{WR+4*i}:{WR+4*i+3}] offset:{4096+1024*i}', 'ww')
    g.lwait('ww')
    for x in range(2):
        for hh in range(2):
            g.ds(f'ds_read_b64_tr_b16 v[{WR+4*x+2*hh}:{WR+4*x+2*hh+1}], v{64+x} offset:{4096+512*hh}', 'wt')
            g.ds(f'ds_read_b64_tr_b16 v[{WR+8+4*x+2*hh}:{WR+8+4*x+2*hh+1}], v{66+x} offset:{4096+2048+1024*hh}', 'wt')
    a('s_cmp_ge_u32 s84, 784')
    a('s_cselect_b32 s75, 0x7ff00000, s75')
    a('s_cselect_b32 s77, 0x7ff00000, s77')
    a(f's_add_u32 s13, s75, {28*1024}')
    a(f's_add_u32 s14, s77, {112*1024}')
    g.lwait('wt')
    g.vmem(f'buffer_store_dwordx4 v[{WR}:{WR+3}], v2, {WSR}, s75 offen sc1', 'wst')
    g.vmem(f'buffer_store_dwordx4 v[{WR+4}:{WR+7}], v2, {WSR}, s13 offen sc1', 'wst')
    g.vmem(f'buffer_store_dwordx4 v[{WR+8}:{WR+11}], v2, {WSR}, s77 offen sc1', 'wst')
    g.vmem(f'buffer_store_dwordx4 v[{WR+12}:{WR+15}], v2, {WSR}, s14 offen sc1', 'wst')
    a('s_lshl_b32 s14, s84, 11')
    g.vmem('buffer_load_dwordx4 v[16:19], v2, s[48:51], s14 offen')
    g.vmem('buffer_load_dwordx4 v[20:23], v2, s[48:51], s14 offen offset:1024')
    g.vwait('kv0')
    g.ds(f'ds_write_b128 v{F_FB}, v[{KO}:{KO+3}] offset:{K2_G}')
    g.vwait('kv1')
    g.ds(f'ds_write_b128 v{F_FB}, v[{KO+4}:{KO+7}] offset:{K2_G+1024}')
    a('v_mov_b32 v254, v70')
    a('v_mov_b32 v253, v69')
    a('v_mov_b32 v79, v68')
    a('v_min_u32 v252, 55, v1')
    a('v_lshlrev_b32 v252, 4, v252')
    g.barrier()
    stamp(g, 5)
    g.fixq = deque()
    g.w2pt = False
    a(f's_add_u32 s72, s71, {4*7168}')
    def qraw(s, i):
        def f():
            r = XR(s) + 4 * i
            g.vmem(f'buffer_load_dwordx4 v[{r}:{r+3}], v254, s[48:51], s{71+s} offen offset:{128*i}', f'q{s}')
        return f
    held = g.bg
    nop = lambda: None
    def pfpub():
        g.vwait('wst')
        a('s_barrier')
        a('s_lshl_b32 s81, s2, 3')
        a(f's_add_u32 s81, s81, {WS_PF}')
        a('s_cmp_lg_u32 s3, 0')
        publish(g, 'none', [], only='s_cselect_b32 s81, 0x7ff00000, s81')
    def pfissue(): poll_issue(g, 'v252', [f's_mov_b32 s82, {WS_PF}'], 68, 'pfl', wide=2)
    def pfcheck():
        poll_check(g, 'PFP', 'v252', 68, 'pfl', wide=2)
        g.bg.extend([qraw(1, i) for i in range(2, 7)])
        g.bg.extend(held)
        g.pump(8)
    g.bg = deque([nop] * 4 + [qraw(0, i) for i in range(7)] + [qraw(1, i) for i in range(2)] + [nop] * 14 + [pfpub])
    conv(g)
    stamp(g, 11)
    assert not g.bg
    a('v_add_u32 v136, s59, v2')
    a('v_mov_b32 v137, v136')
    setup_gemm(g)
    g.vwait('yst')
    g.barrier()
    a('s_mul_i32 s81, s9, 224')
    a('s_add_u32 s81, s81, s2')
    a('s_lshl_b32 s81, s81, 3')
    a(f's_add_u32 s81, s81, {WS_CF}')
    a('s_cmp_lg_u32 s8, 0')
    publish(g, 'yst', [], only='s_cselect_b32 s81, 0x7ff00000, s81')
    stamp(g, 7)
    pfissue()
    g.vwait('q0')
    for i in range(7):
        r = XR(0) + 4 * i
        g.ds(f'ds_write_b128 v79, v[{r}:{r+3}] offset:{1024*i}', 'qw')
    g.lwait('qw')
    for i in range(7):
        r = XR(0) + 4 * i
        g.ds(f'ds_read_b128 v[{r}:{r+3}], v253 offset:{1024*i}', 'qr')
    g.lwait('qr')
    pfcheck()
    stamp(g, 25)
    g.pump(10)
    for s in range(0):
        g.vwait(f'q{s}')
        for i in range(7):
            r = XR(s) + 4 * i
            g.ds(f'ds_write_b128 v79, v[{r}:{r+3}] offset:{1024*i}', 'qw')
        g.lwait('qw')
        for i in range(7):
            r = XR(s) + 4 * i
            g.ds(f'ds_read_b128 v[{r}:{r+3}], v253 offset:{1024*i}', 'qr')
        g.lwait('qr')
    cf_setup = ['s_lshr_b32 s82, s4, 4', 's_mul_i32 s82, s82, 1792', f's_add_u32 s82, s82, {WS_CF}']
    r = Rec(g); ln1_stats(r, 0, 80)
    for i, (_, f) in enumerate(r.items):
        f()
        if i % 16 == 15: g.pump(1)
    poll_issue(g, 'v47', cf_setup, 116, 'cf', wide=2)
    g.vwait('q1')
    for i in range(7):
        r = XR(1) + 4 * i
        g.ds(f'ds_write_b128 v79, v[{r}:{r+3}] offset:{1024*i}', 'qw')
    g.lwait('qw')
    for i in range(7):
        r = XR(1) + 4 * i
        g.ds(f'ds_read_b128 v[{r}:{r+3}], v253 offset:{1024*i}', 'qr')
    g.lwait('qr')
    ln1_stats(g, 1, 80)
    for k in list(range(12)) + [24, 25, 26, 27]:
        for x in range(2): g.bg.append(w2ld(k, x))
    stamp(g, 8)
    poll_check(g, 'CFP', 'v47', 116, 'cf', wide=2)
    stamp(g, 9)
    a('s_mul_i32 s70, s4, 57344')
    a('s_mul_i32 s72, s3, 14336')
    a('s_add_u32 s70, s70, s72')
    a(f's_add_u32 s70, s70, {WS_YB}')
    YL = [80 + 4 * i for i in range(12)] + [132, 140]
    for i in range(14):
        r = YL[i]
        g.vmem(f'buffer_load_dwordx4 v[{r}:{r+3}], v2, {WSR}, s70 offen offset:{1024*(i%4)} sc1', f'yl{i}')
        if i % 4 == 3: a('s_add_u32 s70, s70, 4096')
    g.pump(12)
    for i in range(14):
        r = YL[i]
        g.vwait(f'yl{i}')
        g.ds(f'ds_write_b128 {"v78" if (i>>1)&1 else "v77"}, v[{r}:{r+3}] offset:{128*i}')
    g.barrier()
    stamp(g, 10)
    y_tr(g, 0)
    for i in range(4): a(f'v_mov_b32 v{132+i}, s62')
    r = Rec(g); p3(r, 0, 0); g.add(r)
    for k in range(28):
        g.vwait(f'w1_{k}')
        for ft2 in range(2):
            o = 224 + 16 * ft2
            c = f'v[{o}:{o+15}]' if k else '0'
            rr = w1_reg(ft2, k)
            a(f'v_mfma_f32_32x32x16_bf16 v[{o}:{o+15}], a[{rr}:{rr+3}], v[132:135], {c}')
            g.fill(99, 7)
        g.pump(1)
    g.flush()
    a('s_mov_b32 exec_lo, 1')
    a('s_mov_b32 exec_hi, 1')
    for q in range(8):
        g.ds(f'ds_write_b128 v{V_CS}, v[{224+4*q}:{227+4*q}] offset:{(q//4)*128 + (q%4)*16}')
    a('s_mov_b64 exec, -1')
    for layer in range(2):
        sb = 12 + 16 * layer
        g.barrier()
        stamp(g, sb)
        r = Rec(g)
        if layer == 0:
            y_tr(r, 1)
            r.barrier()
            for k in range(12, 24):
                for x in range(2): g.bg.append(w2ld(k, x))
        else:
            r.at(2); poll_issue(r, f'v{V_FL}', poll_op(3), 76, 'pf')
            r.at(22)
            poll_check(r, 'PX1', f'v{V_FL}', 76, 'pf')
            st_loads(r, 1)
            x_loads(r, 1)
        g.add(r)
        m1f(g, layer, 0, bgp=1 if layer == 0 else 0, bg_from=8)
        stamp(g, sb + 1)
        if layer == 1:
            ln1_combine(g, 1)
            g.vwait('x1')
        r = Rec(g); p3(r, layer, 1, plain=False)
        for i, (_, f) in enumerate(r.items):
            f()
            if i == 180: publish(g, 'hst0', pub_op(4 * layer))
            if layer == 0 and i > 180 and i % 20 == 0: g.pump(1)
        g.barrier()
        stamp(g, sb + 2)
        r = Rec(g)
        r.at(20); poll_issue(r, f'v{V_FL}', poll_op(4 * layer), 126, 'pf')
        g.add(r)
        m1f(g, layer, 1, bgp=1 if layer == 0 else 0)
        stamp(g, sb + 3)
        g.pump(100)
        poll_check(g, f'PH{layer}0', f'v{V_FL}', 126, 'pf')
        stamp(g, sb + 4)
        r = Rec(g)
        publish(r, 'hst1', pub_op(4 * layer + 1))
        r.at(36); poll_issue(r, f'v{V_FL}', poll_op(4 * layer + 1), 76, 'pf')
        g.add(r)
        m2b(g, layer, 0, 5, 0)
        stamp(g, sb + 5)
        g.flush()
        e2_head(g, layer, 0)
        poll_check(g, f'PH{layer}1', f'v{V_FL}', 76, 'pf')
        if layer == 1:
            for k in range(NSL): h_load(g, layer, 1, k)
        e2_tail(g, layer, 0)
        stamp(g, sb + 6)
        r = Rec(g)
        if layer == 0:
            publish(r, 'xst0', pub_op(2))
            r.at(36); poll_issue(r, f'v{V_FL}', poll_op(2), 44, 'pf')
            r.at(52); poll_check(r, 'PX0', f'v{V_FL}', 44, 'pf')
            x_loads(r, 0)
        g.add(r)
        m2b(g, layer, 1, 5, NSL if layer == 1 else 0)
        stamp(g, sb + 7)
        g.flush()
        e2_head(g, layer, 1)
        if layer == 0:
            st_loads(g, 0)
            y_loads(g, 0)
        e2_tail(g, layer, 1)
        stamp(g, sb + 8)
        if layer == 0:
            ln1_combine(g, 0)
            g.vwait('y0')
            stamp(g, sb + 9)
            def yb(e, i):
                if i < 4: return
                for ii in (range(5) if i == 4 else [i]):
                    def f(g, ii=ii):
                        g.a(f's_add_u32 s72, s71, {WS_YX + 4*7168 + 1024*ii}')
                        g.vmem(f'buffer_load_dwordx4 v[{YR+4*ii}:{YR+4*ii+3}], v2, {WSR}, s72 offen sc1', 'y1')
                    e.group(f)
            r = Rec(g); p3(r, 1, 0, plain=False, after_group=yb)
            for i, (_, f) in enumerate(r.items):
                f()
                if i == 150: publish(g, 'xst1', pub_op(3))
            stamp(g, sb + 10)
    prof_end(g, 0x10000)
    g.label('MAIN_END')
    a('s_endpgm')


def main(out):
    asm = Asm()
    main_kernel(asm)
    hdr = open(f'cdna_kernels/{NAME}.s.ref').read().split('; Override launch')[0]
    hdr += f"""; @launch grid=(224,1,1) block=(256,1,1) lds={LDS_BYTES}
.amdgcn_target "amdgcn-amd-amdhsa--gfx950"
.text
"""
    tail = '.section .rodata,"a"\n' + kernel_desc(KNAME, 512, sgpr=102, accum=256)
    open(out, 'w').write(hdr + asm.text() + tail)


if __name__ == '__main__':
    gen4.PROF = '--prof' in sys.argv
    main(sys.argv[1] if len(sys.argv) > 1 and not sys.argv[1].startswith('--') else f'cdna_kernels/{NAME}.s')
```

```python
import sys
import gen4
from gen4 import *

CODEPF = '--nopf' not in sys.argv
WS_PF = 0x803000
WS_W1F = 0xA00000
WS_W2F = 0xC00000
WS_XQ = 0xE00000
WS_SQ = 0x980000
PRE_SCR = 9216
PRE_LDS = PRE_SCR + 4 * 8192


def nonce_publish(g, tag):
    a = g.a
    a('s_or_b32 s8, s2, s3')
    a('s_cmp_lg_u32 s8, 0')
    a(f's_cbranch_scc1 {tag}_SKIP')
    a('s_memrealtime s[8:9]')
    a('s_waitcnt lgkmcnt(0)')
    a('s_or_b32 s8, s8, 1')
    a('v_mov_b32 v4, s8')
    a('v_mov_b32 v5, 0')
    a('s_mov_b64 exec, 1')
    a('buffer_atomic_cmpswap v[4:5], v0, s[88:91], 0 offen sc1')
    a('s_mov_b64 exec, -1')
    g.label(f'{tag}_SKIP')


def nonce_get(g, tag, t):
    a = g.a
    g.vwait('nonce')
    g.label(f'{tag}_P')
    a(f'v_readfirstlane_b32 s66, v{t}')
    a('s_cmp_lg_u32 s66, 0')
    a(f's_cbranch_scc1 {tag}_D')
    a(f's_add_u32 {SPIN}, {SPIN}, 1')
    a(f's_cmp_gt_u32 {SPIN}, 0x40000')
    a(f's_cbranch_scc1 {tag}_D')
    a(f'buffer_load_dword v{t}, v0, s[88:91], 0 offen sc1')
    a('s_waitcnt vmcnt(0)')
    a(f's_branch {tag}_P')
    g.label(f'{tag}_D')
    a('s_not_b32 s67, s66')
    a('v_mov_b32 v4, s66')
    a('v_mov_b32 v5, s67')


def consts(a):
    a('s_mov_b32 s60, 0x00003f80')
    a('s_mov_b32 s61, 0x3f800000')
    a('s_mov_b32 s62, 0x3f803f80')
    a('s_mov_b32 s63, 0x3b124925')
    a('s_mov_b32 s64, 0xffff0000')
    a('s_mov_b32 s65, 0xffff')
    a(f's_mov_b32 {SPIN}, 0')


def prof_begin(g):
    if not gen4.PROF: return
    a = g.a
    a('s_memrealtime s[100:101]')
    a('v_mov_b32 v7, 0')
    a('s_waitcnt lgkmcnt(0)')
    a('v_writelane_b32 v7, s100, 62')
    stamp(g, 0)


def prof_end(g, region):
    if not gen4.PROF: return
    a = g.a
    a('s_waitcnt vmcnt(0)')
    stamp(g, 40)
    a('s_memrealtime s[100:101]')
    a('s_waitcnt lgkmcnt(0)')
    a('v_writelane_b32 v7, s100, 63')
    a('s_lshl_b32 s70, s2, 2')
    a('s_add_u32 s70, s70, s3')
    a('s_lshl_b32 s70, s70, 8')
    a(f's_add_u32 s70, s70, {WS_PROF + region}')
    a('v_lshlrev_b32 v16, 2, v1')
    a(f'buffer_store_dword v7, v16, {WSR}, s70 offen')


def m1_jit(g, nfill):
    s = 0
    ACC = XR(s)
    def rd(k):
        sl = BR + 4 * (k % 2)
        g.ds(f'ds_read_b128 v[{sl}:{sl+3}], v{V_B} offset:{1024*k}', f'b{k}')
    rd(0)
    g.ds(f'ds_read_b128 v[8:11], v{V_RES}')
    g.ds(f'ds_read_b64 v[{V_ST}:{V_ST+1}], v{V_STR}')
    for i in range(4): g.a(f'v_mov_b32 v{BR+8+i}, s62')
    for k in range(28):
        if k + 1 < 28: rd(k + 1)
        g.wait2(f'w1_{k}', f'b{k}')
        sl = BR + 4 * (k % 2)
        for ft2 in range(2):
            r = w1_reg(ft2, k)
            for o, bb in ((ACC + 16 * ft2, sl), (224 + 16 * ft2, BR + 8)):
                c = f'v[{o}:{o+15}]' if k else '0'
                g.a(f'v_mfma_f32_32x32x16_bf16 v[{o}:{o+15}], a[{r}:{r+3}], v[{bb}:{bb+3}], {c}')
                g.fill(4 * k, nfill)
            g.pump(1)


def m1f(g, layer, s, bgp=0, bg_from=0):
    ACC = XR(s)
    def rd(n):
        sl = BR + 4 * (n % 3)
        g.ds(f'ds_read_b128 v[{sl}:{sl+3}], v{V_B} offset:{s*R_SZ + 1024*(n%28)}', f'b{n}')
    rd(0); rd(1)
    RES = 8 + 4 * s
    g.ds(f'ds_read_b128 v[{RES}:{RES+3}], v{V_RES} offset:{s*R_SZ}')
    g.ds(f'ds_read_b64 v[{V_ST+2*s}:{V_ST+2*s+1}], v{V_STR} offset:{s*256}')
    for n in range(56):
        ft2, k = divmod(n, 28)
        if n == 29:
            r = Rec(g); e1(r, layer, s, 108, halves=(0,)); g.add(r)
        if n + 2 < 56: rd(n + 2)
        g.lwait(f'b{n}')
        sl = BR + 4 * (n % 3)
        o = ACC + 16 * ft2
        c = f'v[{o}:{o+15}]' if k else '0'
        r = w1_reg(ft2, k)
        g.a(f'v_mfma_f32_32x32x16_bf16 v[{o}:{o+15}], a[{r}:{r+3}], v[{sl}:{sl+3}], {c}')
        g.fill(n, 4)
        if n >= bg_from and n % 2 == 0: g.pump(bgp)
    g.flush()
    e1(g, layer, s, 108, plain=False, halves=(1,))


def m2b(g, layer, s, nfill, first_issued):
    ACC = XR(s)
    for k in range(first_issued, NSL): h_load(g, layer, s, k)
    def rdw(k):
        if k == 24: g.a(f'v_add_u32 v{V_C0}, 0x10000, v{V_C0}')
        for dt in range(2):
            r = WT + 8 * (k % 2) + 4 * dt
            g.ds(f'ds_read_b128 v[{r}:{r+3}], v{V_C0} offset:{8192*((k-16)%8) + 1024*dt}', f'w{k}')
    for k in range(28):
        if k in (14, 15): rdw(k + 2)
        g.wait2(f'h{s}_{k}', f'w{k}' if k >= 16 else None)
        sl = h_slot(s, k)
        for dt in range(2):
            o = ACC + 16 * dt
            c = f'v[{o}:{o+15}]' if k else '0'
            kind, r = w2_loc(k, dt)
            if kind == 'l': kind, r = 'v', WT + 8 * (k % 2) + 4 * dt
            g.a(f'v_mfma_f32_32x32x16_bf16 v[{o}:{o+15}], {kind}[{r}:{r+3}], v[{sl}:{sl+3}], {c}')
            g.fill(2 * k + dt, nfill)
        if k + NSL < 28: h_load(g, layer, s, k + NSL)
        if 16 <= k and k + 2 < 28: rdw(k + 2)
    g.a(f'v_subrev_u32 v{V_C0}, 0x10000, v{V_C0}')


def main_kernel(asm):
    g = G(asm)
    a = g.a
    asm(kernel_header(KNAME))
    prof_begin(g)
    load_args(asm)
    a('s_cmp_ge_u32 s2, 224')
    a('s_cbranch_scc1 MAIN_END')
    if CODEPF:
        a('s_getpc_b64 s[86:87]')
        g.label('PPF_PC')
        a('v_lshlrev_b32 v71, 7, v0')
        a('global_load_dword v72, v71, s[86:87]')
        a('v_add_u32 v71, 0x8000, v71')
        a('v_cmp_gt_u32 vcc, MAIN_END-PPF_PC, v71')
        a('s_and_saveexec_b64 s[78:79], vcc')
        a('s_cbranch_execz PPF_S')
        a('global_load_dword v72, v71, s[86:87]')
        g.label('PPF_S')
        a('s_mov_b64 exec, -1')
    MK, AC, PR, KO, TAP, KR, VR, HH, FT = 80, 112, 120, 128, 136, 152, 172, 180, 196
    a('v_and_b32 v1, 63, v0')
    a('v_lshrrev_b32 v2, 6, v0')
    a('v_readfirstlane_b32 s3, v2')
    a(f's_mul_hi_u32 s6, s2, {magic(7)}')
    a('s_mul_i32 s7, s6, 7')
    a('s_sub_u32 s7, s2, s7')
    a('v_and_b32 v252, 7, v0')
    a('v_lshrrev_b32 v253, 3, v0')
    a('s_lshl_b32 s8, s6, 6')
    a('v_lshl_add_u32 v254, v253, 1, s8')
    a('s_movk_i32 s8, 896')
    a('v_mul_lo_u32 v254, v254, s8')
    a('s_lshl_b32 s8, s7, 7')
    a('v_lshl_add_u32 v255, v252, 4, s8')
    a('v_add_u32 v254, v254, v255')
    a('v_add_u32 v44, -896, v254')
    a('v_add_u32 v45, -1792, v254')
    a('v_add_u32 v46, -2688, v254')
    a('v_lshlrev_b32 v255, 2, v255')
    a('v_lshlrev_b32 v2, 4, v1')
    a('s_waitcnt lgkmcnt(0)')
    srd(a, 88, P_SHK, 0, 448 * 8)
    srd(a, 56, P_K, 0, XBYTES)
    srd(a, 84, P_V, 0, XBYTES)
    for i in range(4):
        g.vmem(f'buffer_load_dwordx4 v[{TAP+4*i}:{TAP+4*i+3}], v255, s[88:91], 0 offen offset:{16*i}', 'tap')
    g.vmem(f'buffer_load_dwordx4 v[{KR}:{KR+3}], v46, s[56:59], 0 offen', 'k')
    g.vmem(f'buffer_load_dwordx4 v[{KR+4}:{KR+7}], v45, s[56:59], 0 offen', 'k')
    g.vmem(f'buffer_load_dwordx4 v[{KR+8}:{KR+11}], v44, s[56:59], 0 offen', 'k')
    g.vmem(f'buffer_load_dwordx4 v[{KR+12}:{KR+15}], v254, s[56:59], 0 offen', 'k')
    g.vmem(f'buffer_load_dwordx4 v[{KR+16}:{KR+19}], v254, s[56:59], 0 offen offset:896', 'k')
    g.vmem(f'buffer_load_dwordx4 v[{VR}:{VR+3}], v254, s[84:87], 0 offen', 'v')
    g.vmem(f'buffer_load_dwordx4 v[{VR+4}:{VR+7}], v254, s[84:87], 0 offen offset:896', 'v')
    srd(a, 88, P_DBG, 0, 256)
    srd(a, 40, P_WS, 0, WS_SIZE + (0x100000 if gen4.PROF else 0))
    a('v_mov_b32 v0, 0')
    nonce_publish(g, 'PN')
    a('s_lshr_b32 s8, s3, 1')
    a('s_and_b32 s9, s3, 1')
    a('s_lshl_b32 s10, s2, 1')
    a('s_add_u32 s10, s10, s8')
    a('s_lshl_b32 s11, s10, 12')
    a(f's_mul_i32 s12, s8, {K2_CB}')
    a('s_lshl_b32 s13, s9, 11')
    a(f'v_add_u32 v{F_T16}, s13, v2')
    a(f'v_add_u32 v77, -16, v{F_T16}')
    srd(a, 44, P_SSMK, 's11', 4096)
    a('s_lshl_b32 s14, s2, 2')
    a('s_load_dword s15, s[26:27], s14')
    a('s_lshl_b32 s68, s7, 2')
    a('s_add_u32 s68, s68, s3')
    a('s_sub_u32 s69, 31, s6')
    a('s_lshl_b32 s80, s68, 16')
    a('s_lshl_b32 s70, s69, 7')
    a('s_add_u32 s80, s80, s70')
    a('s_lshl_b32 s81, s68, 5')
    a('s_add_u32 s81, s81, s69')
    a('s_lshl_b32 s81, s81, 3')
    a(f's_add_u32 s81, s81, {WS_KF}')
    a(f'v_lshrrev_b32 v{F_G4}, 4, v1')
    a('v_bfe_u32 v48, v1, 2, 2')
    a('v_and_b32 v49, 3, v1')
    a(f'v_lshl_add_u32 v50, v{F_G4}, 3, v48')
    a('v_mul_u32_u24 v50, 144, v50')
    a('v_lshl_add_u32 v50, v49, 3, v50')
    a('s_lshl_b32 s13, s3, 5')
    a(f's_add_u32 s13, s13, {K2_SCR}')
    a('v_add_u32 v50, s13, v50')
    a(f'v_and_b32 v{F_N15}, 15, v1')
    a('s_lshl_b32 s58, s3, 13')
    a(f's_add_u32 s58, s58, {L_R0}')
    a(f'v_mul_u32_u24 v51, 144, v{F_N15}')
    a(f'v_lshl_add_u32 v51, v{F_G4}, 4, v51')
    a('v_add_u32 v51, s58, v51')
    a('v_and_b32 v3, 7, v1')
    a('v_lshrrev_b32 v6, 3, v1')
    a('v_mul_u32_u24 v52, 144, v6')
    a('v_lshl_add_u32 v52, v3, 4, v52')
    a('v_add_u32 v52, s58, v52')
    a('v_lshlrev_b32 v53, 12, v6')
    a('v_lshl_add_u32 v53, v3, 4, v53')
    a('v_lshlrev_b32 v54, 1, v253')
    a('v_sub_u32 v54, 62, v54')
    a('v_mul_u32_u24 v54, 144, v54')
    a('v_lshl_add_u32 v54, v252, 4, v54')
    a(f'v_add_u32 v54, {K2_SCR}, v54')
    consts(a)
    srd(a, 92, P_W1, 0, WBYTES)
    srd(a, 96, P_W2, 0, WBYTES)
    srd(a, 48, P_Q, 0, XBYTES)
    a('s_lshl_b32 s84, s2, 2')
    a('s_add_u32 s84, s84, s3')
    a('v_bfe_u32 v55, v1, 4, 1')
    a('v_lshlrev_b32 v55, 2, v55')
    a('v_xor_b32 v55, v55, v3')
    a('v_lshlrev_b32 v55, 4, v55')
    a('s_movk_i32 s13, 3584')
    a('v_mad_u32_u24 v56, v6, s13, v55')
    a('s_movk_i32 s13, 896')
    a('v_mad_u32_u24 v57, v6, s13, v55')
    a(f's_mul_hi_u32 s72, s84, {magic(28)}')
    a('s_mul_i32 s73, s72, 28')
    a('s_sub_u32 s73, s84, s73')
    a(f's_mul_i32 s74, s72, {16*3584}')
    a('s_lshl_b32 s13, s73, 7')
    a('s_add_u32 s74, s74, s13')
    a('s_mul_i32 s75, s73, 56')
    a('s_add_u32 s75, s75, s72')
    a('s_lshl_b32 s75, s75, 10')
    a(f's_add_u32 s75, s75, {WS_W1F}')
    a(f's_mul_hi_u32 s72, s84, {magic(7)}')
    a('s_mul_i32 s73, s72, 7')
    a('s_sub_u32 s73, s84, s73')
    a(f's_mul_i32 s76, s72, {16*896}')
    a('s_lshl_b32 s13, s73, 7')
    a('s_add_u32 s76, s76, s13')
    a('s_mul_i32 s77, s73, 224')
    a('s_add_u32 s77, s77, s72')
    a('s_lshl_b32 s77, s77, 10')
    a(f's_add_u32 s77, s77, {WS_W2F}')
    a(f'v_and_b32 v58, 1, v{F_G4}')
    a('v_lshlrev_b32 v58, 5, v58')
    a('v_lshl_add_u32 v58, v49, 3, v58')
    a('v_lshl_add_u32 v58, v48, 7, v58')
    a('v_lshrrev_b32 v59, 1, v48')
    a('v_lshlrev_b32 v59, 6, v59')
    a('v_xor_b32 v60, 64, v59')
    a(f'v_lshrrev_b32 v61, 1, v{F_G4}')
    a('v_lshl_add_u32 v62, v61, 10, v58')
    a('v_lshl_add_u32 v63, v61, 9, v58')
    a('v_add3_u32 v64, v62, v59, s58')
    a('v_add3_u32 v65, v62, v60, s58')
    a('v_add3_u32 v66, v63, v59, s58')
    a('v_add3_u32 v67, v63, v60, s58')
    a('v_add_u32 v68, s58, v2')
    a('v_xor_b32 v69, v3, v6')
    a('v_lshlrev_b32 v70, 4, v69')
    a('s_movk_i32 s13, 896')
    a('v_mad_u32_u24 v70, v6, s13, v70')
    a('v_lshl_add_u32 v69, v3, 3, v69')
    a('v_lshl_add_u32 v69, v69, 4, s58')
    WR = 72 if False else 216
    g.vwait('tap')
    for e in range(8):
        A, B = TAP + 2 * e, TAP + 2 * e + 1
        if e % 2 == 0:
            a(f'v_and_b32 v{MK+e}, s65, v{A}')
            a(f'v_lshrrev_b32 v{MK+8+e}, 16, v{A}')
            a(f'v_and_b32 v{MK+16+e}, s65, v{B}')
            a(f'v_lshrrev_b32 v{MK+24+e}, 16, v{B}')
        else:
            a(f'v_lshlrev_b32 v{MK+e}, 16, v{A}')
            a(f'v_and_b32 v{MK+8+e}, s64, v{A}')
            a(f'v_lshlrev_b32 v{MK+16+e}, 16, v{B}')
            a(f'v_and_b32 v{MK+24+e}, s64, v{B}')
    g.vwait('v')
    stamp(g, 1)
    g.vmem('buffer_load_dword v252, v0, s[88:91], 0 offen sc1', 'nonce')
    g.vmem(f'buffer_load_dwordx4 v[{HH}:{HH+3}], v77, s[44:47], 0 offen', 'h0')
    g.vmem(f'buffer_load_dwordx4 v[{HH+4}:{HH+7}], v{F_T16}, s[44:47], 0 offen', 'h0')
    g.vmem(f'buffer_load_dwordx4 v[{HH+8}:{HH+11}], v{F_T16}, s[44:47], 0 offen offset:1008', 'h1')
    g.vmem(f'buffer_load_dwordx4 v[{HH+12}:{HH+15}], v{F_T16}, s[44:47], 0 offen offset:1024', 'h1')
    for rr in range(2):
        K3, K2, K1, K0 = [KR + 4 * (rr + i) for i in range(4)]
        for e in range(8): a(f'v_dot2_f32_bf16 v{AC+e}, v{K3+e//2}, v{MK+24+e}, 0')
        for e in range(8): a(f'v_dot2_f32_bf16 v{PR+e}, v{K2+e//2}, v{MK+16+e}, 0')
        for Kx, m in ((K1, 8), (K0, 0), (None, None)):
            for e in range(8): a(f'v_cvt_pk_bf16_f32 v{AC+e}, v{AC+e}, v{PR+e}')
            if Kx is not None:
                for e in range(8): a(f'v_dot2_f32_bf16 v{PR+e}, v{Kx+e//2}, v{MK+m+e}, 0')
            for e in range(8): a(f'v_dot2_f32_bf16 v{AC+e}, v{AC+e}, s62, 0')
        for p in range(4): a(f'v_cvt_pk_bf16_f32 v{PR+p}, v{AC+2*p}, v{AC+2*p+1}')
        for p in range(4):
            a(f'v_and_b32 v{AC+2*p}, s65, v{VR+4*rr+p}')
            a(f'v_and_b32 v{AC+2*p+1}, s64, v{VR+4*rr+p}')
        for e in range(8): a(f'v_dot2_f32_bf16 v{AC+e}, v{PR+e//2}, v{AC+e}, 0')
        for p in range(4): a(f'v_cvt_pk_bf16_f32 v{KO+4*rr+p}, v{AC+2*p}, v{AC+2*p+1}')
        g.ds(f'ds_write_b128 v54, v[{KO+4*rr}:{KO+4*rr+3}] offset:{144*(1-rr)}')
    g.barrier()
    for u in range(2):
        for hh in range(2):
            g.ds(f'ds_read_b64_tr_b16 v[{KO+4*u+2*hh}:{KO+4*u+2*hh+1}], v50 offset:{(32*u+4*hh)*144}', f'kt{u}')
    for u in range(2):
        g.lwait(f'kt{u}')
        g.ds(f'ds_write_b128 v51, v[{KO+4*u}:{KO+4*u+3}] offset:{64*u}', 'k2w')
    g.lwait('k2w')
    for u in range(2):
        g.ds(f'ds_read_b128 v[{KO+4*u}:{KO+4*u+3}], v52 offset:{8*144*u}', f'k2r{u}')
    a('s_add_u32 s13, s80, 32768')
    for u in range(2):
        g.lwait(f'k2r{u}')
        g.vmem(f'buffer_store_dwordx4 v[{KO+4*u}:{KO+4*u+3}], v53, {WSR}, {"s13" if u else "s80"} offen sc1', 'kst')
    stamp(g, 2)
    nonce_get(g, 'PN', 252)
    publish(g, 'kst', [])
    stamp(g, 24)
    a(f's_add_u32 s13, s74, {8*3584}')
    g.vmem(f'buffer_load_dwordx4 v[{WR}:{WR+3}], v56, s[92:95], s74 offen', 'wr')
    g.vmem(f'buffer_load_dwordx4 v[{WR+4}:{WR+7}], v56, s[92:95], s13 offen', 'wr')
    a(f's_add_u32 s13, s76, {8*896}')
    g.vmem(f'buffer_load_dwordx4 v[{WR+8}:{WR+11}], v57, s[96:99], s76 offen', 'wr')
    g.vmem(f'buffer_load_dwordx4 v[{WR+12}:{WR+15}], v57, s[96:99], s13 offen', 'wr')
    g.vwait('h1')
    a(f'v_add_u32 v{F_FB}, s12, v{F_T16}')
    for i in range(4): a(f'v_mov_b32 v{236+i}, 0')
    a(f'v_lshlrev_b32 v{F_VF}, 2, v3')
    a('s_mov_b32 s14, 0x1cb88541')
    a(f'v_lshrrev_b32 v{F_VF}, v{F_VF}, s14')
    a(f'v_and_b32 v{F_VF}, 15, v{F_VF}')
    a('v_mul_u32_u24 v252, 272, v3')
    a(f'v_add_u32 v{F_VF}, v{F_VF}, v252')
    a(f'v_lshl_add_u32 v{F_VF}, v{F_VF}, 4, s12')
    a('s_cmp_eq_u32 s9, 0')
    a('s_cbranch_scc0 CV_Z1')
    a('s_mov_b64 exec, 0xff')
    a(f'ds_write_b128 v{F_VF}, v[236:239]')
    a('s_mov_b64 exec, -1')
    a('s_branch CV_Z2')
    g.label('CV_Z1')
    a('v_add_u32 v252, s12, v2')
    a(f'ds_write_b128 v252, v[236:239] offset:{K2_G+4096}')
    g.label('CV_Z2')
    g.lg.issue()
    a('v_bfe_u32 v252, v1, 3, 1')
    a(f'v_add_u32 v252, v252, v{F_G4}')
    a(f'v_lshl_add_u32 v{F_VF}, v252, 4, v{F_VF}')
    a('s_lshl_b32 s14, s9, 8')
    a(f'v_add_u32 v{F_VF}, s14, v{F_VF}')
    a(f'v_lshlrev_b32 v{F_VG}, 5, v{F_N15}')
    a(f'v_lshlrev_b32 v252, 4, v{F_G4}')
    a(f'v_sub_u32 v{F_VG}, v252, v{F_VG}')
    a('s_add_u32 s14, s14, s12')
    a(f's_add_u32 s14, s14, {K2_G+480}')
    a(f'v_add_u32 v{F_VG}, s14, v{F_VG}')
    for p in range(2):
        d = HH + 8 * p
        t = FT if p == 0 else MK
        for k in range(6): a(f'v_mov_b32 v{t+k}, v{d+1+k}')
        for k in range(6): a(f'v_alignbyte_b32 v{t+6+k}, v{d+k+1}, v{d+k}, 2')
        for k in range(6): a(f'v_alignbyte_b32 v{t+12+k}, v{d+k+2}, v{d+k+1}, 2')
        src = {1: t + 6, 2: t, 3: t + 12, 4: d + 2, 5: t + 8, 6: t + 2, 7: t + 14, 8: d + 4}
        for r in range(1, 9):
            off = ((r - 1) * 272 + FC[r - 1] + 1) * 16 + 1024 * p
            g.ds(f'ds_write_b128 v{F_FB}, v[{src[r]}:{src[r]+3}] offset:{off}')
    stamp(g, 3)
    a('v_min_u32 v255, 15, v1')
    a('v_lshlrev_b32 v255, 3, v255')
    setup = ['s_lshr_b32 s82, s10, 4', 's_lshl_b32 s82, s82, 8', 's_lshl_b32 s14, s9, 7', 's_add_u32 s82, s82, s14',
             f's_add_u32 s82, s82, {WS_KF}']
    poll_issue(g, 'v255', setup, KO, 'kf')
    wg_map(a)
    a('s_lshl_b32 s71, s4, 3')
    a('s_add_u32 s71, s71, s3')
    a('s_lshl_b32 s73, s71, 6')
    a(f's_add_u32 s73, s73, {WS_SQ}')
    a('s_mul_i32 s71, s71, 7168')
    a('v_lshlrev_b32 v76, 3, v3')
    a('s_lshl_b32 s56, s5, 3')
    a('s_lshl_b32 s13, s3, 1')
    a('s_add_u32 s56, s56, s13')
    a(f's_mul_i32 s56, s56, {28*1024}')
    a(f's_add_u32 s56, s56, {WS_W1F}')
    a('s_mul_i32 s57, s5, 224')
    a('s_mul_i32 s13, s3, 28')
    a('s_add_u32 s57, s57, s13')
    a('s_lshl_b32 s57, s57, 10')
    a(f's_add_u32 s57, s57, {WS_W2F}')
    a('s_lshl_b32 s59, s3, 11')
    def w1ld(k, x):
        def f():
            r = w1_reg(x, k)
            a(f's_add_u32 s13, s56, {(28*x + (k//4)*4)*1024}')
            g.vmem(f'buffer_load_dwordx4 a[{r}:{r+3}], v2, {WSR}, s13 offen offset:{1024*(k%4)} sc1', f'w1_{k}')
        return f
    def w2ld(k, x):
        def f():
            kd, r = w2_loc(k, x)
            if kd == 'l':
                a(f's_add_u32 m0, s59, {(k-16)*8192 + x*1024}')
                a(f's_add_u32 s13, s57, {(112*x + k)*1024}')
                g.vmem(f'buffer_load_dwordx4 v2, {WSR}, s13 offen sc1 lds', 'w2')
            else:
                a(f's_add_u32 s13, s57, {(112*x + (k//4)*4)*1024}')
                g.vmem(f'buffer_load_dwordx4 {kd}[{r}:{r+3}], v2, {WSR}, s13 offen offset:{1024*(k%4)} sc1', 'w2')
        return f
    def xld(s, i):
        def f():
            a(f's_add_u32 s13, s71, {WS_XQ + s*4*7168 + 1024*i}')
            g.vmem(f'buffer_load_dwordx4 v[{XR(s)+4*i}:{XR(s)+4*i+3}], v2, {WSR}, s13 offen sc1', f'x{s}')
        return f
    for k in range(28):
        for x in range(2): g.bg.append(w1ld(k, x))
    poll_check(g, 'KFP', 'v255', KO, 'kf')
    stamp(g, 4)
    g.vmem(f'buffer_load_dwordx4 v[{KO}:{KO+3}], v{F_T16}, {WSR}, s11 offen sc1', 'kv0')
    g.vmem(f'buffer_load_dwordx4 v[{KO+4}:{KO+7}], v{F_T16}, {WSR}, s11 offen offset:1024 sc1', 'kv1')
    g.vwait('wr')
    for i in range(4):
        g.ds(f'ds_write_b128 v68, v[{WR+4*i}:{WR+4*i+3}] offset:{4096+1024*i}', 'ww')
    g.lwait('ww')
    for x in range(2):
        for hh in range(2):
            g.ds(f'ds_read_b64_tr_b16 v[{WR+4*x+2*hh}:{WR+4*x+2*hh+1}], v{64+x} offset:{4096+512*hh}', 'wt')
            g.ds(f'ds_read_b64_tr_b16 v[{WR+8+4*x+2*hh}:{WR+8+4*x+2*hh+1}], v{66+x} offset:{4096+2048+1024*hh}', 'wt')
    a('s_cmp_ge_u32 s84, 784')
    a('s_cselect_b32 s75, 0x7ff00000, s75')
    a('s_cselect_b32 s77, 0x7ff00000, s77')
    a(f's_add_u32 s13, s75, {28*1024}')
    a(f's_add_u32 s14, s77, {112*1024}')
    g.lwait('wt')
    g.vmem(f'buffer_store_dwordx4 v[{WR}:{WR+3}], v2, {WSR}, s75 offen sc1', 'wst')
    g.vmem(f'buffer_store_dwordx4 v[{WR+4}:{WR+7}], v2, {WSR}, s13 offen sc1', 'wst')
    g.vmem(f'buffer_store_dwordx4 v[{WR+8}:{WR+11}], v2, {WSR}, s77 offen sc1', 'wst')
    g.vmem(f'buffer_store_dwordx4 v[{WR+12}:{WR+15}], v2, {WSR}, s14 offen sc1', 'wst')
    a('s_lshl_b32 s14, s84, 11')
    g.vmem('buffer_load_dwordx4 v[16:19], v2, s[48:51], s14 offen')
    g.vmem('buffer_load_dwordx4 v[20:23], v2, s[48:51], s14 offen offset:1024')
    g.vwait('kv0')
    g.ds(f'ds_write_b128 v{F_FB}, v[{KO}:{KO+3}] offset:{K2_G}')
    g.vwait('kv1')
    g.ds(f'ds_write_b128 v{F_FB}, v[{KO+4}:{KO+7}] offset:{K2_G+1024}')
    a('v_mov_b32 v254, v70')
    a('v_mov_b32 v253, v69')
    a('v_mov_b32 v79, v68')
    a('v_min_u32 v252, 55, v1')
    a('v_lshlrev_b32 v252, 4, v252')
    g.barrier()
    stamp(g, 5)
    g.fixq = deque()
    g.w2pt = False
    a(f's_add_u32 s72, s71, {4*7168}')
    def qraw(s, i):
        def f():
            r = XR(s) + 4 * i
            g.vmem(f'buffer_load_dwordx4 v[{r}:{r+3}], v254, s[48:51], s{71+s} offen offset:{128*i}', f'q{s}')
        return f
    held = g.bg
    nop = lambda: None
    def pfpub():
        g.vwait('wst')
        a('s_barrier')
        a('s_lshl_b32 s81, s2, 3')
        a(f's_add_u32 s81, s81, {WS_PF}')
        a('s_cmp_lg_u32 s3, 0')
        publish(g, 'none', [], only='s_cselect_b32 s81, 0x7ff00000, s81')
    def pfissue(): poll_issue(g, 'v252', [f's_mov_b32 s82, {WS_PF}'], 68, 'pfl', wide=2)
    def pfcheck():
        poll_check(g, 'PFP', 'v252', 68, 'pfl', wide=2)
        g.bg.extend([qraw(1, i) for i in range(2, 7)])
        g.bg.extend(held)
        g.pump(8)
    g.bg = deque([nop] * 4 + [qraw(0, i) for i in range(7)] + [qraw(1, i) for i in range(2)] + [nop] * 14 + [pfpub])
    conv(g)
    stamp(g, 11)
    assert not g.bg
    a('v_add_u32 v136, s59, v2')
    a('v_mov_b32 v137, v136')
    setup_gemm(g)
    g.vwait('yst')
    g.barrier()
    a('s_mul_i32 s81, s9, 224')
    a('s_add_u32 s81, s81, s2')
    a('s_lshl_b32 s81, s81, 3')
    a(f's_add_u32 s81, s81, {WS_CF}')
    a('s_cmp_lg_u32 s8, 0')
    publish(g, 'yst', [], only='s_cselect_b32 s81, 0x7ff00000, s81')
    stamp(g, 7)
    pfissue()
    g.vwait('q0')
    for i in range(7):
        r = XR(0) + 4 * i
        g.ds(f'ds_write_b128 v79, v[{r}:{r+3}] offset:{1024*i}', 'qw')
    g.lwait('qw')
    for i in range(7):
        r = XR(0) + 4 * i
        g.ds(f'ds_read_b128 v[{r}:{r+3}], v253 offset:{1024*i}', 'qr')
    g.lwait('qr')
    pfcheck()
    stamp(g, 25)
    g.pump(10)
    for s in range(0):
        g.vwait(f'q{s}')
        for i in range(7):
            r = XR(s) + 4 * i
            g.ds(f'ds_write_b128 v79, v[{r}:{r+3}] offset:{1024*i}', 'qw')
        g.lwait('qw')
        for i in range(7):
            r = XR(s) + 4 * i
            g.ds(f'ds_read_b128 v[{r}:{r+3}], v253 offset:{1024*i}', 'qr')
        g.lwait('qr')
    cf_setup = ['s_lshr_b32 s82, s4, 4', 's_mul_i32 s82, s82, 1792', f's_add_u32 s82, s82, {WS_CF}']
    r = Rec(g); ln1_stats(r, 0, 80)
    for i, (_, f) in enumerate(r.items):
        f()
        if i % 16 == 15: g.pump(1)
    poll_issue(g, 'v47', cf_setup, 116, 'cf', wide=2)
    g.vwait('q1')
    for i in range(7):
        r = XR(1) + 4 * i
        g.ds(f'ds_write_b128 v79, v[{r}:{r+3}] offset:{1024*i}', 'qw')
    g.lwait('qw')
    for i in range(7):
        r = XR(1) + 4 * i
        g.ds(f'ds_read_b128 v[{r}:{r+3}], v253 offset:{1024*i}', 'qr')
    g.lwait('qr')
    ln1_stats(g, 1, 80)
    for k in list(range(12)) + [24, 25, 26, 27]:
        for x in range(2): g.bg.append(w2ld(k, x))
    stamp(g, 8)
    poll_check(g, 'CFP', 'v47', 116, 'cf', wide=2)
    stamp(g, 9)
    a('s_mul_i32 s70, s4, 57344')
    a('s_mul_i32 s72, s3, 14336')
    a('s_add_u32 s70, s70, s72')
    a(f's_add_u32 s70, s70, {WS_YB}')
    YL = [80 + 4 * i for i in range(12)] + [132, 140]
    for i in range(14):
        r = YL[i]
        g.vmem(f'buffer_load_dwordx4 v[{r}:{r+3}], v2, {WSR}, s70 offen offset:{1024*(i%4)} sc1', f'yl{i}')
        if i % 4 == 3: a('s_add_u32 s70, s70, 4096')
    g.pump(12)
    for i in range(14):
        r = YL[i]
        g.vwait(f'yl{i}')
        g.ds(f'ds_write_b128 {"v78" if (i>>1)&1 else "v77"}, v[{r}:{r+3}] offset:{128*i}')
    g.barrier()
    stamp(g, 10)
    y_tr(g, 0)
    for i in range(4): a(f'v_mov_b32 v{132+i}, s62')
    r = Rec(g); p3(r, 0, 0); g.add(r)
    for k in range(28):
        g.vwait(f'w1_{k}')
        for ft2 in range(2):
            o = 224 + 16 * ft2
            c = f'v[{o}:{o+15}]' if k else '0'
            rr = w1_reg(ft2, k)
            a(f'v_mfma_f32_32x32x16_bf16 v[{o}:{o+15}], a[{rr}:{rr+3}], v[132:135], {c}')
            g.fill(99, 7)
        g.pump(1)
    g.flush()
    a('s_mov_b32 exec_lo, 1')
    a('s_mov_b32 exec_hi, 1')
    for q in range(8):
        g.ds(f'ds_write_b128 v{V_CS}, v[{224+4*q}:{227+4*q}] offset:{(q//4)*128 + (q%4)*16}')
    a('s_mov_b64 exec, -1')
    for layer in range(2):
        sb = 12 + 16 * layer
        g.barrier()
        stamp(g, sb)
        r = Rec(g)
        if layer == 0:
            y_tr(r, 1)
            r.barrier()
            for k in range(12, 24):
                for x in range(2): g.bg.append(w2ld(k, x))
        else:
            r.at(2); poll_issue(r, f'v{V_FL}', poll_op(3), 76, 'pf')
            r.at(22)
            poll_check(r, 'PX1', f'v{V_FL}', 76, 'pf')
            st_loads(r, 1)
            x_loads(r, 1)
        g.add(r)
        m1f(g, layer, 0, bgp=1 if layer == 0 else 0, bg_from=8)
        stamp(g, sb + 1)
        if layer == 1:
            ln1_combine(g, 1)
            g.vwait('x1')
        r = Rec(g); p3(r, layer, 1, plain=False)
        for i, (_, f) in enumerate(r.items):
            f()
            if i == 150: publish(g, 'hst0', pub_op(4 * layer))
            if layer == 0 and i > 150 and i % 16 == 0: g.pump(1)
        g.barrier()
        stamp(g, sb + 2)
        r = Rec(g)
        r.at(20); poll_issue(r, f'v{V_FL}', poll_op(4 * layer), 126, 'pf')
        g.add(r)
        m1f(g, layer, 1, bgp=1 if layer == 0 else 0)
        stamp(g, sb + 3)
        g.pump(100)
        poll_check(g, f'PH{layer}0', f'v{V_FL}', 126, 'pf')
        stamp(g, sb + 4)
        r = Rec(g)
        publish(r, 'hst1', pub_op(4 * layer + 1))
        r.at(36); poll_issue(r, f'v{V_FL}', poll_op(4 * layer + 1), 76, 'pf')
        g.add(r)
        m2b(g, layer, 0, 5, 0)
        stamp(g, sb + 5)
        g.flush()
        e2_head(g, layer, 0)
        poll_check(g, f'PH{layer}1', f'v{V_FL}', 76, 'pf')
        if layer == 1:
            for k in range(NSL): h_load(g, layer, 1, k)
        e2_tail(g, layer, 0)
        stamp(g, sb + 6)
        r = Rec(g)
        if layer == 0:
            publish(r, 'xst0', pub_op(2))
            r.at(36); poll_issue(r, f'v{V_FL}', poll_op(2), 44, 'pf')
            r.at(52); poll_check(r, 'PX0', f'v{V_FL}', 44, 'pf')
            x_loads(r, 0)
        g.add(r)
        m2b(g, layer, 1, 5, NSL if layer == 1 else 0)
        stamp(g, sb + 7)
        g.flush()
        e2_head(g, layer, 1)
        if layer == 0:
            st_loads(g, 0)
            y_loads(g, 0)
        e2_tail(g, layer, 1)
        stamp(g, sb + 8)
        if layer == 0:
            ln1_combine(g, 0)
            g.vwait('y0')
            stamp(g, sb + 9)
            def yb(e, i):
                if i < 4: return
                for ii in (range(5) if i == 4 else [i]):
                    def f(g, ii=ii):
                        g.a(f's_add_u32 s72, s71, {WS_YX + 4*7168 + 1024*ii}')
                        g.vmem(f'buffer_load_dwordx4 v[{YR+4*ii}:{YR+4*ii+3}], v2, {WSR}, s72 offen sc1', 'y1')
                    e.group(f)
            r = Rec(g); p3(r, 1, 0, plain=False, after_group=yb)
            for i, (_, f) in enumerate(r.items):
                f()
                if i == 125: publish(g, 'xst1', pub_op(3))
            stamp(g, sb + 10)
    prof_end(g, 0x10000)
    g.label('MAIN_END')
    a('s_endpgm')


def main(out):
    asm = Asm()
    main_kernel(asm)
    hdr = open(f'cdna_kernels/{NAME}.s.ref').read().split('; Override launch')[0]
    hdr += f"""; @launch grid=(224,1,1) block=(256,1,1) lds={LDS_BYTES}
.amdgcn_target "amdgcn-amd-amdhsa--gfx950"
.text
"""
    tail = '.section .rodata,"a"\n' + kernel_desc(KNAME, 512, sgpr=102, accum=256)
    open(out, 'w').write(hdr + asm.text() + tail)


if __name__ == '__main__':
    gen4.PROF = '--prof' in sys.argv
    main(sys.argv[1] if len(sys.argv) > 1 and not sys.argv[1].startswith('--') else f'cdna_kernels/{NAME}.s')
```

```python
import sys
from collections import deque
from asmlib import *
from gen1 import (NAME, XBYTES, WBYTES, P_Q, P_K, P_V, P_SHK, P_SSMK, P_SSMD, P_W1, P_W2, P_OUT,
                  P_DBG, P_WS, load_args, srd, magic, FC, K2_CB, K2_G, K2_SCR, wg_map)

KNAME = NAME + '_kernel'
WS_KVR = 0x000000
WS_YB = 0x200000
WS_YX = 0x400000
WS_X2 = 0x600000
WS_SP = 0x900000
WS_KF = 0x800000
WS_CF = 0x802000
WS_OF = 0x804000
WS_HB = [0x1000000, 0x1800000]
WS_SIZE = 0x2000000
WS_PROF = 0x2000000
PROF = False
CONV_PUMP = 4

L_W2 = 0
L_R0 = 98304
R_SZ = 28736
L_CS = L_R0 + 2 * R_SZ
L_ST = L_CS + 1024
LDS_BYTES = L_ST + 512
YP = 7184
RING = 14336

WSR = 's[40:43]'
SPIN = 's83'


class Ctr:
    def __init__(self, a, name, maxn):
        self.a, self.name, self.maxn, self.q = a, name, maxn, []

    def issue(self, tag=None): self.q.append(tag)

    def need(self, tag):
        idx = [i for i, t in enumerate(self.q) if t == tag]
        if not idx: return None
        n = len(self.q) - 1 - idx[-1]
        self.q = self.q[idx[-1] + 1:]
        return min(n, self.maxn)

    def wait(self, tag):
        n = self.need(tag)
        if n is not None: self.a(f's_waitcnt {self.name}({n})')

    def wait_all(self):
        self.a(f's_waitcnt {self.name}(0)')
        self.q = []


class G:
    def __init__(self, asm):
        self.asm = asm
        self.vm = Ctr(asm, 'vmcnt', 63)
        self.lg = Ctr(asm, 'lgkmcnt', 15)
        self.bg = deque()
        self.fq = deque()

    def a(self, text): self.asm(text)
    def label(self, n): self.asm.label(n)
    def vmem(self, text, tag=None): self.asm(text); self.vm.issue(tag)
    def ds(self, text, tag=None): self.asm(text); self.lg.issue(tag)
    def vwait(self, tag): self.vm.wait(tag)
    def lwait(self, tag): self.lg.wait(tag)
    def group(self, fn): fn(self)

    def wait2(self, vtag=None, ltag=None):
        parts = []
        for c, t in ((self.vm, vtag), (self.lg, ltag)):
            if t is not None:
                n = c.need(t)
                if n is not None: parts.append(f'{c.name}({n})')
        if parts: self.asm('s_waitcnt ' + ' '.join(parts))

    def barrier(self):
        self.lg.wait_all()
        self.asm('s_barrier')

    def pump(self, n=1):
        for _ in range(n):
            if not self.bg: return
            self.bg.popleft()()

    def fill(self, step, n):
        while n > 0 and self.fq and self.fq[0][0] <= step:
            self.fq.popleft()[1]()
            n -= 1

    def flush(self):
        while self.fq: self.fq.popleft()[1]()

    def add(self, rec, step=0):
        for s, f in rec.items: self.fq.append((max(step, s), f))


class Rec:
    def __init__(self, g): self.g, self.items, self.step = g, [], 0
    def _add(self, f): self.items.append((self.step, f))
    def at(self, step): self.step = step
    def a(self, text): self._add(lambda: self.g.a(text))
    def vmem(self, text, tag=None): self._add(lambda: self.g.vmem(text, tag))
    def ds(self, text, tag=None): self._add(lambda: self.g.ds(text, tag))
    def vwait(self, tag): self._add(lambda: self.g.vwait(tag))
    def lwait(self, tag): self._add(lambda: self.g.lwait(tag))
    def barrier(self): self._add(lambda: self.g.barrier())
    def group(self, fn): self._add(lambda: fn(self.g))


def stamp(e, k):
    if not PROF: return
    def f(g):
        g.a('s_memtime s[100:101]')
        g.lg.wait_all()
        g.a(f'v_writelane_b32 v7, s100, {k}')
    e.group(f)


def w1_reg(ft2, k): return (k * 2 + ft2) * 4


def w2_loc(k, dt):
    if k < 4: return ('a', 224 + k * 8 + dt * 4)
    if k < 16: return ('v', 160 + (k - 4) * 8 + dt * 4)
    return ('l', k - 16)


def reduce8(e, s, t):
    e.a(f'v_add_f32 v{s}, v{s}, v{s} row_ror:8')
    for sw in ('v_permlane16_swap_b32', 'v_permlane32_swap_b32'):
        e.a(f'v_mov_b32 v{t}, v{s}')
        e.a(f'{sw} v{s}, v{t}')
        e.a(f'v_add_f32 v{s}, v{s}, v{t}')


def rnd(e, d, s):
    e.a(f'v_cvt_pk_bf16_f32 v{d}, v{s}, v{s}')
    e.a(f'v_lshlrev_b32 v{d}, 16, v{d}')


def var_to_rinv(e, d, v):
    e.a(f'v_max_f32 v{v}, 0, v{v}')
    rnd(e, v, v)
    e.a(f'v_add_f32 v{v}, 0x3727c5ac, v{v}')
    rnd(e, v, v)
    e.a(f'v_sqrt_f32 v{v}, v{v}')
    rnd(e, v, v)
    e.a(f'v_rcp_f32 v{d}, v{v}')


def poll_issue(e, voff, soff_setup, t, tag, wide=0):
    def f(g):
        for l in soff_setup: g.a(l)
        if wide:
            for i in range(wide):
                g.vmem(f'buffer_load_dwordx4 v[{t+4*i}:{t+4*i+3}], {voff}, {WSR}, s82 offen offset:{896*i} sc1', tag)
        else:
            g.vmem(f'buffer_load_dwordx2 v[{t}:{t+1}], {voff}, {WSR}, s82 offen sc1', tag)
    e.group(f)


def poll_check(e, name, voff, t, tag, wide=0):
    def f(g):
        g.vwait(tag)
        g.label(name)
        n = 2 * wide if wide else 1
        for i in range(n):
            g.a(f'v_xor_b32 v{t+2*i}, s66, v{t+2*i}')
            g.a(f'v_xor_b32 v{t+2*i+1}, s67, v{t+2*i+1}')
        if wide:
            g.a(f'v_or3_b32 v{t}, v{t}, v{t+1}, v{t+2}')
            g.a(f'v_or3_b32 v{t+3}, v{t+3}, v{t+4}, v{t+5}')
            g.a(f'v_or3_b32 v{t}, v{t}, v{t+6}, v{t+7}')
            g.a(f'v_or_b32 v{t}, v{t}, v{t+3}')
        else:
            g.a(f'v_or_b32 v{t}, v{t}, v{t+1}')
        g.a(f'v_cmp_ne_u32 vcc, 0, v{t}')
        g.a(f's_cbranch_vccz {name}_D')
        g.a(f's_add_u32 {SPIN}, {SPIN}, 1')
        g.a(f's_cmp_gt_u32 {SPIN}, 0x40000')
        g.a(f's_cbranch_scc1 {name}_D')
        g.a('s_sleep 4')
        if wide:
            for i in range(wide):
                g.a(f'buffer_load_dwordx4 v[{t+4*i}:{t+4*i+3}], {voff}, {WSR}, s82 offen offset:{896*i} sc1')
        else:
            g.a(f'buffer_load_dwordx2 v[{t}:{t+1}], {voff}, {WSR}, s82 offen sc1')
        g.a('s_waitcnt vmcnt(0)')
        g.a(f's_branch {name}')
        g.label(name + '_D')
    e.group(f)


def publish(e, tag, soff_setup, only=None):
    def f(g):
        g.vwait(tag)
        for l in soff_setup: g.a(l)
        if only: g.a(only)
        g.a('s_mov_b64 exec, 1')
        g.vmem(f'buffer_store_dwordx2 v[4:5], v0, {WSR}, s81 offen sc1')
        g.a('s_mov_b64 exec, -1')
    e.group(f)


RA, RB = 16, 48
YR = 80
TT = 108
BR = 132
WT = 124
V_YT0, V_YT1, V_W2S = 128, 129, 130
V_Q, V_FL, V_XW, V_STW, V_B, V_RES, V_STR, V_CS, V_C0, V_RED, V_XST, V_OST = range(144, 156)
V_C1 = 3
V_ST = 156


def XR(s): return RA if s == 0 else RB
def ST1(s): return 8 + 4 * s


def ln1_stats(e, s, T):
    X = XR(s)
    mb, rinv = ST1(s), ST1(s) + 2
    acc, tmp, dm, sq = T, T + 1, T + 2, T + 4
    e.a(f'v_dot2_f32_bf16 v{acc}, v{X}, s62, 0')
    e.a(f'v_dot2_f32_bf16 v{tmp}, v{X+1}, s62, 0')
    for p in range(2, 28, 2):
        e.a(f'v_dot2_f32_bf16 v{acc}, v{X+p}, s62, v{acc}')
        e.a(f'v_dot2_f32_bf16 v{tmp}, v{X+p+1}, s62, v{tmp}')
    e.a(f'v_add_f32 v{acc}, v{acc}, v{tmp}')
    reduce8(e, acc, tmp)
    e.a(f'v_mul_f32 v{acc}, s63, v{acc}')
    rnd(e, mb, acc)
    e.a(f'v_sub_f32 v{dm}, v{acc}, v{mb}')
    e.a(f'v_sub_f32 v{mb+1}, 0, v{mb}')
    def d(p): return T + 6 + 2 * (p % 3)
    for p in range(30):
        if p < 28:
            e.a(f'v_dot2_f32_bf16 v{d(p)}, v{X+p}, s60, v{mb+1}')
            e.a(f'v_dot2_f32_bf16 v{d(p)+1}, v{X+p}, s61, v{mb+1}')
        if p >= 2:
            q = p - 2
            c = '0' if q == 0 else f'v[{sq}:{sq+1}]'
            e.a(f'v_pk_fma_f32 v[{sq}:{sq+1}], v[{d(q)}:{d(q)+1}], v[{d(q)}:{d(q)+1}], {c}')
    e.a(f'v_add_f32 v{acc}, v{sq}, v{sq+1}')
    reduce8(e, acc, tmp)
    e.a(f'v_mul_f32 v{dm}, v{dm}, v{dm}')
    e.a(f'v_fma_f32 v{acc}, s63, v{acc}, -v{dm}')
    var_to_rinv(e, rinv, acc)
    e.a(f'v_mul_f32 v{rinv+1}, v{mb+1}, v{rinv}')


def st_loads(e, s):
    SB = TT if s == 0 else 116
    e.a(f's_lshr_b32 s72, s71, 1')
    e.a(f's_add_u32 s72, s72, {WS_SP + s*2*7168}')
    for i in range(7):
        e.vmem(f'buffer_load_dwordx2 v[{SB+2*i}:{SB+2*i+1}], v{V_Q}, {WSR}, s72 offen offset:{512*i} sc1', f'sp{s}')


def ln1_combine(e, s):
    mb, rinv = ST1(s), ST1(s) + 2
    SB = TT if s == 0 else 116
    acc, tmp, q, m2 = (TT + 14, TT + 15, TT + 16, TT + 17) if s == 0 else (130, 131, 76, 77)
    e.vwait(f'sp{s}')
    e.a(f'v_add_f32 v{acc}, v{SB}, v{SB+2}')
    e.a(f'v_add_f32 v{m2}, v{SB+1}, v{SB+3}')
    for i in range(2, 7):
        e.a(f'v_add_f32 v{acc}, v{acc}, v{SB+2*i}')
        e.a(f'v_add_f32 v{m2}, v{m2}, v{SB+2*i+1}')
    reduce8(e, acc, tmp)
    e.a(f'v_mul_f32 v{acc}, s63, v{acc}')
    e.a(f'v_mul_f32 v{tmp}, 0xc1000000, v{acc}')
    for i in range(7): e.a(f'v_add_f32 v{SB+2*i}, v{SB+2*i}, v{tmp}')
    e.a(f'v_mul_f32 v{q}, v{SB}, v{SB}')
    for i in range(1, 7): e.a(f'v_fmac_f32 v{q}, v{SB+2*i}, v{SB+2*i}')
    e.a(f'v_fmac_f32 v{m2}, 0x3e000000, v{q}')
    rnd(e, mb, acc)
    reduce8(e, m2, tmp)
    e.a(f'v_mul_f32 v{m2}, s63, v{m2}')
    var_to_rinv(e, rinv, m2)
    e.a(f'v_mul_f32 v{rinv+1}, v{mb}, v{rinv}')
    e.a(f'v_sub_f32 v{rinv+1}, 0, v{rinv+1}')


def p3(e, layer, s, plain=True, after_group=None):
    X = XR(s)
    mb, rinv = ST1(s), ST1(s) + 2
    nm = f'P3_{layer}{s}'
    if layer == 0:
        def yx(g):
            g.a('s_lshl_b32 s72, s5, 10')
            g.a('s_add_u32 s72, s72, s71')
            g.a(f's_add_u32 s72, s72, {WS_YX + s*4*7168}')
            for i in range(7):
                g.a(f's_cmp_lg_u32 s5, {i}')
                g.a(f's_cbranch_scc1 {nm}_YX{i}')
                g.a(f'buffer_store_dwordx4 v[{YR+4*i}:{YR+4*i+3}], v2, {WSR}, s72 offen sc1')
                g.label(f'{nm}_YX{i}')
            g.vm.issue('yx')
        e.group(yx)
    sa, sb = TT + 16, TT + 17
    for i in range(7):
        t, u = TT, TT + 8
        for p in range(4):
            e.a(f'v_lshlrev_b32 v{t+2*p}, 16, v{X+4*i+p}')
            e.a(f'v_and_b32 v{t+2*p+1}, s64, v{X+4*i+p}')
        for h in range(2):
            for x in range(4): e.a(f'v_fma_f32 v{u+x}, v{t+4*h+x}, v{rinv}, v{rinv+1}')
            for p in range(2):
                e.a(f'v_lshlrev_b32 v{u+4+2*p}, 16, v{YR+4*i+2*h+p}')
                e.a(f'v_and_b32 v{u+4+2*p+1}, s64, v{YR+4*i+2*h+p}')
            for x in range(4): e.a(f'v_fmac_f32 v{t+4*h+x}, v{u+x}, v{u+4+x}')
        for p in range(4):
            e.a(f'v_cvt_pk_bf16_f32 v{X+4*i+p}, v{t+2*p}, v{t+2*p+1}')
        e.ds(f'ds_write_b128 v{V_XW}, v[{X+4*i}:{X+4*i+3}] offset:{s*R_SZ + 4096*i}')
        if after_group: after_group(e, i)
        if plain:
            for x in range(8):
                if i == 0 and x == 0:
                    e.a(f'v_mov_b32 v{sa}, v{t}')
                    e.a(f'v_mul_f32 v{sb}, v{t}, v{t}')
                else:
                    e.a(f'v_add_f32 v{sa}, v{sa}, v{t+x}')
                    e.a(f'v_fmac_f32 v{sb}, v{t+x}, v{t+x}')
        else:
            for p in range(4):
                first = (i == 0 and p == 0)
                e.a(f'v_dot2_f32_bf16 v{sa}, v{X+4*i+p}, s62, {"0" if first else f"v{sa}"}')
                e.a(f'v_dot2_f32_bf16 v{sb}, v{X+4*i+p}, v{X+4*i+p}, {"0" if first else f"v{sb}"}')
    ta, tb = TT + 18, TT + 19
    e.a(f'v_add_f32 v{sa}, v{sa}, v{sa} row_ror:8')
    e.a(f'v_add_f32 v{sb}, v{sb}, v{sb} row_ror:8')
    for sw in ('v_permlane16_swap_b32', 'v_permlane32_swap_b32'):
        e.a(f'v_mov_b32 v{ta}, v{sa}')
        e.a(f'v_mov_b32 v{tb}, v{sb}')
        e.a(f'{sw} v{sa}, v{ta}')
        e.a(f'{sw} v{sb}, v{tb}')
        e.a(f'v_add_f32 v{sa}, v{sa}, v{ta}')
        e.a(f'v_add_f32 v{sb}, v{sb}, v{tb}')
    e.a(f'v_mul_f32 v{sa}, s63, v{sa}')
    e.a(f'v_mul_f32 v{ta}, v{sa}, v{sa}')
    e.a(f'v_fma_f32 v{sb}, s63, v{sb}, -v{ta}')
    var_to_rinv(e, tb, sb)
    rnd(e, sa, sa)
    e.a(f'v_sub_f32 v{ta}, 0, v{sa}')
    def w(g):
        g.a('s_mov_b64 exec, 0xff')
        g.ds(f'ds_write_b64 v{V_STW}, v[{ta}:{tb}] offset:{s*256}')
        g.a('s_mov_b64 exec, -1')
    e.group(w)


def y_tr(e, s):
    for i in range(7):
        e.ds(f'ds_read_b64_tr_b16 v[{YR+4*i}:{YR+4*i+1}], v{V_YT0} offset:{s*4*YP + 1024*i}', 'ytr')
        e.ds(f'ds_read_b64_tr_b16 v[{YR+4*i+2}:{YR+4*i+3}], v{V_YT1} offset:{s*4*YP + 1024*i}', 'ytr')
    e.lwait('ytr')


def x_loads(e, s):
    X = XR(s)
    e.a(f's_add_u32 s72, s71, {WS_X2 + s*4*7168}')
    e.a(f's_add_u32 s74, s71, {WS_X2 + s*4*7168 + 4096}')
    for i in range(7):
        so, off = ('s72', 1024 * i) if i < 4 else ('s74', 1024 * (i - 4))
        e.vmem(f'buffer_load_dwordx4 v[{X+4*i}:{X+4*i+3}], v2, {WSR}, {so} offen offset:{off} sc1', f'x{s}')


def y_loads(e, s):
    e.a(f's_add_u32 s72, s71, {WS_YX + s*4*7168}')
    e.a(f's_add_u32 s74, s71, {WS_YX + s*4*7168 + 4096}')
    for i in range(7):
        so, off = ('s72', 1024 * i) if i < 4 else ('s74', 1024 * (i - 4))
        e.vmem(f'buffer_load_dwordx4 v[{YR+4*i}:{YR+4*i+3}], v2, {WSR}, {so} offen offset:{off} sc1', f'y{s}')


def opflag(op): return op * 32 * 256


def m1(g, layer, s, nfill, bgp=0, bg_from=0):
    ACC = XR(s)
    def rd(k):
        sl = BR + 4 * (k % 3)
        g.ds(f'ds_read_b128 v[{sl}:{sl+3}], v{V_B} offset:{s*R_SZ + 1024*k}', f'b{k}')
    rd(0); rd(1)
    RES = 8 + 4 * s
    g.ds(f'ds_read_b128 v[{RES}:{RES+3}], v{V_RES} offset:{s*R_SZ}')
    g.ds(f'ds_read_b64 v[{V_ST+2*s}:{V_ST+2*s+1}], v{V_STR} offset:{s*256}')
    for k in range(28):
        if k + 2 < 28: rd(k + 2)
        g.lwait(f'b{k}')
        sl = BR + 4 * (k % 3)
        for ft2 in range(2):
            o = ACC + 16 * ft2
            c = f'v[{o}:{o+15}]' if k else '0'
            r = w1_reg(ft2, k)
            g.a(f'v_mfma_f32_32x32x16_bf16 v[{o}:{o+15}], a[{r}:{r+3}], v[{sl}:{sl+3}], {c}')
            g.fill(2 * k + ft2, nfill)
        if k >= bg_from: g.pump(bgp)


def e1(e, layer, s, CT, plain=True, halves=(0, 1)):
    ACC = XR(s)
    mm = V_ST + 2 * s
    e.a(f's_add_u32 s73, s75, {WS_HB[layer] + s*112*1024}')
    for ft2 in halves:
        o = ACC + 16 * ft2
        for hb in range(2):
            for q in range(2):
                e.ds(f'ds_read_b128 v[{CT+4*q}:{CT+4*q+3}], v{V_CS} offset:{ft2*128 + hb*32 + q*16}', 'cs')
            e.lwait('cs')
            for x in range(8): e.a(f'v_fmac_f32 v{o+8*hb+x}, v{CT+x}, v{mm}')
        if plain:
            for x in range(16): e.a(f'v_max_f32 v{o+x}, 0, v{o+x}')
        for p in range(8):
            e.a(f'v_cvt_pk_bf16_f32 v{o+p}, v{o+2*p}, v{o+2*p+1}')
        if not plain:
            for p in range(8):
                e.a(f'v_pk_max_i16 v{o+p}, v{o+p}, 0')
        for hf in range(2):
            r = o + 4 * hf
            e.vmem(f'buffer_store_dwordx4 v[{r}:{r+3}], v2, {WSR}, s73 offen offset:{2048*ft2 + 1024*hf} sc1', f'hst{s}')


HSL = [96 + 4 * i for i in range(7)] + [80, 84, 88, 92, 140]
NSL = len(HSL)


XSL = {}


def h_slot(s, k):
    x = XSL.get(s, [])
    n = NSL + len(x)
    k %= n
    return HSL[(k + 4 * s) % NSL] if k < NSL else x[k - NSL]


def n_slots(s): return NSL + len(XSL.get(s, []))


def h_load(e, layer, s, k):
    sl = h_slot(s, k)
    def f(g):
        g.a(f's_add_u32 s70, s77, {WS_HB[layer] + s*112*1024 + 4096*(k//4)}')
        g.vmem(f'buffer_load_dwordx4 v[{sl}:{sl+3}], v2, {WSR}, s70 offen offset:{1024*(k%4)} sc1', f'h{s}_{k}')
    e.group(f)


def m2(g, layer, s, nfill, first_issued, after=None):
    ACC = XR(s)
    for k in range(first_issued, NSL): h_load(g, layer, s, k)
    def rdw(k):
        if k == 24:
            g.a(f'v_add_u32 v{V_C0}, 0x10000, v{V_C0}')
            g.a(f'v_add_u32 v{V_C1}, 0x10000, v{V_C1}')
        for dt in range(2):
            r = WT + 8 * (k % 2) + 4 * dt
            for hh in range(2):
                g.ds(f'ds_read_b64_tr_b16 v[{r+2*hh}:{r+2*hh+1}], v{V_C1 if dt else V_C0} offset:{8192*((k-16)%8) + 1024*hh}', f'w{k}')
    for k in range(28):
        if k == 14: g.vwait('w2l')
        if k in (14, 15): rdw(k + 2)
        g.wait2(f'h{s}_{k}', f'w{k}' if k >= 16 else None)
        sl = h_slot(s, k)
        for dt in range(2):
            o = ACC + 16 * dt
            c = f'v[{o}:{o+15}]' if k else '0'
            kind, r = w2_loc(k, dt)
            if kind == 'l': kind, r = 'v', WT + 8 * (k % 2) + 4 * dt
            g.a(f'v_mfma_f32_32x32x16_bf16 v[{o}:{o+15}], {kind}[{r}:{r+3}], v[{sl}:{sl+3}], {c}')
            g.fill(2 * k + dt, nfill)
        if k + NSL < 28: h_load(g, layer, s, k + NSL)
        elif after: after(k)
        if 16 <= k and k + 2 < 28: rdw(k + 2)
    g.a(f'v_subrev_u32 v{V_C0}, 0x10000, v{V_C0}')
    g.a(f'v_subrev_u32 v{V_C1}, 0x10000, v{V_C1}')


def e2_head(g, layer, s):
    ACC = XR(s)
    nm = f'E2_{layer}{s}'
    done = f'{nm}_RD'
    for w in range(4):
        if w < 3:
            g.a(f's_cmp_lg_u32 s3, {w}')
            g.a(f's_cbranch_scc1 {nm}_R{w+1}')
        for t in range(4):
            if t == w: continue
            slot = (w - t - 1) % 4
            for q in range(2):
                r = ACC + 8 * t + 4 * q
                g.a(f'ds_write_b128 v{V_B}, v[{r}:{r+3}] offset:{s*R_SZ + t*6144 + slot*2048 + q*1024}')
        if w != 0:
            for x in range(8): g.a(f'v_mov_b32 v{ACC+x}, v{ACC+8*w+x}')
        if w < 3:
            g.a(f's_branch {done}')
            g.label(f'{nm}_R{w+1}')
    g.label(done)
    for _ in range(6): g.lg.issue()


def e2_tail(e, layer, s, defer=False):
    ACC = XR(s)
    e.barrier()
    for i in range(6):
        e.ds(f'ds_read_b128 v[{ACC+8+4*i}:{ACC+11+4*i}], v{V_RED} offset:{s*R_SZ + 1024*i}', f'rr{i}')
    r2 = V_ST + 2 * s + 1
    for sl in range(3):
        e.lwait(f'rr{2*sl+1}')
        for p in range(4):
            e.a(f'v_pk_add_f32 v[{ACC+2*p}:{ACC+2*p+1}], v[{ACC+2*p}:{ACC+2*p+1}], v[{ACC+8+8*sl+2*p}:{ACC+9+8*sl+2*p}]')
    for x in range(8): e.a(f'v_mul_f32 v{ACC+x}, v{ACC+x}, v{r2}')
    P = ACC + 8
    for p in range(4): e.a(f'v_cvt_pk_bf16_f32 v{P+p}, v{ACC+2*p}, v{ACC+2*p+1}')
    e.a(f'v_permlane32_swap_b32 v{P}, v{P+2}')
    e.a(f'v_permlane32_swap_b32 v{P+1}, v{P+3}')
    RES = 8 + 4 * s
    for p in range(4):
        e.a(f'v_lshlrev_b32 v{ACC+2*p}, 16, v{P+p}')
        e.a(f'v_and_b32 v{ACC+2*p+1}, s64, v{P+p}')
    for p in range(4):
        e.a(f'v_dot2_f32_bf16 v{ACC+2*p}, v{RES+p}, s60, v{ACC+2*p}')
        e.a(f'v_dot2_f32_bf16 v{ACC+2*p+1}, v{RES+p}, s61, v{ACC+2*p+1}')
    for p in range(4): e.a(f'v_cvt_pk_bf16_f32 v{P+20+p}, v{ACC+2*p}, v{ACC+2*p+1}')
    Q = P + 20
    if layer == 0:
        z = ACC + 8
        e.a(f'v_pk_add_f32 v[{z}:{z+1}], v[{ACC}:{ACC+1}], v[{ACC+2}:{ACC+3}]')
        e.a(f'v_pk_add_f32 v[{z+2}:{z+3}], v[{ACC+4}:{ACC+5}], v[{ACC+6}:{ACC+7}]')
        e.a(f'v_pk_add_f32 v[{z}:{z+1}], v[{z}:{z+1}], v[{z+2}:{z+3}]')
        e.a(f'v_add_f32 v{ACC+24}, v{z}, v{z+1}')
        e.a(f'v_mul_f32 v{z+2}, 0xbe000000, v{ACC+24}')
        for p in range(4):
            e.a(f'v_pk_add_f32 v[{ACC+2*p}:{ACC+2*p+1}], v[{ACC+2*p}:{ACC+2*p+1}], v[{z+2}:{z+3}] op_sel_hi:[1,0]')
        e.a(f'v_pk_mul_f32 v[{z+4}:{z+5}], v[{ACC}:{ACC+1}], v[{ACC}:{ACC+1}]')
        for p in range(1, 4):
            e.a(f'v_pk_fma_f32 v[{z+4}:{z+5}], v[{ACC+2*p}:{ACC+2*p+1}], v[{ACC+2*p}:{ACC+2*p+1}], v[{z+4}:{z+5}]')
        e.a(f'v_add_f32 v{ACC+25}, v{z+4}, v{z+5}')
        e.a(f'v_lshrrev_b32 v{ACC+26}, 1, v{V_XST}')
        if not defer: e2_stores(e, s)
    else:
        e.a(f's_add_u32 s73, s79, {s*4*7168}')
        e.vmem(f'buffer_store_dwordx4 v[{Q}:{Q+3}], v{V_OST}, s[52:55], s73 offen')


def e2_stores(e, s):
    ACC = XR(s)
    Q, z = ACC + 28, ACC + 24
    def f(g):
        g.a(f's_add_u32 s73, s78, {WS_X2 + s*4*7168}')
        g.vmem(f'buffer_store_dwordx4 v[{Q}:{Q+3}], v{V_XST}, {WSR}, s73 offen sc1', f'xst{s}')
        g.a('s_lshr_b32 s73, s78, 1')
        g.a(f's_add_u32 s73, s73, {WS_SP + s*2*7168}')
        g.vmem(f'buffer_store_dwordx2 v[{z}:{z+1}], v{z+2}, {WSR}, s73 offen sc1', f'xst{s}')
    e.group(f)


F_W1S, F_W2S, F_T1, F_T2, F_FB, F_VF, F_VG, F_N15, F_G4, F_T16 = 240, 241, 242, 244, 246, 247, 248, 249, 250, 251


def front(g):
    a = g.a
    MK, AC, PR, KO, TAP, KR, VR, HH, FT = 80, 112, 120, 128, 136, 152, 172, 180, 196
    a('v_and_b32 v1, 63, v0')
    a('v_lshrrev_b32 v2, 6, v0')
    a('v_readfirstlane_b32 s3, v2')
    a(f's_mul_hi_u32 s6, s2, {magic(7)}')
    a('s_mul_i32 s7, s6, 7')
    a('s_sub_u32 s7, s2, s7')
    a('v_and_b32 v252, 7, v0')
    a('v_lshrrev_b32 v253, 3, v0')
    a('s_lshl_b32 s8, s6, 6')
    a('v_lshl_add_u32 v254, v253, 1, s8')
    a('s_movk_i32 s8, 896')
    a('v_mul_lo_u32 v254, v254, s8')
    a('s_lshl_b32 s8, s7, 7')
    a('v_lshl_add_u32 v255, v252, 4, s8')
    a('v_add_u32 v254, v254, v255')
    a('v_add_u32 v44, -896, v254')
    a('v_add_u32 v45, -1792, v254')
    a('v_add_u32 v46, -2688, v254')
    a('v_lshlrev_b32 v255, 2, v255')
    a('v_lshlrev_b32 v2, 4, v1')
    a('s_waitcnt lgkmcnt(0)')
    srd(a, 88, P_SHK, 0, 448 * 8)
    srd(a, 56, P_K, 0, XBYTES)
    srd(a, 84, P_V, 0, XBYTES)
    for i in range(4):
        g.vmem(f'buffer_load_dwordx4 v[{TAP+4*i}:{TAP+4*i+3}], v255, s[88:91], 0 offen offset:{16*i}', 'tap')
    g.vmem(f'buffer_load_dwordx4 v[{KR}:{KR+3}], v46, s[56:59], 0 offen', 'k')
    g.vmem(f'buffer_load_dwordx4 v[{KR+4}:{KR+7}], v45, s[56:59], 0 offen', 'k')
    g.vmem(f'buffer_load_dwordx4 v[{KR+8}:{KR+11}], v44, s[56:59], 0 offen', 'k')
    g.vmem(f'buffer_load_dwordx4 v[{KR+12}:{KR+15}], v254, s[56:59], 0 offen', 'k')
    g.vmem(f'buffer_load_dwordx4 v[{KR+16}:{KR+19}], v254, s[56:59], 0 offen offset:896', 'k')
    g.vmem(f'buffer_load_dwordx4 v[{VR}:{VR+3}], v254, s[84:87], 0 offen', 'v')
    g.vmem(f'buffer_load_dwordx4 v[{VR+4}:{VR+7}], v254, s[84:87], 0 offen offset:896', 'v')
    srd(a, 88, P_DBG, 0, 256)
    srd(a, 40, P_WS, 0, WS_SIZE + (0x100000 if PROF else 0))
    a('v_mov_b32 v0, 0')
    a('s_or_b32 s8, s2, s3')
    a('s_cmp_lg_u32 s8, 0')
    a('s_cbranch_scc1 NONCE_SKIP')
    a('s_memrealtime s[8:9]')
    a('s_waitcnt lgkmcnt(0)')
    a('s_or_b32 s8, s8, 1')
    a('v_mov_b32 v4, s8')
    a('buffer_store_dword v4, v0, s[88:91], 0 offen sc1')
    g.label('NONCE_SKIP')
    a('s_lshr_b32 s8, s3, 1')
    a('s_and_b32 s9, s3, 1')
    a('s_lshl_b32 s10, s2, 1')
    a('s_add_u32 s10, s10, s8')
    a('s_lshl_b32 s11, s10, 12')
    a(f's_mul_i32 s12, s8, {K2_CB}')
    a('s_lshl_b32 s13, s9, 11')
    a(f'v_add_u32 v{F_T16}, s13, v2')
    a(f'v_add_u32 v8, -16, v{F_T16}')
    srd(a, 44, P_SSMK, 's11', 4096)
    a('s_lshl_b32 s14, s2, 2')
    a('s_load_dword s15, s[26:27], s14')
    a('s_lshl_b32 s68, s7, 2')
    a('s_add_u32 s68, s68, s3')
    a('s_sub_u32 s69, 31, s6')
    a('s_lshl_b32 s80, s68, 16')
    a('s_lshl_b32 s70, s69, 7')
    a('s_add_u32 s80, s80, s70')
    a('s_lshl_b32 s81, s68, 5')
    a('s_add_u32 s81, s81, s69')
    a('s_lshl_b32 s81, s81, 3')
    a(f's_add_u32 s81, s81, {WS_KF}')
    a(f'v_lshrrev_b32 v{F_G4}, 4, v1')
    a('v_bfe_u32 v10, v1, 2, 2')
    a('v_and_b32 v11, 3, v1')
    a(f'v_lshl_add_u32 v12, v{F_G4}, 3, v10')
    a('v_mul_u32_u24 v12, 144, v12')
    a('v_lshl_add_u32 v12, v11, 3, v12')
    a('s_lshl_b32 s13, s3, 5')
    a(f's_add_u32 s13, s13, {K2_SCR}')
    a('v_add_u32 v12, s13, v12')
    a(f'v_and_b32 v{F_N15}, 15, v1')
    a(f'v_mul_u32_u24 v13, 144, v{F_N15}')
    a(f'v_lshl_add_u32 v13, v{F_G4}, 4, v13')
    a(f's_mul_i32 s13, s3, {RING}')
    a(f's_add_u32 s13, s13, {L_R0}')
    a('v_add_u32 v13, s13, v13')
    a('v_lshrrev_b32 v46, 3, v1')
    a('v_and_b32 v47, 7, v1')
    a('v_mul_u32_u24 v44, 144, v46')
    a('v_lshl_add_u32 v44, v47, 4, v44')
    a('v_add_u32 v76, s13, v44')
    a('v_lshlrev_b32 v46, 12, v46')
    a('v_lshl_add_u32 v77, v47, 4, v46')
    a('v_mov_b32 v254, v76')
    a('v_mov_b32 v255, v77')
    a('v_lshlrev_b32 v14, 1, v253')
    a('v_sub_u32 v14, 62, v14')
    a('v_mul_u32_u24 v14, 144, v14')
    a('v_lshl_add_u32 v14, v252, 4, v14')
    a(f'v_add_u32 v14, {K2_SCR}, v14')
    wg_map(a)
    a('v_and_b32 v3, 7, v1')
    a('v_lshrrev_b32 v6, 3, v1')
    a('v_xor_b32 v15, v3, v6')
    a('v_lshlrev_b32 v15, 4, v15')
    a('s_movk_i32 s13, 896')
    a('v_mad_u32_u24 v15, v6, s13, v15')
    a('s_lshl_b32 s71, s4, 3')
    a('s_add_u32 s71, s71, s3')
    a('s_mul_i32 s71, s71, 7168')
    a(f's_add_u32 s72, s71, {4*7168}')
    srd(a, 48, P_Q, 0, XBYTES)
    a('s_mov_b32 s60, 0x00003f80')
    a('s_mov_b32 s61, 0x3f800000')
    a('s_mov_b32 s62, 0x3f803f80')
    a('s_mov_b32 s63, 0x3b124925')
    a('s_mov_b32 s64, 0xffff0000')
    a('s_mov_b32 s65, 0xffff')
    a(f's_mov_b32 {SPIN}, 0')
    srd(a, 92, P_W1, 0, WBYTES)
    srd(a, 96, P_W2, 0, WBYTES)
    a('v_bfe_u32 v76, v1, 4, 1')
    a('v_lshlrev_b32 v76, 2, v76')
    a('v_xor_b32 v76, v76, v3')
    a('v_lshlrev_b32 v76, 4, v76')
    a('s_movk_i32 s13, 3584')
    a(f'v_mad_u32_u24 v{F_W1S}, v6, s13, v76')
    a('s_movk_i32 s13, 896')
    a(f'v_mad_u32_u24 v{F_W2S}, v6, s13, v76')
    a('s_lshl_b32 s56, s5, 9')
    a('s_lshl_b32 s13, s3, 7')
    a('s_add_u32 s56, s56, s13')
    a(f's_mul_i32 s57, s3, {448*896}')
    a('s_lshl_b32 s13, s5, 7')
    a('s_add_u32 s57, s57, s13')
    a(f's_mul_i32 s58, s3, {RING}')
    a(f's_add_u32 s58, s58, {L_R0}')
    a('s_lshl_b32 s59, s3, 11')
    a(f'v_and_b32 v76, 1, v{F_G4}')
    a('v_lshlrev_b32 v76, 5, v76')
    a('v_lshl_add_u32 v76, v11, 3, v76')
    a('v_lshl_add_u32 v76, v10, 7, v76')
    a('v_lshrrev_b32 v77, 1, v10')
    a('v_lshlrev_b32 v77, 6, v77')
    a('v_xor_b32 v78, 64, v77')
    a(f'v_lshrrev_b32 v79, 1, v{F_G4}')
    a('v_lshl_add_u32 v44, v79, 10, v76')
    a('v_lshl_add_u32 v45, v79, 9, v76')
    a(f'v_add3_u32 v{F_T1}, v44, v77, s58')
    a(f'v_add3_u32 v{F_T1+1}, v44, v78, s58')
    a(f'v_add3_u32 v{F_T2}, v45, v77, s58')
    a(f'v_add3_u32 v{F_T2+1}, v45, v78, s58')

    a('v_xor_b32 v78, v3, v6')
    a('v_lshl_add_u32 v78, v3, 3, v78')
    a('v_lshl_add_u32 v78, v78, 4, s58')
    g.w2s, g.w2t, g.fixw = F_W2S, F_T2, 252
    a('v_add_u32 v79, s58, v2')
    def qraw(s):
        for gi in range(7 * s, 7 * s + 7):
            r = XR(gi // 7) + 4 * (gi % 7)
            g.vmem(f'buffer_load_dwordx4 v[{r}:{r+3}], v15, s[48:51], s{71+gi//7} offen offset:{128*(gi%7)}', f'q{gi//7}')
    def qrd(s):
        g.vwait(f'q{s}')
        for i in range(7):
            r = XR(s) + 4 * i
            g.ds(f'ds_write_b128 v79, v[{r}:{r+3}] offset:{(7+i)*1024}', 'qw')
        g.lwait('qw')
        for i in range(7):
            r = XR(s) + 4 * i
            g.ds(f'ds_read_b128 v[{r}:{r+3}], v78 offset:{(7+i)*1024}', 'qr')
    g.qrd, g.qraw = qrd, qraw
    def w1raw(k, x):
        def f():
            r = w1_reg(x, k)
            g.vmem(f'buffer_load_dwordx4 a[{r}:{r+3}], v{F_W1S}, s[92:95], s56 offen', f'r1_{k}')
            a('s_add_u32 s56, s56, 28672')
        return f
    def w2raw(k, x):
        def f():
            kd, r = w2_loc(k, x)
            a(f's_add_u32 s13, s57, {7168*(2*k + x)}')
            g.vmem(f'buffer_load_dwordx4 {kd}[{r}:{r+3}], v{g.w2s}, s[96:99], s13 offen', f'r2_{k}')
        return f
    def w2l(k):
        def f():
            for blk in range(2):
                a(f's_add_u32 m0, s59, {(k-16)*8192 + blk*1024}')
                a(f's_add_u32 s13, s57, {7168*(2*k + blk)}')
                g.vmem(f'buffer_load_dwordx4 v{g.w2s}, s[96:99], s13 offen lds', 'w2l')
        return f
    def fix_w(mat, k, slot):
        def f():
            g.vwait(f'r{mat}_{k}')
            g.lwait(f'fx{slot}')
            for x in range(2):
                kd, r = ('a', w1_reg(x, k)) if mat == 1 else w2_loc(k, x)
                wa = 'v79' if mat == 1 else f'v{g.fixw}'
                g.ds(f'ds_write_b128 {wa}, {kd}[{r}:{r+3}] offset:{slot*2048 + 1024*x}', f'fw{mat}_{k}')
        return f
    def fix_r(mat, k, slot):
        def f():
            g.lwait(f'fw{mat}_{k}')
            for x in range(2):
                for hh in range(2):
                    if mat == 1:
                        r = w1_reg(x, k) + 2 * hh
                        g.ds(f'ds_read_b64_tr_b16 a[{r}:{r+1}], v{F_T1+x} offset:{slot*2048 + 512*hh}', f'fx{slot}')
                    else:
                        kd, r = w2_loc(k, x)
                        r += 2 * hh
                        g.ds(f'ds_read_b64_tr_b16 {kd}[{r}:{r+1}], v{g.w2t+x} offset:{slot*2048 + 1024*hh}', f'fx{slot}')
        return f
    g.fix_ok = lambda: (57 - len(g.fixq)) // 2 + 1 <= (56 - len(g.bg) - 12) // 2
    g.w1raw, g.w2raw, g.w2l, g.fix_w, g.fix_r = w1raw, w2raw, w2l, fix_w, fix_r
    for k in range(28):
        for x in range(2): g.bg.append(w1raw(k, x))
    g.fixq = deque()
    g.fix_w_done, g.fix_r_done = 0, 0
    def fw(k):
        def f(): fix_w(1, k, k % 3)(); g.fix_w_done = k + 1
        return f
    def fr(k):
        def f(): fix_r(1, k, k % 3)(); g.fix_r_done = k + 1
        return f
    for k in range(30):
        if k < 28: g.fixq.append(fw(k))
        if k >= 2: g.fixq.append(fr(k - 2))
    g.fix_ok = lambda: g.fix_w_done + 1 <= (56 - len(g.bg) - 12) // 2
    g.vwait('tap')
    for e in range(8):
        A, B = TAP + 2 * e, TAP + 2 * e + 1
        if e % 2 == 0:
            a(f'v_and_b32 v{MK+e}, s65, v{A}')
            a(f'v_lshrrev_b32 v{MK+8+e}, 16, v{A}')
            a(f'v_and_b32 v{MK+16+e}, s65, v{B}')
            a(f'v_lshrrev_b32 v{MK+24+e}, 16, v{B}')
        else:
            a(f'v_lshlrev_b32 v{MK+e}, 16, v{A}')
            a(f'v_and_b32 v{MK+8+e}, s64, v{A}')
            a(f'v_lshlrev_b32 v{MK+16+e}, 16, v{B}')
            a(f'v_and_b32 v{MK+24+e}, s64, v{B}')
    g.vwait('v')
    stamp(g, 1)
    g.vmem(f'buffer_load_dwordx4 v[{HH}:{HH+3}], v8, s[44:47], 0 offen', 'h0')
    g.vmem(f'buffer_load_dwordx4 v[{HH+4}:{HH+7}], v{F_T16}, s[44:47], 0 offen', 'h0')
    g.vmem(f'buffer_load_dwordx4 v[{HH+8}:{HH+11}], v{F_T16}, s[44:47], 0 offen offset:1008', 'h1')
    g.vmem(f'buffer_load_dwordx4 v[{HH+12}:{HH+15}], v{F_T16}, s[44:47], 0 offen offset:1024', 'h1')
    g.vmem('buffer_load_dword v252, v0, s[88:91], 0 offen sc1', 'nonce')
    for rr in range(2):
        K3, K2, K1, K0 = [KR + 4 * (rr + i) for i in range(4)]
        for e in range(8): a(f'v_dot2_f32_bf16 v{AC+e}, v{K3+e//2}, v{MK+24+e}, 0')
        for e in range(8): a(f'v_dot2_f32_bf16 v{PR+e}, v{K2+e//2}, v{MK+16+e}, 0')
        for Kx, m in ((K1, 8), (K0, 0), (None, None)):
            for e in range(8): a(f'v_cvt_pk_bf16_f32 v{AC+e}, v{AC+e}, v{PR+e}')
            if Kx is not None:
                for e in range(8): a(f'v_dot2_f32_bf16 v{PR+e}, v{Kx+e//2}, v{MK+m+e}, 0')
            for e in range(8): a(f'v_dot2_f32_bf16 v{AC+e}, v{AC+e}, s62, 0')
        for p in range(4): a(f'v_cvt_pk_bf16_f32 v{PR+p}, v{AC+2*p}, v{AC+2*p+1}')
        if rr == 0: g.vwait('v')
        for p in range(4):
            a(f'v_and_b32 v{AC+2*p}, s65, v{VR+4*rr+p}')
            a(f'v_and_b32 v{AC+2*p+1}, s64, v{VR+4*rr+p}')
        for e in range(8): a(f'v_dot2_f32_bf16 v{AC+e}, v{PR+e//2}, v{AC+e}, 0')
        for p in range(4): a(f'v_cvt_pk_bf16_f32 v{KO+4*rr+p}, v{AC+2*p}, v{AC+2*p+1}')
        g.ds(f'ds_write_b128 v14, v[{KO+4*rr}:{KO+4*rr+3}] offset:{144*(1-rr)}')
        if rr == 0:
            a('s_lshl_b32 s84, s2, 2')
            a('s_add_u32 s84, s84, s3')
            a('s_lshl_b32 s14, s84, 11')
            a('s_mul_i32 s84, s84, 1792')
            g.vmem(f'buffer_load_dwordx4 v[{TAP}:{TAP+3}], v2, s[92:95], s84 offen')
            g.vmem(f'buffer_load_dwordx4 v[{TAP+4}:{TAP+7}], v2, s[92:95], s84 offen offset:768')
            g.vmem(f'buffer_load_dwordx4 v[{TAP+8}:{TAP+11}], v2, s[48:51], s14 offen')
            g.vmem(f'buffer_load_dwordx4 v[{TAP+12}:{TAP+15}], v2, s[48:51], s14 offen offset:1024')
    g.barrier()
    for u in range(2):
        for hh in range(2):
            g.ds(f'ds_read_b64_tr_b16 v[{KO+4*u+2*hh}:{KO+4*u+2*hh+1}], v12 offset:{(32*u+4*hh)*144}', f'kt{u}')
    for u in range(2):
        g.lwait(f'kt{u}')
        g.ds(f'ds_write_b128 v13, v[{KO+4*u}:{KO+4*u+3}] offset:{64*u}', 'k2w')
    g.lwait('k2w')
    for u in range(2):
        g.ds(f'ds_read_b128 v[{KO+4*u}:{KO+4*u+3}], v254 offset:{8*144*u}', f'k2r{u}')
    a('s_add_u32 s13, s80, 32768')
    for u in range(2):
        g.lwait(f'k2r{u}')
        g.vmem(f'buffer_store_dwordx4 v[{KO+4*u}:{KO+4*u+3}], v255, {WSR}, {"s13" if u else "s80"} offen sc1', 'kst')
    stamp(g, 2)
    g.vwait('nonce')
    g.label('NONCE_P')
    a('v_readfirstlane_b32 s66, v252')
    a('s_cmp_lg_u32 s66, 0')
    a('s_cbranch_scc1 NONCE_D')
    a(f's_add_u32 {SPIN}, {SPIN}, 1')
    a(f's_cmp_gt_u32 {SPIN}, 0x40000')
    a('s_cbranch_scc1 NONCE_D')
    a('buffer_load_dword v252, v0, s[88:91], 0 offen sc1')
    a('s_waitcnt vmcnt(0)')
    a('s_branch NONCE_P')
    g.label('NONCE_D')
    a('s_not_b32 s67, s66')
    a('v_mov_b32 v4, s66')
    a('v_mov_b32 v5, s67')
    stamp(g, 24)
    a(f'v_add_u32 v{F_FB}, s12, v{F_T16}')
    for i in range(4): a(f'v_mov_b32 v{236+i}, 0')
    a(f'v_lshlrev_b32 v{F_VF}, 2, v3')
    a('s_mov_b32 s14, 0x1cb88541')
    a(f'v_lshrrev_b32 v{F_VF}, v{F_VF}, s14')
    a(f'v_and_b32 v{F_VF}, 15, v{F_VF}')
    a('v_mul_u32_u24 v252, 272, v3')
    a(f'v_add_u32 v{F_VF}, v{F_VF}, v252')
    a(f'v_lshl_add_u32 v{F_VF}, v{F_VF}, 4, s12')
    a('s_cmp_eq_u32 s9, 0')
    a('s_cbranch_scc0 CV_Z1')
    a('s_mov_b64 exec, 0xff')
    a(f'ds_write_b128 v{F_VF}, v[236:239]')
    a('s_mov_b64 exec, -1')
    a('s_branch CV_Z2')
    g.label('CV_Z1')
    a('v_add_u32 v252, s12, v2')
    a(f'ds_write_b128 v252, v[236:239] offset:{K2_G+4096}')
    g.label('CV_Z2')
    g.lg.issue()
    a('v_bfe_u32 v252, v1, 3, 1')
    a(f'v_add_u32 v252, v252, v{F_G4}')
    a(f'v_lshl_add_u32 v{F_VF}, v252, 4, v{F_VF}')
    a('s_lshl_b32 s14, s9, 8')
    a(f'v_add_u32 v{F_VF}, s14, v{F_VF}')
    a(f'v_lshlrev_b32 v{F_VG}, 5, v{F_N15}')
    a(f'v_lshlrev_b32 v252, 4, v{F_G4}')
    a(f'v_sub_u32 v{F_VG}, v252, v{F_VG}')
    a('s_add_u32 s14, s14, s12')
    a(f's_add_u32 s14, s14, {K2_G+480}')
    a(f'v_add_u32 v{F_VG}, s14, v{F_VG}')
    for p in range(2):
        d = HH + 8 * p
        t = FT + 20 * p
        g.vwait(f'h{p}')
        for k in range(6): a(f'v_mov_b32 v{t+k}, v{d+1+k}')
        for k in range(6): a(f'v_alignbyte_b32 v{t+6+k}, v{d+k+1}, v{d+k}, 2')
        for k in range(6): a(f'v_alignbyte_b32 v{t+12+k}, v{d+k+2}, v{d+k+1}, 2')
        src = {1: t + 6, 2: t, 3: t + 12, 4: d + 2, 5: t + 8, 6: t + 2, 7: t + 14, 8: d + 4}
        for r in range(1, 9):
            off = ((r - 1) * 272 + FC[r - 1] + 1) * 16 + 1024 * p
            g.ds(f'ds_write_b128 v{F_FB}, v[{src[r]}:{src[r]+3}] offset:{off}')
            if r in (3, 6) : g.pump(2)
    stamp(g, 25)
    publish(g, 'kst', [])
    stamp(g, 3)
    qraw(0)
    a('v_min_u32 v255, 15, v1')
    a('v_lshlrev_b32 v255, 3, v255')
    setup = ['s_lshr_b32 s82, s10, 4', 's_lshl_b32 s82, s82, 8', 's_lshl_b32 s14, s9, 7', 's_add_u32 s82, s82, s14',
             f's_add_u32 s82, s82, {WS_KF}']
    poll_issue(g, 'v255', setup, KO, 'kf')
    g.pump(10)
    g.qrd(0)
    stamp(g, 26)
    poll_check(g, 'KFP', 'v255', KO, 'kf')
    stamp(g, 4)
    g.vmem(f'buffer_load_dwordx4 v[{KO}:{KO+3}], v{F_T16}, {WSR}, s11 offen sc1', 'kv0')
    g.vmem(f'buffer_load_dwordx4 v[{KO+4}:{KO+7}], v{F_T16}, {WSR}, s11 offen offset:1024 sc1', 'kv1')
    qraw(1)
    g.lwait('qr')
    r = Rec(g); ln1_stats(r, 0, 80)
    for i, (_, f) in enumerate(r.items):
        f()
        if i % 20 == 19: g.pump(1)
        if i % 10 == 4 and g.fix_ok(): g.fixq.popleft()()
    stamp(g, 27)
    g.vwait('kv0')
    g.ds(f'ds_write_b128 v{F_FB}, v[{KO}:{KO+3}] offset:{K2_G}')
    g.vwait('kv1')
    g.ds(f'ds_write_b128 v{F_FB}, v[{KO+4}:{KO+7}] offset:{K2_G+1024}')
    g.barrier()
    stamp(g, 5)


def conv(g):
    a = g.a
    ACC = 80
    def Fr(b, s): return 112 + 64 * b + 4 * s
    def Gr(b, t): return 144 + 64 * b + 4 * t
    def reads(qq):
        b = qq & 1
        L = []
        for t in range(8):
            L.append((f'ds_read_b128 v[{Fr(b,t)}:{Fr(b,t)+3}], v{F_VF} offset:{512*t+64*qq}', f'c{qq}_{t}'))
            L.append((f'ds_read_b128 v[{Gr(b,t)}:{Gr(b,t)+3}], v{F_VG} offset:{512*(7-t)+64*qq}', f'c{qq}_{t}'))
        return L
    for l, tg in reads(0): g.ds(l, tg)
    if getattr(g, 'w2pt', True):
        g.vmem('buffer_load_dwordx4 v[44:47], v2, s[96:99], s84 offen')
        g.vmem('buffer_load_dwordx4 v[252:255], v2, s[96:99], s84 offen offset:768', 'pt2')
    started = set()
    nm = 0
    for qq in range(4):
        b = qq & 1
        nxt = reads(qq + 1) if qq < 3 else []
        for m in range(8):
            pairs = [(s, t) for s in range(m + 1) for t in range(m + 1) if max(s, t) == m and s + t <= 7]
            g.lwait(f'c{qq}_{m}')
            for (s, t) in pairs:
                o = ACC + 4 * (s + t)
                c = f'v[{o}:{o+3}]' if (s + t) in started else '0'
                started.add(s + t)
                a(f'v_mfma_f32_16x16x32_bf16 v[{o}:{o+3}], v[{Fr(b,s)}:{Fr(b,s)+3}], v[{Gr(b,t)}:{Gr(b,t)+3}], {c}')
                nm += 1
                if nxt and m >= 2:
                    l, tg = nxt.pop(0); g.ds(l, tg)
                if nm % CONV_PUMP == 0: g.pump(1)
                if nm % 3 == 2 and g.fixq and g.fix_ok(): g.fixq.popleft()()
        for l, tg in nxt: g.ds(l, tg)
    stamp(g, 6)
    g.vwait('pt2')
    a('s_lshl_b32 s14, s3, 12')
    a(f's_add_u32 s14, s14, {K2_SCR}')
    a('v_add_u32 v44, s14, v2')
    a('s_xor_b32 s14, s3, 1')
    a('s_lshl_b32 s14, s14, 12')
    a(f's_add_u32 s14, s14, {K2_SCR}')
    a('v_add_u32 v45, s14, v2')
    a('s_cmp_eq_u32 s9, 0')
    a('s_cbranch_scc0 CV_R1')
    for j in range(4):
        a(f'ds_write_b128 v44, v[{ACC+16+4*j}:{ACC+19+4*j}] offset:{1024*j}')
    a('s_branch CV_R2')
    g.label('CV_R1')
    for j in range(4):
        a(f'ds_write_b128 v44, v[{ACC+4*j}:{ACC+3+4*j}] offset:{1024*j}')
    for j in range(16):
        a(f'v_mov_b32 v{ACC+j}, v{ACC+16+j}')
    g.label('CV_R2')
    a(f'v_lshlrev_b32 v46, 5, v{F_N15}')
    a(f'v_lshl_add_u32 v46, v{F_G4}, 3, v46')
    a('s_lshl_b32 s14, s9, 11')
    a(f's_sub_u32 s14, {K2_G + 4088 - 3*512}, s14')
    a('s_add_u32 s14, s14, s12')
    a('v_sub_u32 v46, s14, v46')
    for j in range(4):
        a(f'ds_read_b64 v[{128+2*j}:{129+2*j}], v46 offset:{(3-j)*512}')
    a('s_lshl_b32 s14, s15, 16')
    a('s_and_b32 s15, s15, 0xffff0000')
    a('s_cmp_eq_u32 s8, 0')
    a('s_cselect_b32 s15, s14, s15')
    g.barrier()
    for j in range(4):
        g.ds(f'ds_read_b128 v[{112+4*j}:{115+4*j}], v45 offset:{1024*j}', f'r{j}')
    a('s_lshl_b32 s14, s9, 11')
    a('s_add_u32 s14, s14, s12')
    a(f'v_lshlrev_b32 v46, 5, v{F_N15}')
    a(f'v_lshl_add_u32 v46, v{F_G4}, 3, v46')
    a('v_add_u32 v46, s14, v46')
    a('v_add_u32 v44, s14, v2')
    a('s_lshl_b32 s14, s9, 4')
    a('v_add_u32 v47, s14, v6')
    a('v_mul_u32_u24 v47, 448, v47')
    a('v_add_u32 v47, s10, v47')
    a('v_lshlrev_b32 v47, 7, v47')
    a('v_lshl_add_u32 v47, v3, 4, v47')
    for j in range(4):
        g.lwait(f'r{j}')
        for r in range(4): a(f'v_add_f32 v{ACC+4*j+r}, v{ACC+4*j+r}, v{112+4*j+r}')
        k0, k1 = 128 + 2 * j, 129 + 2 * j
        a(f'v_and_b32 v144, s64, v{k1}')
        a(f'v_lshlrev_b32 v145, 16, v{k1}')
        a(f'v_and_b32 v146, s64, v{k0}')
        a(f'v_lshlrev_b32 v147, 16, v{k0}')
        for r in range(4): a(f'v_mul_f32 v{144+r}, s15, v{144+r}')
        for r in range(4): a(f'v_cvt_pk_bf16_f32 v{144+r}, v{144+r}, v{ACC+4*j+r}')
        for r in range(4): a(f'v_dot2_f32_bf16 v{144+r}, v{144+r}, s62, 0')
        a(f'v_cvt_pk_bf16_f32 v{148+2*j}, v144, v145')
        a(f'v_cvt_pk_bf16_f32 v{149+2*j}, v146, v147')
        g.ds(f'ds_write_b64 v46, v[{148+2*j}:{149+2*j}] offset:{512*j}', 'y3w')
    g.lwait('y3w')
    for u in range(2):
        g.ds(f'ds_read_b128 v[{112+4*u}:{115+4*u}], v44 offset:{1024*u}', f'y3r{u}')
    for u in range(2):
        g.lwait(f'y3r{u}')
        a(f's_mov_b32 s14, {WS_YB + u*8*448*128}')
        g.vmem(f'buffer_store_dwordx4 v[{112+4*u}:{115+4*u}], v47, {WSR}, s14 offen sc1', 'yst')


def setup_gemm(g):
    a = g.a
    a(f'v_min_u32 v{V_FL}, 27, v1')
    a(f'v_lshlrev_b32 v{V_FL}, 3, v{V_FL}')
    a(f'v_lshrrev_b32 v{V_XW}, 1, v6')
    a(f'v_lshlrev_b32 v{V_XW}, 10, v{V_XW}')
    a(f'v_and_b32 v{V_STW}, 1, v6')
    a(f'v_lshl_add_u32 v{V_XW}, v{V_STW}, 9, v{V_XW}')
    a(f'v_lshl_add_u32 v{V_XW}, v3, 4, v{V_XW}')
    a('s_lshl_b32 s70, s3, 7')
    a(f's_add_u32 s70, s70, {L_R0}')
    a(f'v_add_u32 v{V_XW}, s70, v{V_XW}')
    a('s_lshl_b32 s70, s3, 6')
    a(f's_add_u32 s70, s70, {L_ST}')
    a(f'v_lshl_add_u32 v{V_STW}, v3, 3, s70')
    a(f'v_add_u32 v{V_B}, {L_R0}, v2')
    a('s_lshl_b32 s70, s5, 2')
    a('s_add_u32 s70, s70, s3')
    a('s_lshl_b32 s70, s70, 10')
    a(f'v_add_u32 v{V_RES}, s70, v{V_B}')
    a(f'v_and_b32 v{V_STR}, 31, v1')
    a(f'v_mul_u32_u24 v{V_OST}, 896, v{V_STR}')
    a(f'v_lshlrev_b32 v{V_STR}, 3, v{V_STR}')
    a(f'v_add_u32 v{V_STR}, {L_ST}, v{V_STR}')
    a(f'v_lshrrev_b32 v{V_Q}, 5, v1')
    a('s_lshl_b32 s70, s3, 8')
    a(f's_add_u32 s70, s70, {L_CS}')
    a(f'v_lshl_add_u32 v{V_CS}, v{V_Q}, 6, s70')
    a('s_mul_i32 s70, s3, 6144')
    a(f'v_add_u32 v{V_RED}, s70, v{V_B}')
    a(f'v_bfe_u32 v{V_XST}, v1, 3, 2')
    a(f'v_mul_u32_u24 v{V_XST}, 7168, v{V_XST}')
    a(f'v_lshl_add_u32 v{V_XST}, v3, 4, v{V_XST}')
    a('s_lshl_b32 s70, s3, 1')
    a(f'v_add_u32 v{V_Q}, s70, v{V_Q}')
    a(f'v_lshl_add_u32 v{V_XST}, v{V_Q}, 7, v{V_XST}')
    a(f'v_lshl_add_u32 v{V_OST}, v{V_Q}, 4, v{V_OST}')
    a('s_lshl_b32 s69, s4, 8')
    a(f's_add_u32 s69, s69, {WS_OF}')
    a('s_lshl_b32 s76, s5, 2')
    a('s_add_u32 s76, s76, s3')
    a('s_lshl_b32 s75, s76, 12')
    a('s_lshl_b32 s76, s76, 3')
    a('s_add_u32 s76, s76, s69')
    a(f's_mul_i32 s77, s4, {224*1024}')
    a('s_add_u32 s75, s75, s77')
    a(f's_mul_i32 s70, s3, {28*1024}')
    a('s_add_u32 s77, s77, s70')
    a('s_mul_i32 s78, s4, 57344')
    a('s_lshl_b32 s70, s5, 7')
    a('s_add_u32 s79, s78, s70')
    a('s_lshl_b32 s70, s5, 10')
    a('s_add_u32 s78, s78, s70')
    srd(a, 52, P_OUT, 0, XBYTES)
    a(f'v_mul_u32_u24 v76, {YP}, v3')
    a('s_mul_i32 s70, s3, 1792')
    a('v_add_u32 v76, s70, v76')
    a('s_and_b32 s70, s3, 1')
    a('s_lshl_b32 s70, s70, 2')
    a('v_xor_b32 v77, s70, v6')
    a('v_xor_b32 v78, 4, v77')
    a('v_lshl_add_u32 v77, v77, 4, v76')
    a('v_lshl_add_u32 v78, v78, 4, v76')
    a('v_lshrrev_b32 v44, 4, v1')
    a('v_bfe_u32 v45, v1, 1, 1')
    a('v_lshl_add_u32 v45, v44, 1, v45')
    a('v_lshlrev_b32 v45, 7, v45')
    a('v_bfe_u32 v46, v1, 2, 2')
    a('v_lshl_add_u32 v45, v46, 4, v45')
    a('v_and_b32 v46, 1, v1')
    a('v_lshl_add_u32 v45, v46, 3, v45')
    a(f's_mul_i32 s70, s3, {YP}')
    a('v_add_u32 v45, s70, v45')
    a('v_and_b32 v44, 1, v44')
    a('v_lshlrev_b32 v44, 6, v44')
    a(f'v_add_u32 v{V_YT0}, v45, v44')
    a('v_xor_b32 v44, 64, v44')
    a(f'v_add_u32 v{V_YT1}, v45, v44')
    a('v_min_u32 v47, 55, v1')
    a('v_lshlrev_b32 v47, 4, v47')
    a(f'v_lshlrev_b32 v{V_Q}, 3, v1')
    a(f'v_mov_b32 v{V_C0}, v136')
    a(f'v_mov_b32 v{V_C1}, v137')


def pub_op(op): return [f's_add_u32 s81, s76, {opflag(op)}']
def poll_op(op): return [f's_add_u32 s82, s69, {opflag(op)}']


def main_kernel(asm):
    g = G(asm)
    a = g.a
    asm(kernel_header(KNAME))
    if PROF:
        a('s_memrealtime s[100:101]')
        a('v_mov_b32 v7, 0')
        a('s_waitcnt lgkmcnt(0)')
        a('v_writelane_b32 v7, s100, 62')
        a('s_getreg_b32 s100, hwreg(HW_REG_XCC_ID)')
        a('v_writelane_b32 v7, s100, 61')
        a('s_getreg_b32 s100, hwreg(HW_REG_HW_ID)')
        a('v_writelane_b32 v7, s100, 60')
        stamp(g, 0)
    load_args(asm)
    a('s_cmp_ge_u32 s2, 224')
    a('s_cbranch_scc1 MAIN_END')
    front(g)
    conv(g)
    stamp(g, 11)
    setup_late = True
    g.vwait('yst')
    g.barrier()
    a('s_mul_i32 s81, s9, 224')
    a('s_add_u32 s81, s81, s2')
    a('s_lshl_b32 s81, s81, 3')
    a(f's_add_u32 s81, s81, {WS_CF}')
    publish(g, 'yst', [])
    stamp(g, 7)
    g.pump(100)
    g.qrd(1)
    a(f'v_mov_b32 v{V_W2S}, v{F_W2S}')
    a('s_sub_u32 s70, s59, s58')
    a(f'v_add_u32 v136, s70, v{F_T2}')
    a(f'v_add_u32 v137, s70, v{F_T2+1}')
    setup_gemm(g)
    g.w2s, g.w2t, g.fixw = V_W2S, 126, 131
    cf_setup = ['s_lshr_b32 s82, s4, 4', 's_mul_i32 s82, s82, 1792', f's_add_u32 s82, s82, {WS_CF}']
    g.lwait('qr')
    r = Rec(g); ln1_stats(r, 1, 80)
    for i, (_, f) in enumerate(r.items):
        f()
        if i == 40: poll_issue(g, 'v47', cf_setup, 116, 'cf', wide=2)
        if i % 6 == 5 and g.fixq: g.fixq.popleft()()
    while g.fixq: g.fixq.popleft()()
    stamp(g, 8)
    poll_check(g, 'CFP', 'v47', 116, 'cf', wide=2)
    stamp(g, 9)
    a('s_mul_i32 s70, s4, 57344')
    a('s_mul_i32 s72, s3, 14336')
    a('s_add_u32 s70, s70, s72')
    a(f's_add_u32 s70, s70, {WS_YB}')
    YL = [80 + 4 * i for i in range(12)] + [132, 140]
    for i in range(14):
        r = YL[i]
        g.vmem(f'buffer_load_dwordx4 v[{r}:{r+3}], v2, {WSR}, s70 offen offset:{1024*(i%4)} sc1', f'yl{i}')
        if i % 4 == 3: a('s_add_u32 s70, s70, 4096')
    for k in range(12):
        for x in range(2): g.bg.append(g.w2raw(k, x))
    for k in (25, 26, 27): g.bg.append(g.w2l(k))
    g.pump(4)
    for i in range(14):
        r = YL[i]
        g.vwait(f'yl{i}')
        g.ds(f'ds_write_b128 {"v78" if (i>>1)&1 else "v77"}, v[{r}:{r+3}] offset:{128*i}')
    g.barrier()
    stamp(g, 10)
    y_tr(g, 0)
    for i in range(4): a(f'v_mov_b32 v{132+i}, s62')
    r = Rec(g); p3(r, 0, 0); g.add(r)
    for k in range(28):
        for ft2 in range(2):
            o = 224 + 16 * ft2
            c = f'v[{o}:{o+15}]' if k else '0'
            rr = w1_reg(ft2, k)
            a(f'v_mfma_f32_32x32x16_bf16 v[{o}:{o+15}], a[{rr}:{rr+3}], v[132:135], {c}')
            g.fill(99, 7)
        g.pump(1)
    g.flush()
    a('s_mov_b32 exec_lo, 1')
    a('s_mov_b32 exec_hi, 1')
    for q in range(8):
        g.ds(f'ds_write_b128 v{V_CS}, v[{224+4*q}:{227+4*q}] offset:{(q//4)*128 + (q%4)*16}')
    a('s_mov_b64 exec, -1')
    for layer in range(2):
        sb = 12 + 16 * layer
        g.barrier()
        stamp(g, sb)
        r = Rec(g)
        if layer == 0:
            y_tr(r, 1)
            r.barrier()
            for k in range(12, 16):
                for x in range(2): g.bg.append(g.w2raw(k, x))
            for k in range(16, 24): g.bg.append(g.w2l(k))
        else:
            r.vwait('x1')
        p3(r, layer, 1)
        g.add(r)
        m1(g, layer, 0, 7, bgp=1 if layer == 0 else 0, bg_from=4)
        stamp(g, sb + 1)
        g.flush()
        g.barrier()
        stamp(g, sb + 2)
        if layer == 0:
            a(f'v_add_u32 v126, {8*8192}, v{V_C0}')
            a(f'v_add_u32 v127, {8*8192}, v{V_C1}')
            a(f's_add_u32 s70, s59, {8*8192}')
            a('v_add_u32 v131, s70, v2')
            for k in range(16):
                g.bg.append(g.fix_w(2, k, 0))
                g.bg.append(g.fix_r(2, k, 0))
            def last():
                g.lwait('fx0')
                g.w2l(24)()
            g.bg.append(last)
        r = Rec(g)
        e1(r, layer, 0, 80)
        r.at(38); publish(r, 'hst0', pub_op(4 * layer))
        r.at(48); poll_issue(r, f'v{V_FL}', poll_op(4 * layer), 124, 'pf')
        g.add(r)
        m1(g, layer, 1, 6, bgp=2 if layer == 0 else 0)
        stamp(g, sb + 3)
        g.flush()
        g.pump(100)
        poll_check(g, f'PH{layer}0', f'v{V_FL}', 124, 'pf')
        stamp(g, sb + 4)
        e1(g, layer, 1, WT, plain=False)
        r = Rec(g)
        publish(r, 'hst1', pub_op(4 * layer + 1))
        r.at(36); poll_issue(r, f'v{V_FL}', poll_op(4 * layer + 1), 76, 'pf')
        g.add(r)
        m2(g, layer, 0, 5, 0)
        stamp(g, sb + 5)
        g.flush()
        e2_head(g, layer, 0)
        poll_check(g, f'PH{layer}1', f'v{V_FL}', 76, 'pf')
        if layer == 1:
            for k in range(NSL): h_load(g, layer, 1, k)
        e2_tail(g, layer, 0)
        stamp(g, sb + 6)
        r = Rec(g)
        if layer == 0:
            publish(r, 'xst0', pub_op(2))
            r.at(34); poll_issue(r, f'v{V_FL}', poll_op(2), 44, 'pf')
            r.at(50); poll_check(r, 'PX0', f'v{V_FL}', 44, 'pf')
            x_loads(r, 0)
        g.add(r)
        m2(g, layer, 1, 5, NSL if layer == 1 else 0)
        stamp(g, sb + 7)
        g.flush()
        e2_head(g, layer, 1)
        if layer == 0:
            st_loads(g, 0)
            y_loads(g, 0)
        e2_tail(g, layer, 1)
        stamp(g, sb + 8)
        if layer == 0:
            ln1_combine(g, 0)
            g.vwait('y0')
            stamp(g, sb + 9)
            def yb(e, i):
                if i < 4: return
                for ii in (range(5) if i == 4 else [i]):
                    def f(g, ii=ii):
                        g.a(f's_add_u32 s72, s71, {WS_YX + 4*7168 + 1024*ii}')
                        g.vmem(f'buffer_load_dwordx4 v[{YR+4*ii}:{YR+4*ii+3}], v2, {WSR}, s72 offen sc1', 'y1')
                    e.group(f)
            r = Rec(g); p3(r, 1, 0, plain=False, after_group=yb)
            for i, (_, f) in enumerate(r.items):
                f()
                if i == 150: publish(g, 'xst1', pub_op(3))
                if i == 260: poll_issue(g, f'v{V_FL}', poll_op(3), 76, 'pf')
            stamp(g, sb + 10)
            poll_check(g, 'PX1', f'v{V_FL}', 76, 'pf')
            st_loads(g, 1)
            x_loads(g, 1)
            ln1_combine(g, 1)
    if PROF:
        a('s_waitcnt vmcnt(0)')
        stamp(g, 40)
        a('s_memrealtime s[100:101]')
        a('s_waitcnt lgkmcnt(0)')
        a('v_writelane_b32 v7, s100, 63')
        a('s_lshl_b32 s70, s2, 2')
        a('s_add_u32 s70, s70, s3')
        a('s_lshl_b32 s70, s70, 8')
        a(f's_add_u32 s70, s70, {WS_PROF + 0x10000}')
        a('v_lshlrev_b32 v16, 2, v1')
        a(f'buffer_store_dword v7, v16, {WSR}, s70 offen')
    g.label('MAIN_END')
    a('s_endpgm')


def main(out):
    asm = Asm()
    main_kernel(asm)
    hdr = open(f'cdna_kernels/{NAME}.s.ref').read().split('; Override launch')[0]
    hdr += f"""; @launch grid=(224,1,1) block=(256,1,1) lds={LDS_BYTES}
.amdgcn_target "amdgcn-amd-amdhsa--gfx950"
.text
"""
    tail = '.section .rodata,"a"\n' + kernel_desc(KNAME, 512, sgpr=102, accum=256)
    open(out, 'w').write(hdr + asm.text() + tail)


if __name__ == '__main__':
    PROF = '--prof' in sys.argv
    main(sys.argv[1] if len(sys.argv) > 1 and not sys.argv[1].startswith('--') else f'cdna_kernels/{NAME}.s')
```

```python
import sys
from collections import deque
from asmlib import *
from gen1 import (NAME, XBYTES, WBYTES, P_Q, P_K, P_V, P_SHK, P_SSMK, P_SSMD, P_W1, P_W2, P_OUT,
                  P_DBG, P_WS, load_args, srd, magic, FC, K2_CB, K2_G, K2_SCR, wg_map)

KNAME = NAME + '_kernel'
WS_KVR = 0x000000
WS_YB = 0x200000
WS_YX = 0x400000
WS_X2 = 0x600000
WS_SP = 0x900000
WS_KF = 0x800000
WS_CF = 0x802000
WS_OF = 0x804000
WS_HB = [0x1000000, 0x1800000]
WS_SIZE = 0x2000000
WS_PROF = 0x2000000
PROF = False
CONV_PUMP = 4

L_W2 = 0
L_R0 = 98304
R_SZ = 28736
L_CS = L_R0 + 2 * R_SZ
L_ST = L_CS + 1024
LDS_BYTES = L_ST + 512
YP = 7184
RING = 14336

WSR = 's[40:43]'
SPIN = 's83'


class Ctr:
    def __init__(self, a, name, maxn):
        self.a, self.name, self.maxn, self.q = a, name, maxn, []

    def issue(self, tag=None): self.q.append(tag)

    def need(self, tag):
        idx = [i for i, t in enumerate(self.q) if t == tag]
        if not idx: return None
        n = len(self.q) - 1 - idx[-1]
        self.q = self.q[idx[-1] + 1:]
        return min(n, self.maxn)

    def wait(self, tag):
        n = self.need(tag)
        if n is not None: self.a(f's_waitcnt {self.name}({n})')

    def wait_all(self):
        self.a(f's_waitcnt {self.name}(0)')
        self.q = []


class G:
    def __init__(self, asm):
        self.asm = asm
        self.vm = Ctr(asm, 'vmcnt', 63)
        self.lg = Ctr(asm, 'lgkmcnt', 15)
        self.bg = deque()
        self.fq = deque()

    def a(self, text): self.asm(text)
    def label(self, n): self.asm.label(n)
    def vmem(self, text, tag=None): self.asm(text); self.vm.issue(tag)
    def ds(self, text, tag=None): self.asm(text); self.lg.issue(tag)
    def vwait(self, tag): self.vm.wait(tag)
    def lwait(self, tag): self.lg.wait(tag)
    def group(self, fn): fn(self)

    def wait2(self, vtag=None, ltag=None):
        parts = []
        for c, t in ((self.vm, vtag), (self.lg, ltag)):
            if t is not None:
                n = c.need(t)
                if n is not None: parts.append(f'{c.name}({n})')
        if parts: self.asm('s_waitcnt ' + ' '.join(parts))

    def barrier(self):
        self.lg.wait_all()
        self.asm('s_barrier')

    def pump(self, n=1):
        for _ in range(n):
            if not self.bg: return
            self.bg.popleft()()

    def fill(self, step, n):
        while n > 0 and self.fq and self.fq[0][0] <= step:
            self.fq.popleft()[1]()
            n -= 1

    def flush(self):
        while self.fq: self.fq.popleft()[1]()

    def add(self, rec, step=0):
        for s, f in rec.items: self.fq.append((max(step, s), f))


class Rec:
    def __init__(self, g): self.g, self.items, self.step = g, [], 0
    def _add(self, f): self.items.append((self.step, f))
    def at(self, step): self.step = step
    def a(self, text): self._add(lambda: self.g.a(text))
    def vmem(self, text, tag=None): self._add(lambda: self.g.vmem(text, tag))
    def ds(self, text, tag=None): self._add(lambda: self.g.ds(text, tag))
    def vwait(self, tag): self._add(lambda: self.g.vwait(tag))
    def lwait(self, tag): self._add(lambda: self.g.lwait(tag))
    def barrier(self): self._add(lambda: self.g.barrier())
    def group(self, fn): self._add(lambda: fn(self.g))


def stamp(e, k):
    if not PROF: return
    def f(g):
        g.a('s_memtime s[100:101]')
        g.lg.wait_all()
        g.a(f'v_writelane_b32 v7, s100, {k}')
    e.group(f)


def w1_reg(ft2, k): return (k * 2 + ft2) * 4


def w2_loc(k, dt):
    if k < 4: return ('a', 224 + k * 8 + dt * 4)
    if k < 16: return ('v', 160 + (k - 4) * 8 + dt * 4)
    return ('l', k - 16)


def reduce8(e, s, t):
    e.a(f'v_add_f32 v{s}, v{s}, v{s} row_ror:8')
    for sw in ('v_permlane16_swap_b32', 'v_permlane32_swap_b32'):
        e.a(f'v_mov_b32 v{t}, v{s}')
        e.a(f'{sw} v{s}, v{t}')
        e.a(f'v_add_f32 v{s}, v{s}, v{t}')


def rnd(e, d, s):
    e.a(f'v_cvt_pk_bf16_f32 v{d}, v{s}, v{s}')
    e.a(f'v_lshlrev_b32 v{d}, 16, v{d}')


def var_to_rinv(e, d, v):
    e.a(f'v_max_f32 v{v}, 0, v{v}')
    rnd(e, v, v)
    e.a(f'v_add_f32 v{v}, 0x3727c5ac, v{v}')
    rnd(e, v, v)
    e.a(f'v_sqrt_f32 v{v}, v{v}')
    rnd(e, v, v)
    e.a(f'v_rcp_f32 v{d}, v{v}')


def poll_issue(e, voff, soff_setup, t, tag, wide=0):
    def f(g):
        for l in soff_setup: g.a(l)
        if wide:
            for i in range(wide):
                g.vmem(f'buffer_load_dwordx4 v[{t+4*i}:{t+4*i+3}], {voff}, {WSR}, s82 offen offset:{896*i} sc1', tag)
        else:
            g.vmem(f'buffer_load_dwordx2 v[{t}:{t+1}], {voff}, {WSR}, s82 offen sc1', tag)
    e.group(f)


def poll_check(e, name, voff, t, tag, wide=0):
    def f(g):
        g.vwait(tag)
        g.label(name)
        n = 2 * wide if wide else 1
        for i in range(n):
            g.a(f'v_xor_b32 v{t+2*i}, s66, v{t+2*i}')
            g.a(f'v_xor_b32 v{t+2*i+1}, s67, v{t+2*i+1}')
        if wide:
            g.a(f'v_or3_b32 v{t}, v{t}, v{t+1}, v{t+2}')
            g.a(f'v_or3_b32 v{t+3}, v{t+3}, v{t+4}, v{t+5}')
            g.a(f'v_or3_b32 v{t}, v{t}, v{t+6}, v{t+7}')
            g.a(f'v_or_b32 v{t}, v{t}, v{t+3}')
        else:
            g.a(f'v_or_b32 v{t}, v{t}, v{t+1}')
        g.a(f'v_cmp_ne_u32 vcc, 0, v{t}')
        g.a(f's_cbranch_vccz {name}_D')
        g.a(f's_add_u32 {SPIN}, {SPIN}, 1')
        g.a(f's_cmp_gt_u32 {SPIN}, 0x40000')
        g.a(f's_cbranch_scc1 {name}_D')
        g.a('s_sleep 4')
        if wide:
            for i in range(wide):
                g.a(f'buffer_load_dwordx4 v[{t+4*i}:{t+4*i+3}], {voff}, {WSR}, s82 offen offset:{896*i} sc1')
        else:
            g.a(f'buffer_load_dwordx2 v[{t}:{t+1}], {voff}, {WSR}, s82 offen sc1')
        g.a('s_waitcnt vmcnt(0)')
        g.a(f's_branch {name}')
        g.label(name + '_D')
    e.group(f)


def publish(e, tag, soff_setup, only=None):
    def f(g):
        g.vwait(tag)
        for l in soff_setup: g.a(l)
        if only: g.a(only)
        g.a('s_mov_b64 exec, 1')
        g.vmem(f'buffer_store_dwordx2 v[4:5], v0, {WSR}, s81 offen sc1')
        g.a('s_mov_b64 exec, -1')
    e.group(f)


RA, RB = 16, 48
YR = 80
TT = 108
BR = 132
WT = 124
V_YT0, V_YT1, V_W2S = 128, 129, 130
V_Q, V_FL, V_XW, V_STW, V_B, V_RES, V_STR, V_CS, V_C0, V_RED, V_XST, V_OST = range(144, 156)
V_C1 = 3
V_ST = 156


def XR(s): return RA if s == 0 else RB
def ST1(s): return 8 + 4 * s


def ln1_stats(e, s, T):
    X = XR(s)
    mb, rinv = ST1(s), ST1(s) + 2
    acc, tmp, dm, sq = T, T + 1, T + 2, T + 4
    e.a(f'v_dot2_f32_bf16 v{acc}, v{X}, s62, 0')
    e.a(f'v_dot2_f32_bf16 v{tmp}, v{X+1}, s62, 0')
    for p in range(2, 28, 2):
        e.a(f'v_dot2_f32_bf16 v{acc}, v{X+p}, s62, v{acc}')
        e.a(f'v_dot2_f32_bf16 v{tmp}, v{X+p+1}, s62, v{tmp}')
    e.a(f'v_add_f32 v{acc}, v{acc}, v{tmp}')
    reduce8(e, acc, tmp)
    e.a(f'v_mul_f32 v{acc}, s63, v{acc}')
    rnd(e, mb, acc)
    e.a(f'v_sub_f32 v{dm}, v{acc}, v{mb}')
    e.a(f'v_sub_f32 v{mb+1}, 0, v{mb}')
    def d(p): return T + 6 + 2 * (p % 3)
    for p in range(30):
        if p < 28:
            e.a(f'v_dot2_f32_bf16 v{d(p)}, v{X+p}, s60, v{mb+1}')
            e.a(f'v_dot2_f32_bf16 v{d(p)+1}, v{X+p}, s61, v{mb+1}')
        if p >= 2:
            q = p - 2
            c = '0' if q == 0 else f'v[{sq}:{sq+1}]'
            e.a(f'v_pk_fma_f32 v[{sq}:{sq+1}], v[{d(q)}:{d(q)+1}], v[{d(q)}:{d(q)+1}], {c}')
    e.a(f'v_add_f32 v{acc}, v{sq}, v{sq+1}')
    reduce8(e, acc, tmp)
    e.a(f'v_mul_f32 v{dm}, v{dm}, v{dm}')
    e.a(f'v_fma_f32 v{acc}, s63, v{acc}, -v{dm}')
    var_to_rinv(e, rinv, acc)
    e.a(f'v_mul_f32 v{rinv+1}, v{mb+1}, v{rinv}')


def st_loads(e, s):
    SB = TT if s == 0 else 116
    e.a(f's_lshr_b32 s72, s71, 1')
    e.a(f's_add_u32 s72, s72, {WS_SP + s*2*7168}')
    for i in range(7):
        e.vmem(f'buffer_load_dwordx2 v[{SB+2*i}:{SB+2*i+1}], v{V_Q}, {WSR}, s72 offen offset:{512*i} sc1', f'sp{s}')


def ln1_combine(e, s):
    mb, rinv = ST1(s), ST1(s) + 2
    SB = TT if s == 0 else 116
    acc, tmp, q, m2 = (TT + 14, TT + 15, TT + 16, TT + 17) if s == 0 else (130, 131, 76, 77)
    e.vwait(f'sp{s}')
    e.a(f'v_add_f32 v{acc}, v{SB}, v{SB+2}')
    e.a(f'v_add_f32 v{m2}, v{SB+1}, v{SB+3}')
    for i in range(2, 7):
        e.a(f'v_add_f32 v{acc}, v{acc}, v{SB+2*i}')
        e.a(f'v_add_f32 v{m2}, v{m2}, v{SB+2*i+1}')
    reduce8(e, acc, tmp)
    e.a(f'v_mul_f32 v{acc}, s63, v{acc}')
    e.a(f'v_mul_f32 v{tmp}, 0xc1000000, v{acc}')
    for i in range(7): e.a(f'v_add_f32 v{SB+2*i}, v{SB+2*i}, v{tmp}')
    e.a(f'v_mul_f32 v{q}, v{SB}, v{SB}')
    for i in range(1, 7): e.a(f'v_fmac_f32 v{q}, v{SB+2*i}, v{SB+2*i}')
    e.a(f'v_fmac_f32 v{m2}, 0x3e000000, v{q}')
    rnd(e, mb, acc)
    reduce8(e, m2, tmp)
    e.a(f'v_mul_f32 v{m2}, s63, v{m2}')
    var_to_rinv(e, rinv, m2)
    e.a(f'v_mul_f32 v{rinv+1}, v{mb}, v{rinv}')
    e.a(f'v_sub_f32 v{rinv+1}, 0, v{rinv+1}')


def p3(e, layer, s, plain=True, after_group=None):
    X = XR(s)
    mb, rinv = ST1(s), ST1(s) + 2
    nm = f'P3_{layer}{s}'
    if layer == 0:
        def yx(g):
            g.a('s_lshl_b32 s72, s5, 10')
            g.a('s_add_u32 s72, s72, s71')
            g.a(f's_add_u32 s72, s72, {WS_YX + s*4*7168}')
            for i in range(7):
                g.a(f's_cmp_lg_u32 s5, {i}')
                g.a(f's_cbranch_scc1 {nm}_YX{i}')
                g.a(f'buffer_store_dwordx4 v[{YR+4*i}:{YR+4*i+3}], v2, {WSR}, s72 offen sc1')
                g.label(f'{nm}_YX{i}')
            g.vm.issue('yx')
        e.group(yx)
    sa, sb = TT + 16, TT + 17
    for i in range(7):
        t, u = TT, TT + 8
        for p in range(4):
            e.a(f'v_lshlrev_b32 v{t+2*p}, 16, v{X+4*i+p}')
            e.a(f'v_and_b32 v{t+2*p+1}, s64, v{X+4*i+p}')
        if plain:
            for h in range(2):
                for x in range(4): e.a(f'v_fma_f32 v{u+x}, v{t+4*h+x}, v{rinv}, v{rinv+1}')
                for p in range(2):
                    e.a(f'v_lshlrev_b32 v{u+4+2*p}, 16, v{YR+4*i+2*h+p}')
                    e.a(f'v_and_b32 v{u+4+2*p+1}, s64, v{YR+4*i+2*h+p}')
                for x in range(4): e.a(f'v_fmac_f32 v{t+4*h+x}, v{u+x}, v{u+4+x}')
        else:
            for h in range(2):
                for p in range(2):
                    e.a(f'v_pk_fma_f32 v[{u+2*p}:{u+2*p+1}], v[{t+4*h+2*p}:{t+4*h+2*p+1}], v[{rinv}:{rinv+1}], v[{rinv}:{rinv+1}] op_sel:[0,0,1] op_sel_hi:[1,0,1]')
                for p in range(2):
                    e.a(f'v_lshlrev_b32 v{u+4+2*p}, 16, v{YR+4*i+2*h+p}')
                    e.a(f'v_and_b32 v{u+4+2*p+1}, s64, v{YR+4*i+2*h+p}')
                for p in range(2):
                    e.a(f'v_pk_fma_f32 v[{t+4*h+2*p}:{t+4*h+2*p+1}], v[{u+2*p}:{u+2*p+1}], v[{u+4+2*p}:{u+4+2*p+1}], v[{t+4*h+2*p}:{t+4*h+2*p+1}]')
        for p in range(4):
            e.a(f'v_cvt_pk_bf16_f32 v{X+4*i+p}, v{t+2*p}, v{t+2*p+1}')
        e.ds(f'ds_write_b128 v{V_XW}, v[{X+4*i}:{X+4*i+3}] offset:{s*R_SZ + 4096*i}')
        if after_group: after_group(e, i)
        if plain:
            for x in range(8):
                if i == 0 and x == 0:
                    e.a(f'v_mov_b32 v{sa}, v{t}')
                    e.a(f'v_mul_f32 v{sb}, v{t}, v{t}')
                else:
                    e.a(f'v_add_f32 v{sa}, v{sa}, v{t+x}')
                    e.a(f'v_fmac_f32 v{sb}, v{t+x}, v{t+x}')
        else:
            for p in range(4):
                first = (i == 0 and p == 0)
                e.a(f'v_dot2_f32_bf16 v{sa}, v{X+4*i+p}, s62, {"0" if first else f"v{sa}"}')
                e.a(f'v_dot2_f32_bf16 v{sb}, v{X+4*i+p}, v{X+4*i+p}, {"0" if first else f"v{sb}"}')
    ta, tb = TT + 18, TT + 19
    e.a(f'v_add_f32 v{sa}, v{sa}, v{sa} row_ror:8')
    e.a(f'v_add_f32 v{sb}, v{sb}, v{sb} row_ror:8')
    for sw in ('v_permlane16_swap_b32', 'v_permlane32_swap_b32'):
        e.a(f'v_mov_b32 v{ta}, v{sa}')
        e.a(f'v_mov_b32 v{tb}, v{sb}')
        e.a(f'{sw} v{sa}, v{ta}')
        e.a(f'{sw} v{sb}, v{tb}')
        e.a(f'v_add_f32 v{sa}, v{sa}, v{ta}')
        e.a(f'v_add_f32 v{sb}, v{sb}, v{tb}')
    e.a(f'v_mul_f32 v{sa}, s63, v{sa}')
    e.a(f'v_mul_f32 v{ta}, v{sa}, v{sa}')
    e.a(f'v_fma_f32 v{sb}, s63, v{sb}, -v{ta}')
    var_to_rinv(e, tb, sb)
    rnd(e, sa, sa)
    e.a(f'v_sub_f32 v{ta}, 0, v{sa}')
    def w(g):
        g.a('s_mov_b64 exec, 0xff')
        g.ds(f'ds_write_b64 v{V_STW}, v[{ta}:{tb}] offset:{s*256}')
        g.a('s_mov_b64 exec, -1')
    e.group(w)


def y_tr(e, s):
    for i in range(7):
        e.ds(f'ds_read_b64_tr_b16 v[{YR+4*i}:{YR+4*i+1}], v{V_YT0} offset:{s*4*YP + 1024*i}', 'ytr')
        e.ds(f'ds_read_b64_tr_b16 v[{YR+4*i+2}:{YR+4*i+3}], v{V_YT1} offset:{s*4*YP + 1024*i}', 'ytr')
    e.lwait('ytr')


def x_loads(e, s):
    X = XR(s)
    e.a(f's_add_u32 s72, s71, {WS_X2 + s*4*7168}')
    e.a(f's_add_u32 s74, s71, {WS_X2 + s*4*7168 + 4096}')
    for i in range(7):
        so, off = ('s72', 1024 * i) if i < 4 else ('s74', 1024 * (i - 4))
        e.vmem(f'buffer_load_dwordx4 v[{X+4*i}:{X+4*i+3}], v2, {WSR}, {so} offen offset:{off} sc1', f'x{s}')


def y_loads(e, s):
    e.a(f's_add_u32 s72, s71, {WS_YX + s*4*7168}')
    e.a(f's_add_u32 s74, s71, {WS_YX + s*4*7168 + 4096}')
    for i in range(7):
        so, off = ('s72', 1024 * i) if i < 4 else ('s74', 1024 * (i - 4))
        e.vmem(f'buffer_load_dwordx4 v[{YR+4*i}:{YR+4*i+3}], v2, {WSR}, {so} offen offset:{off} sc1', f'y{s}')


def opflag(op): return op * 32 * 256


def m1(g, layer, s, nfill, bgp=0, bg_from=0):
    ACC = XR(s)
    def rd(k):
        sl = BR + 4 * (k % 3)
        g.ds(f'ds_read_b128 v[{sl}:{sl+3}], v{V_B} offset:{s*R_SZ + 1024*k}', f'b{k}')
    rd(0); rd(1)
    RES = 8 + 4 * s
    g.ds(f'ds_read_b128 v[{RES}:{RES+3}], v{V_RES} offset:{s*R_SZ}')
    g.ds(f'ds_read_b64 v[{V_ST+2*s}:{V_ST+2*s+1}], v{V_STR} offset:{s*256}')
    for k in range(28):
        if k + 2 < 28: rd(k + 2)
        g.lwait(f'b{k}')
        sl = BR + 4 * (k % 3)
        for ft2 in range(2):
            o = ACC + 16 * ft2
            c = f'v[{o}:{o+15}]' if k else '0'
            r = w1_reg(ft2, k)
            g.a(f'v_mfma_f32_32x32x16_bf16 v[{o}:{o+15}], a[{r}:{r+3}], v[{sl}:{sl+3}], {c}')
            g.fill(2 * k + ft2, nfill)
        if k >= bg_from: g.pump(bgp)


def e1(e, layer, s, CT, plain=True, halves=(0, 1)):
    ACC = XR(s)
    mm = V_ST + 2 * s
    e.a(f's_add_u32 s73, s75, {WS_HB[layer] + s*112*1024}')
    for ft2 in halves:
        o = ACC + 16 * ft2
        for hb in range(2):
            for q in range(2):
                e.ds(f'ds_read_b128 v[{CT+4*q}:{CT+4*q+3}], v{V_CS} offset:{ft2*128 + hb*32 + q*16}', 'cs')
            e.lwait('cs')
            for x in range(8): e.a(f'v_fmac_f32 v{o+8*hb+x}, v{CT+x}, v{mm}')
        if plain:
            for x in range(16): e.a(f'v_max_f32 v{o+x}, 0, v{o+x}')
        for p in range(8):
            e.a(f'v_cvt_pk_bf16_f32 v{o+p}, v{o+2*p}, v{o+2*p+1}')
        if not plain:
            for p in range(8):
                e.a(f'v_pk_max_i16 v{o+p}, v{o+p}, 0')
        for hf in range(2):
            r = o + 4 * hf
            e.vmem(f'buffer_store_dwordx4 v[{r}:{r+3}], v2, {WSR}, s73 offen offset:{2048*ft2 + 1024*hf} sc1', f'hst{s}')


HSL = [96 + 4 * i for i in range(7)] + [80, 84, 88, 92, 140]
NSL = len(HSL)


XSL = {}


def h_slot(s, k):
    x = XSL.get(s, [])
    n = NSL + len(x)
    k %= n
    return HSL[(k + 4 * s) % NSL] if k < NSL else x[k - NSL]


def n_slots(s): return NSL + len(XSL.get(s, []))


def h_load(e, layer, s, k):
    sl = h_slot(s, k)
    def f(g):
        g.a(f's_add_u32 s70, s77, {WS_HB[layer] + s*112*1024 + 4096*(k//4)}')
        g.vmem(f'buffer_load_dwordx4 v[{sl}:{sl+3}], v2, {WSR}, s70 offen offset:{1024*(k%4)} sc1', f'h{s}_{k}')
    e.group(f)


def m2(g, layer, s, nfill, first_issued, after=None):
    ACC = XR(s)
    for k in range(first_issued, NSL): h_load(g, layer, s, k)
    def rdw(k):
        if k == 24:
            g.a(f'v_add_u32 v{V_C0}, 0x10000, v{V_C0}')
            g.a(f'v_add_u32 v{V_C1}, 0x10000, v{V_C1}')
        for dt in range(2):
            r = WT + 8 * (k % 2) + 4 * dt
            for hh in range(2):
                g.ds(f'ds_read_b64_tr_b16 v[{r+2*hh}:{r+2*hh+1}], v{V_C1 if dt else V_C0} offset:{8192*((k-16)%8) + 1024*hh}', f'w{k}')
    for k in range(28):
        if k == 14: g.vwait('w2l')
        if k in (14, 15): rdw(k + 2)
        g.wait2(f'h{s}_{k}', f'w{k}' if k >= 16 else None)
        sl = h_slot(s, k)
        for dt in range(2):
            o = ACC + 16 * dt
            c = f'v[{o}:{o+15}]' if k else '0'
            kind, r = w2_loc(k, dt)
            if kind == 'l': kind, r = 'v', WT + 8 * (k % 2) + 4 * dt
            g.a(f'v_mfma_f32_32x32x16_bf16 v[{o}:{o+15}], {kind}[{r}:{r+3}], v[{sl}:{sl+3}], {c}')
            g.fill(2 * k + dt, nfill)
        if k + NSL < 28: h_load(g, layer, s, k + NSL)
        elif after: after(k)
        if 16 <= k and k + 2 < 28: rdw(k + 2)
    g.a(f'v_subrev_u32 v{V_C0}, 0x10000, v{V_C0}')
    g.a(f'v_subrev_u32 v{V_C1}, 0x10000, v{V_C1}')


def e2_head(g, layer, s):
    ACC = XR(s)
    nm = f'E2_{layer}{s}'
    done = f'{nm}_RD'
    for w in range(4):
        if w < 3:
            g.a(f's_cmp_lg_u32 s3, {w}')
            g.a(f's_cbranch_scc1 {nm}_R{w+1}')
        for t in range(4):
            if t == w: continue
            slot = (w - t - 1) % 4
            for q in range(2):
                r = ACC + 8 * t + 4 * q
                g.a(f'ds_write_b128 v{V_B}, v[{r}:{r+3}] offset:{s*R_SZ + t*6144 + slot*2048 + q*1024}')
        if w != 0:
            for x in range(8): g.a(f'v_mov_b32 v{ACC+x}, v{ACC+8*w+x}')
        if w < 3:
            g.a(f's_branch {done}')
            g.label(f'{nm}_R{w+1}')
    g.label(done)
    for _ in range(6): g.lg.issue()


def e2_tail(e, layer, s, defer=False):
    ACC = XR(s)
    e.barrier()
    for i in range(6):
        e.ds(f'ds_read_b128 v[{ACC+8+4*i}:{ACC+11+4*i}], v{V_RED} offset:{s*R_SZ + 1024*i}', f'rr{i}')
    r2 = V_ST + 2 * s + 1
    for sl in range(3):
        e.lwait(f'rr{2*sl+1}')
        for p in range(4):
            e.a(f'v_pk_add_f32 v[{ACC+2*p}:{ACC+2*p+1}], v[{ACC+2*p}:{ACC+2*p+1}], v[{ACC+8+8*sl+2*p}:{ACC+9+8*sl+2*p}]')
    for x in range(8): e.a(f'v_mul_f32 v{ACC+x}, v{ACC+x}, v{r2}')
    P = ACC + 8
    for p in range(4): e.a(f'v_cvt_pk_bf16_f32 v{P+p}, v{ACC+2*p}, v{ACC+2*p+1}')
    e.a(f'v_permlane32_swap_b32 v{P}, v{P+2}')
    e.a(f'v_permlane32_swap_b32 v{P+1}, v{P+3}')
    RES = 8 + 4 * s
    for p in range(4):
        e.a(f'v_lshlrev_b32 v{ACC+2*p}, 16, v{P+p}')
        e.a(f'v_and_b32 v{ACC+2*p+1}, s64, v{P+p}')
    for p in range(4):
        e.a(f'v_dot2_f32_bf16 v{ACC+2*p}, v{RES+p}, s60, v{ACC+2*p}')
        e.a(f'v_dot2_f32_bf16 v{ACC+2*p+1}, v{RES+p}, s61, v{ACC+2*p+1}')
    for p in range(4): e.a(f'v_cvt_pk_bf16_f32 v{P+20+p}, v{ACC+2*p}, v{ACC+2*p+1}')
    Q = P + 20
    if layer == 0:
        z = ACC + 8
        e.a(f'v_pk_add_f32 v[{z}:{z+1}], v[{ACC}:{ACC+1}], v[{ACC+2}:{ACC+3}]')
        e.a(f'v_pk_add_f32 v[{z+2}:{z+3}], v[{ACC+4}:{ACC+5}], v[{ACC+6}:{ACC+7}]')
        e.a(f'v_pk_add_f32 v[{z}:{z+1}], v[{z}:{z+1}], v[{z+2}:{z+3}]')
        e.a(f'v_add_f32 v{ACC+24}, v{z}, v{z+1}')
        e.a(f'v_mul_f32 v{z+2}, 0xbe000000, v{ACC+24}')
        for p in range(4):
            e.a(f'v_pk_add_f32 v[{ACC+2*p}:{ACC+2*p+1}], v[{ACC+2*p}:{ACC+2*p+1}], v[{z+2}:{z+3}] op_sel_hi:[1,0]')
        e.a(f'v_pk_mul_f32 v[{z+4}:{z+5}], v[{ACC}:{ACC+1}], v[{ACC}:{ACC+1}]')
        for p in range(1, 4):
            e.a(f'v_pk_fma_f32 v[{z+4}:{z+5}], v[{ACC+2*p}:{ACC+2*p+1}], v[{ACC+2*p}:{ACC+2*p+1}], v[{z+4}:{z+5}]')
        e.a(f'v_add_f32 v{ACC+25}, v{z+4}, v{z+5}')
        e.a(f'v_lshrrev_b32 v{ACC+26}, 1, v{V_XST}')
        if not defer: e2_stores(e, s)
    else:
        e.a(f's_add_u32 s73, s79, {s*4*7168}')
        e.vmem(f'buffer_store_dwordx4 v[{Q}:{Q+3}], v{V_OST}, s[52:55], s73 offen')


def e2_stores(e, s):
    ACC = XR(s)
    Q, z = ACC + 28, ACC + 24
    def f(g):
        g.a(f's_add_u32 s73, s78, {WS_X2 + s*4*7168}')
        g.vmem(f'buffer_store_dwordx4 v[{Q}:{Q+3}], v{V_XST}, {WSR}, s73 offen sc1', f'xst{s}')
        g.a('s_lshr_b32 s73, s78, 1')
        g.a(f's_add_u32 s73, s73, {WS_SP + s*2*7168}')
        g.vmem(f'buffer_store_dwordx2 v[{z}:{z+1}], v{z+2}, {WSR}, s73 offen sc1', f'xst{s}')
    e.group(f)


F_W1S, F_W2S, F_T1, F_T2, F_FB, F_VF, F_VG, F_N15, F_G4, F_T16 = 240, 241, 242, 244, 246, 247, 248, 249, 250, 251


def front(g):
    a = g.a
    MK, AC, PR, KO, TAP, KR, VR, HH, FT = 80, 112, 120, 128, 136, 152, 172, 180, 196
    a('v_and_b32 v1, 63, v0')
    a('v_lshrrev_b32 v2, 6, v0')
    a('v_readfirstlane_b32 s3, v2')
    a(f's_mul_hi_u32 s6, s2, {magic(7)}')
    a('s_mul_i32 s7, s6, 7')
    a('s_sub_u32 s7, s2, s7')
    a('v_and_b32 v252, 7, v0')
    a('v_lshrrev_b32 v253, 3, v0')
    a('s_lshl_b32 s8, s6, 6')
    a('v_lshl_add_u32 v254, v253, 1, s8')
    a('s_movk_i32 s8, 896')
    a('v_mul_lo_u32 v254, v254, s8')
    a('s_lshl_b32 s8, s7, 7')
    a('v_lshl_add_u32 v255, v252, 4, s8')
    a('v_add_u32 v254, v254, v255')
    a('v_add_u32 v44, -896, v254')
    a('v_add_u32 v45, -1792, v254')
    a('v_add_u32 v46, -2688, v254')
    a('v_lshlrev_b32 v255, 2, v255')
    a('v_lshlrev_b32 v2, 4, v1')
    a('s_waitcnt lgkmcnt(0)')
    srd(a, 88, P_SHK, 0, 448 * 8)
    srd(a, 56, P_K, 0, XBYTES)
    srd(a, 84, P_V, 0, XBYTES)
    for i in range(4):
        g.vmem(f'buffer_load_dwordx4 v[{TAP+4*i}:{TAP+4*i+3}], v255, s[88:91], 0 offen offset:{16*i}', 'tap')
    g.vmem(f'buffer_load_dwordx4 v[{KR}:{KR+3}], v46, s[56:59], 0 offen', 'k')
    g.vmem(f'buffer_load_dwordx4 v[{KR+4}:{KR+7}], v45, s[56:59], 0 offen', 'k')
    g.vmem(f'buffer_load_dwordx4 v[{KR+8}:{KR+11}], v44, s[56:59], 0 offen', 'k')
    g.vmem(f'buffer_load_dwordx4 v[{KR+12}:{KR+15}], v254, s[56:59], 0 offen', 'k')
    g.vmem(f'buffer_load_dwordx4 v[{KR+16}:{KR+19}], v254, s[56:59], 0 offen offset:896', 'k')
    g.vmem(f'buffer_load_dwordx4 v[{VR}:{VR+3}], v254, s[84:87], 0 offen', 'v')
    g.vmem(f'buffer_load_dwordx4 v[{VR+4}:{VR+7}], v254, s[84:87], 0 offen offset:896', 'v')
    srd(a, 88, P_DBG, 0, 256)
    srd(a, 40, P_WS, 0, WS_SIZE + (0x100000 if PROF else 0))
    a('v_mov_b32 v0, 0')
    a('s_or_b32 s8, s2, s3')
    a('s_cmp_lg_u32 s8, 0')
    a('s_cbranch_scc1 NONCE_SKIP')
    a('s_memrealtime s[8:9]')
    a('s_waitcnt lgkmcnt(0)')
    a('s_or_b32 s8, s8, 1')
    a('v_mov_b32 v4, s8')
    a('buffer_store_dword v4, v0, s[88:91], 0 offen sc1')
    g.label('NONCE_SKIP')
    a('s_lshr_b32 s8, s3, 1')
    a('s_and_b32 s9, s3, 1')
    a('s_lshl_b32 s10, s2, 1')
    a('s_add_u32 s10, s10, s8')
    a('s_lshl_b32 s11, s10, 12')
    a(f's_mul_i32 s12, s8, {K2_CB}')
    a('s_lshl_b32 s13, s9, 11')
    a(f'v_add_u32 v{F_T16}, s13, v2')
    a(f'v_add_u32 v8, -16, v{F_T16}')
    srd(a, 44, P_SSMK, 's11', 4096)
    a('s_lshl_b32 s14, s2, 2')
    a('s_load_dword s15, s[26:27], s14')
    a('s_lshl_b32 s68, s7, 2')
    a('s_add_u32 s68, s68, s3')
    a('s_sub_u32 s69, 31, s6')
    a('s_lshl_b32 s80, s68, 16')
    a('s_lshl_b32 s70, s69, 7')
    a('s_add_u32 s80, s80, s70')
    a('s_lshl_b32 s81, s68, 5')
    a('s_add_u32 s81, s81, s69')
    a('s_lshl_b32 s81, s81, 3')
    a(f's_add_u32 s81, s81, {WS_KF}')
    a(f'v_lshrrev_b32 v{F_G4}, 4, v1')
    a('v_bfe_u32 v10, v1, 2, 2')
    a('v_and_b32 v11, 3, v1')
    a(f'v_lshl_add_u32 v12, v{F_G4}, 3, v10')
    a('v_mul_u32_u24 v12, 144, v12')
    a('v_lshl_add_u32 v12, v11, 3, v12')
    a('s_lshl_b32 s13, s3, 5')
    a(f's_add_u32 s13, s13, {K2_SCR}')
    a('v_add_u32 v12, s13, v12')
    a(f'v_and_b32 v{F_N15}, 15, v1')
    a(f'v_mul_u32_u24 v13, 144, v{F_N15}')
    a(f'v_lshl_add_u32 v13, v{F_G4}, 4, v13')
    a(f's_mul_i32 s13, s3, {RING}')
    a(f's_add_u32 s13, s13, {L_R0}')
    a('v_add_u32 v13, s13, v13')
    a('v_lshrrev_b32 v46, 3, v1')
    a('v_and_b32 v47, 7, v1')
    a('v_mul_u32_u24 v44, 144, v46')
    a('v_lshl_add_u32 v44, v47, 4, v44')
    a('v_add_u32 v76, s13, v44')
    a('v_lshlrev_b32 v46, 12, v46')
    a('v_lshl_add_u32 v77, v47, 4, v46')
    a('v_mov_b32 v254, v76')
    a('v_mov_b32 v255, v77')
    a('v_lshlrev_b32 v14, 1, v253')
    a('v_sub_u32 v14, 62, v14')
    a('v_mul_u32_u24 v14, 144, v14')
    a('v_lshl_add_u32 v14, v252, 4, v14')
    a(f'v_add_u32 v14, {K2_SCR}, v14')
    wg_map(a)
    a('v_and_b32 v3, 7, v1')
    a('v_lshrrev_b32 v6, 3, v1')
    a('v_xor_b32 v15, v3, v6')
    a('v_lshlrev_b32 v15, 4, v15')
    a('s_movk_i32 s13, 896')
    a('v_mad_u32_u24 v15, v6, s13, v15')
    a('s_lshl_b32 s71, s4, 3')
    a('s_add_u32 s71, s71, s3')
    a('s_mul_i32 s71, s71, 7168')
    a(f's_add_u32 s72, s71, {4*7168}')
    srd(a, 48, P_Q, 0, XBYTES)
    a('s_mov_b32 s60, 0x00003f80')
    a('s_mov_b32 s61, 0x3f800000')
    a('s_mov_b32 s62, 0x3f803f80')
    a('s_mov_b32 s63, 0x3b124925')
    a('s_mov_b32 s64, 0xffff0000')
    a('s_mov_b32 s65, 0xffff')
    a(f's_mov_b32 {SPIN}, 0')
    srd(a, 92, P_W1, 0, WBYTES)
    srd(a, 96, P_W2, 0, WBYTES)
    a('v_bfe_u32 v76, v1, 4, 1')
    a('v_lshlrev_b32 v76, 2, v76')
    a('v_xor_b32 v76, v76, v3')
    a('v_lshlrev_b32 v76, 4, v76')
    a('s_movk_i32 s13, 3584')
    a(f'v_mad_u32_u24 v{F_W1S}, v6, s13, v76')
    a('s_movk_i32 s13, 896')
    a(f'v_mad_u32_u24 v{F_W2S}, v6, s13, v76')
    a('s_lshl_b32 s56, s5, 9')
    a('s_lshl_b32 s13, s3, 7')
    a('s_add_u32 s56, s56, s13')
    a(f's_mul_i32 s57, s3, {448*896}')
    a('s_lshl_b32 s13, s5, 7')
    a('s_add_u32 s57, s57, s13')
    a(f's_mul_i32 s58, s3, {RING}')
    a(f's_add_u32 s58, s58, {L_R0}')
    a('s_lshl_b32 s59, s3, 11')
    a(f'v_and_b32 v76, 1, v{F_G4}')
    a('v_lshlrev_b32 v76, 5, v76')
    a('v_lshl_add_u32 v76, v11, 3, v76')
    a('v_lshl_add_u32 v76, v10, 7, v76')
    a('v_lshrrev_b32 v77, 1, v10')
    a('v_lshlrev_b32 v77, 6, v77')
    a('v_xor_b32 v78, 64, v77')
    a(f'v_lshrrev_b32 v79, 1, v{F_G4}')
    a('v_lshl_add_u32 v44, v79, 10, v76')
    a('v_lshl_add_u32 v45, v79, 9, v76')
    a(f'v_add3_u32 v{F_T1}, v44, v77, s58')
    a(f'v_add3_u32 v{F_T1+1}, v44, v78, s58')
    a(f'v_add3_u32 v{F_T2}, v45, v77, s58')
    a(f'v_add3_u32 v{F_T2+1}, v45, v78, s58')

    a('v_xor_b32 v78, v3, v6')
    a('v_lshl_add_u32 v78, v3, 3, v78')
    a('v_lshl_add_u32 v78, v78, 4, s58')
    g.w2s, g.w2t, g.fixw = F_W2S, F_T2, 252
    a('v_add_u32 v79, s58, v2')
    def qraw(s):
        for gi in range(7 * s, 7 * s + 7):
            r = XR(gi // 7) + 4 * (gi % 7)
            g.vmem(f'buffer_load_dwordx4 v[{r}:{r+3}], v15, s[48:51], s{71+gi//7} offen offset:{128*(gi%7)}', f'q{gi//7}')
    def qrd(s):
        g.vwait(f'q{s}')
        for i in range(7):
            r = XR(s) + 4 * i
            g.ds(f'ds_write_b128 v79, v[{r}:{r+3}] offset:{(7+i)*1024}', 'qw')
        g.lwait('qw')
        for i in range(7):
            r = XR(s) + 4 * i
            g.ds(f'ds_read_b128 v[{r}:{r+3}], v78 offset:{(7+i)*1024}', 'qr')
    g.qrd, g.qraw = qrd, qraw
    def w1raw(k, x):
        def f():
            r = w1_reg(x, k)
            g.vmem(f'buffer_load_dwordx4 a[{r}:{r+3}], v{F_W1S}, s[92:95], s56 offen', f'r1_{k}')
            a('s_add_u32 s56, s56, 28672')
        return f
    def w2raw(k, x):
        def f():
            kd, r = w2_loc(k, x)
            a(f's_add_u32 s13, s57, {7168*(2*k + x)}')
            g.vmem(f'buffer_load_dwordx4 {kd}[{r}:{r+3}], v{g.w2s}, s[96:99], s13 offen', f'r2_{k}')
        return f
    def w2l(k):
        def f():
            for blk in range(2):
                a(f's_add_u32 m0, s59, {(k-16)*8192 + blk*1024}')
                a(f's_add_u32 s13, s57, {7168*(2*k + blk)}')
                g.vmem(f'buffer_load_dwordx4 v{g.w2s}, s[96:99], s13 offen lds', 'w2l')
        return f
    def fix_w(mat, k, slot):
        def f():
            g.vwait(f'r{mat}_{k}')
            g.lwait(f'fx{slot}')
            for x in range(2):
                kd, r = ('a', w1_reg(x, k)) if mat == 1 else w2_loc(k, x)
                wa = 'v79' if mat == 1 else f'v{g.fixw}'
                g.ds(f'ds_write_b128 {wa}, {kd}[{r}:{r+3}] offset:{slot*2048 + 1024*x}', f'fw{mat}_{k}')
        return f
    def fix_r(mat, k, slot):
        def f():
            g.lwait(f'fw{mat}_{k}')
            for x in range(2):
                for hh in range(2):
                    if mat == 1:
                        r = w1_reg(x, k) + 2 * hh
                        g.ds(f'ds_read_b64_tr_b16 a[{r}:{r+1}], v{F_T1+x} offset:{slot*2048 + 512*hh}', f'fx{slot}')
                    else:
                        kd, r = w2_loc(k, x)
                        r += 2 * hh
                        g.ds(f'ds_read_b64_tr_b16 {kd}[{r}:{r+1}], v{g.w2t+x} offset:{slot*2048 + 1024*hh}', f'fx{slot}')
        return f
    g.fix_ok = lambda: (57 - len(g.fixq)) // 2 + 1 <= (56 - len(g.bg) - 12) // 2
    g.w1raw, g.w2raw, g.w2l, g.fix_w, g.fix_r = w1raw, w2raw, w2l, fix_w, fix_r
    for k in range(28):
        for x in range(2): g.bg.append(w1raw(k, x))
    g.fixq = deque()
    g.fix_w_done, g.fix_r_done = 0, 0
    def fw(k):
        def f(): fix_w(1, k, k % 3)(); g.fix_w_done = k + 1
        return f
    def fr(k):
        def f(): fix_r(1, k, k % 3)(); g.fix_r_done = k + 1
        return f
    for k in range(30):
        if k < 28: g.fixq.append(fw(k))
        if k >= 2: g.fixq.append(fr(k - 2))
    g.fix_ok = lambda: g.fix_w_done + 1 <= (56 - len(g.bg) - 12) // 2
    g.vwait('tap')
    for e in range(8):
        A, B = TAP + 2 * e, TAP + 2 * e + 1
        if e % 2 == 0:
            a(f'v_and_b32 v{MK+e}, s65, v{A}')
            a(f'v_lshrrev_b32 v{MK+8+e}, 16, v{A}')
            a(f'v_and_b32 v{MK+16+e}, s65, v{B}')
            a(f'v_lshrrev_b32 v{MK+24+e}, 16, v{B}')
        else:
            a(f'v_lshlrev_b32 v{MK+e}, 16, v{A}')
            a(f'v_and_b32 v{MK+8+e}, s64, v{A}')
            a(f'v_lshlrev_b32 v{MK+16+e}, 16, v{B}')
            a(f'v_and_b32 v{MK+24+e}, s64, v{B}')
    g.vwait('v')
    stamp(g, 1)
    g.vmem(f'buffer_load_dwordx4 v[{HH}:{HH+3}], v8, s[44:47], 0 offen', 'h0')
    g.vmem(f'buffer_load_dwordx4 v[{HH+4}:{HH+7}], v{F_T16}, s[44:47], 0 offen', 'h0')
    g.vmem(f'buffer_load_dwordx4 v[{HH+8}:{HH+11}], v{F_T16}, s[44:47], 0 offen offset:1008', 'h1')
    g.vmem(f'buffer_load_dwordx4 v[{HH+12}:{HH+15}], v{F_T16}, s[44:47], 0 offen offset:1024', 'h1')
    g.vmem('buffer_load_dword v252, v0, s[88:91], 0 offen sc1', 'nonce')
    for rr in range(2):
        K3, K2, K1, K0 = [KR + 4 * (rr + i) for i in range(4)]
        for e in range(8): a(f'v_dot2_f32_bf16 v{AC+e}, v{K3+e//2}, v{MK+24+e}, 0')
        for e in range(8): a(f'v_dot2_f32_bf16 v{PR+e}, v{K2+e//2}, v{MK+16+e}, 0')
        for Kx, m in ((K1, 8), (K0, 0), (None, None)):
            for e in range(8): a(f'v_cvt_pk_bf16_f32 v{AC+e}, v{AC+e}, v{PR+e}')
            if Kx is not None:
                for e in range(8): a(f'v_dot2_f32_bf16 v{PR+e}, v{Kx+e//2}, v{MK+m+e}, 0')
            for e in range(8): a(f'v_dot2_f32_bf16 v{AC+e}, v{AC+e}, s62, 0')
        for p in range(4): a(f'v_cvt_pk_bf16_f32 v{PR+p}, v{AC+2*p}, v{AC+2*p+1}')
        if rr == 0: g.vwait('v')
        for p in range(4):
            a(f'v_and_b32 v{AC+2*p}, s65, v{VR+4*rr+p}')
            a(f'v_and_b32 v{AC+2*p+1}, s64, v{VR+4*rr+p}')
        for e in range(8): a(f'v_dot2_f32_bf16 v{AC+e}, v{PR+e//2}, v{AC+e}, 0')
        for p in range(4): a(f'v_cvt_pk_bf16_f32 v{KO+4*rr+p}, v{AC+2*p}, v{AC+2*p+1}')
        g.ds(f'ds_write_b128 v14, v[{KO+4*rr}:{KO+4*rr+3}] offset:{144*(1-rr)}')
        if rr == 0:
            a('s_lshl_b32 s84, s2, 2')
            a('s_add_u32 s84, s84, s3')
            a('s_lshl_b32 s14, s84, 11')
            a('s_mul_i32 s84, s84, 1792')
            g.vmem(f'buffer_load_dwordx4 v[{TAP}:{TAP+3}], v2, s[92:95], s84 offen')
            g.vmem(f'buffer_load_dwordx4 v[{TAP+4}:{TAP+7}], v2, s[92:95], s84 offen offset:768')
            g.vmem(f'buffer_load_dwordx4 v[{TAP+8}:{TAP+11}], v2, s[48:51], s14 offen')
            g.vmem(f'buffer_load_dwordx4 v[{TAP+12}:{TAP+15}], v2, s[48:51], s14 offen offset:1024')
    g.barrier()
    for u in range(2):
        for hh in range(2):
            g.ds(f'ds_read_b64_tr_b16 v[{KO+4*u+2*hh}:{KO+4*u+2*hh+1}], v12 offset:{(32*u+4*hh)*144}', f'kt{u}')
    for u in range(2):
        g.lwait(f'kt{u}')
        g.ds(f'ds_write_b128 v13, v[{KO+4*u}:{KO+4*u+3}] offset:{64*u}', 'k2w')
    g.lwait('k2w')
    for u in range(2):
        g.ds(f'ds_read_b128 v[{KO+4*u}:{KO+4*u+3}], v254 offset:{8*144*u}', f'k2r{u}')
    a('s_add_u32 s13, s80, 32768')
    for u in range(2):
        g.lwait(f'k2r{u}')
        g.vmem(f'buffer_store_dwordx4 v[{KO+4*u}:{KO+4*u+3}], v255, {WSR}, {"s13" if u else "s80"} offen sc1', 'kst')
    stamp(g, 2)
    g.vwait('nonce')
    g.label('NONCE_P')
    a('v_readfirstlane_b32 s66, v252')
    a('s_cmp_lg_u32 s66, 0')
    a('s_cbranch_scc1 NONCE_D')
    a(f's_add_u32 {SPIN}, {SPIN}, 1')
    a(f's_cmp_gt_u32 {SPIN}, 0x40000')
    a('s_cbranch_scc1 NONCE_D')
    a('buffer_load_dword v252, v0, s[88:91], 0 offen sc1')
    a('s_waitcnt vmcnt(0)')
    a('s_branch NONCE_P')
    g.label('NONCE_D')
    a('s_not_b32 s67, s66')
    a('v_mov_b32 v4, s66')
    a('v_mov_b32 v5, s67')
    stamp(g, 24)
    a(f'v_add_u32 v{F_FB}, s12, v{F_T16}')
    for i in range(4): a(f'v_mov_b32 v{236+i}, 0')
    a(f'v_lshlrev_b32 v{F_VF}, 2, v3')
    a('s_mov_b32 s14, 0x1cb88541')
    a(f'v_lshrrev_b32 v{F_VF}, v{F_VF}, s14')
    a(f'v_and_b32 v{F_VF}, 15, v{F_VF}')
    a('v_mul_u32_u24 v252, 272, v3')
    a(f'v_add_u32 v{F_VF}, v{F_VF}, v252')
    a(f'v_lshl_add_u32 v{F_VF}, v{F_VF}, 4, s12')
    a('s_cmp_eq_u32 s9, 0')
    a('s_cbranch_scc0 CV_Z1')
    a('s_mov_b64 exec, 0xff')
    a(f'ds_write_b128 v{F_VF}, v[236:239]')
    a('s_mov_b64 exec, -1')
    a('s_branch CV_Z2')
    g.label('CV_Z1')
    a('v_add_u32 v252, s12, v2')
    a(f'ds_write_b128 v252, v[236:239] offset:{K2_G+4096}')
    g.label('CV_Z2')
    g.lg.issue()
    a('v_bfe_u32 v252, v1, 3, 1')
    a(f'v_add_u32 v252, v252, v{F_G4}')
    a(f'v_lshl_add_u32 v{F_VF}, v252, 4, v{F_VF}')
    a('s_lshl_b32 s14, s9, 8')
    a(f'v_add_u32 v{F_VF}, s14, v{F_VF}')
    a(f'v_lshlrev_b32 v{F_VG}, 5, v{F_N15}')
    a(f'v_lshlrev_b32 v252, 4, v{F_G4}')
    a(f'v_sub_u32 v{F_VG}, v252, v{F_VG}')
    a('s_add_u32 s14, s14, s12')
    a(f's_add_u32 s14, s14, {K2_G+480}')
    a(f'v_add_u32 v{F_VG}, s14, v{F_VG}')
    for p in range(2):
        d = HH + 8 * p
        t = FT + 20 * p
        g.vwait(f'h{p}')
        for k in range(6): a(f'v_mov_b32 v{t+k}, v{d+1+k}')
        for k in range(6): a(f'v_alignbyte_b32 v{t+6+k}, v{d+k+1}, v{d+k}, 2')
        for k in range(6): a(f'v_alignbyte_b32 v{t+12+k}, v{d+k+2}, v{d+k+1}, 2')
        src = {1: t + 6, 2: t, 3: t + 12, 4: d + 2, 5: t + 8, 6: t + 2, 7: t + 14, 8: d + 4}
        for r in range(1, 9):
            off = ((r - 1) * 272 + FC[r - 1] + 1) * 16 + 1024 * p
            g.ds(f'ds_write_b128 v{F_FB}, v[{src[r]}:{src[r]+3}] offset:{off}')
            if r in (3, 6) : g.pump(2)
    stamp(g, 25)
    publish(g, 'kst', [])
    stamp(g, 3)
    qraw(0)
    a('v_min_u32 v255, 15, v1')
    a('v_lshlrev_b32 v255, 3, v255')
    setup = ['s_lshr_b32 s82, s10, 4', 's_lshl_b32 s82, s82, 8', 's_lshl_b32 s14, s9, 7', 's_add_u32 s82, s82, s14',
             f's_add_u32 s82, s82, {WS_KF}']
    poll_issue(g, 'v255', setup, KO, 'kf')
    g.pump(10)
    g.qrd(0)
    stamp(g, 26)
    poll_check(g, 'KFP', 'v255', KO, 'kf')
    stamp(g, 4)
    g.vmem(f'buffer_load_dwordx4 v[{KO}:{KO+3}], v{F_T16}, {WSR}, s11 offen sc1', 'kv0')
    g.vmem(f'buffer_load_dwordx4 v[{KO+4}:{KO+7}], v{F_T16}, {WSR}, s11 offen offset:1024 sc1', 'kv1')
    qraw(1)
    g.lwait('qr')
    r = Rec(g); ln1_stats(r, 0, 80)
    for i, (_, f) in enumerate(r.items):
        f()
        if i % 20 == 19: g.pump(1)
        if i % 10 == 4 and g.fix_ok(): g.fixq.popleft()()
    stamp(g, 27)
    g.vwait('kv0')
    g.ds(f'ds_write_b128 v{F_FB}, v[{KO}:{KO+3}] offset:{K2_G}')
    g.vwait('kv1')
    g.ds(f'ds_write_b128 v{F_FB}, v[{KO+4}:{KO+7}] offset:{K2_G+1024}')
    g.barrier()
    stamp(g, 5)


def conv(g):
    a = g.a
    ACC = 80
    def Fr(b, s): return 112 + 64 * b + 4 * s
    def Gr(b, t): return 144 + 64 * b + 4 * t
    def reads(qq):
        b = qq & 1
        L = []
        for t in range(8):
            L.append((f'ds_read_b128 v[{Fr(b,t)}:{Fr(b,t)+3}], v{F_VF} offset:{512*t+64*qq}', f'c{qq}_{t}'))
            L.append((f'ds_read_b128 v[{Gr(b,t)}:{Gr(b,t)+3}], v{F_VG} offset:{512*(7-t)+64*qq}', f'c{qq}_{t}'))
        return L
    for l, tg in reads(0): g.ds(l, tg)
    if getattr(g, 'w2pt', True):
        g.vmem('buffer_load_dwordx4 v[44:47], v2, s[96:99], s84 offen')
        g.vmem('buffer_load_dwordx4 v[252:255], v2, s[96:99], s84 offen offset:768', 'pt2')
    started = set()
    nm = 0
    for qq in range(4):
        b = qq & 1
        nxt = reads(qq + 1) if qq < 3 else []
        for m in range(8):
            pairs = [(s, t) for s in range(m + 1) for t in range(m + 1) if max(s, t) == m and s + t <= 7]
            g.lwait(f'c{qq}_{m}')
            for (s, t) in pairs:
                o = ACC + 4 * (s + t)
                c = f'v[{o}:{o+3}]' if (s + t) in started else '0'
                started.add(s + t)
                a(f'v_mfma_f32_16x16x32_bf16 v[{o}:{o+3}], v[{Fr(b,s)}:{Fr(b,s)+3}], v[{Gr(b,t)}:{Gr(b,t)+3}], {c}')
                nm += 1
                if nxt and m >= 2:
                    l, tg = nxt.pop(0); g.ds(l, tg)
                if nm % CONV_PUMP == 0: g.pump(1)
                if nm % 3 == 2 and g.fixq and g.fix_ok(): g.fixq.popleft()()
        for l, tg in nxt: g.ds(l, tg)
    stamp(g, 6)
    g.vwait('pt2')
    a('s_lshl_b32 s14, s3, 12')
    a(f's_add_u32 s14, s14, {K2_SCR}')
    a('v_add_u32 v44, s14, v2')
    a('s_xor_b32 s14, s3, 1')
    a('s_lshl_b32 s14, s14, 12')
    a(f's_add_u32 s14, s14, {K2_SCR}')
    a('v_add_u32 v45, s14, v2')
    a('s_cmp_eq_u32 s9, 0')
    a('s_cbranch_scc0 CV_R1')
    for j in range(4):
        a(f'ds_write_b128 v44, v[{ACC+16+4*j}:{ACC+19+4*j}] offset:{1024*j}')
    a('s_branch CV_R2')
    g.label('CV_R1')
    for j in range(4):
        a(f'ds_write_b128 v44, v[{ACC+4*j}:{ACC+3+4*j}] offset:{1024*j}')
    for j in range(16):
        a(f'v_mov_b32 v{ACC+j}, v{ACC+16+j}')
    g.label('CV_R2')
    a(f'v_lshlrev_b32 v46, 5, v{F_N15}')
    a(f'v_lshl_add_u32 v46, v{F_G4}, 3, v46')
    a('s_lshl_b32 s14, s9, 11')
    a(f's_sub_u32 s14, {K2_G + 4088 - 3*512}, s14')
    a('s_add_u32 s14, s14, s12')
    a('v_sub_u32 v46, s14, v46')
    for j in range(4):
        a(f'ds_read_b64 v[{128+2*j}:{129+2*j}], v46 offset:{(3-j)*512}')
    a('s_lshl_b32 s14, s15, 16')
    a('s_and_b32 s15, s15, 0xffff0000')
    a('s_cmp_eq_u32 s8, 0')
    a('s_cselect_b32 s15, s14, s15')
    g.barrier()
    for j in range(4):
        g.ds(f'ds_read_b128 v[{112+4*j}:{115+4*j}], v45 offset:{1024*j}', f'r{j}')
    a('s_lshl_b32 s14, s9, 11')
    a('s_add_u32 s14, s14, s12')
    a(f'v_lshlrev_b32 v46, 5, v{F_N15}')
    a(f'v_lshl_add_u32 v46, v{F_G4}, 3, v46')
    a('v_add_u32 v46, s14, v46')
    a('v_add_u32 v44, s14, v2')
    a('s_lshl_b32 s14, s9, 4')
    a('v_add_u32 v47, s14, v6')
    a('v_mul_u32_u24 v47, 448, v47')
    a('v_add_u32 v47, s10, v47')
    a('v_lshlrev_b32 v47, 7, v47')
    a('v_lshl_add_u32 v47, v3, 4, v47')
    for j in range(4):
        g.lwait(f'r{j}')
        for r in range(4): a(f'v_add_f32 v{ACC+4*j+r}, v{ACC+4*j+r}, v{112+4*j+r}')
        k0, k1 = 128 + 2 * j, 129 + 2 * j
        a(f'v_and_b32 v144, s64, v{k1}')
        a(f'v_lshlrev_b32 v145, 16, v{k1}')
        a(f'v_and_b32 v146, s64, v{k0}')
        a(f'v_lshlrev_b32 v147, 16, v{k0}')
        for r in range(4): a(f'v_mul_f32 v{144+r}, s15, v{144+r}')
        for r in range(4): a(f'v_cvt_pk_bf16_f32 v{144+r}, v{144+r}, v{ACC+4*j+r}')
        for r in range(4): a(f'v_dot2_f32_bf16 v{144+r}, v{144+r}, s62, 0')
        a(f'v_cvt_pk_bf16_f32 v{148+2*j}, v144, v145')
        a(f'v_cvt_pk_bf16_f32 v{149+2*j}, v146, v147')
        g.ds(f'ds_write_b64 v46, v[{148+2*j}:{149+2*j}] offset:{512*j}', 'y3w')
    g.lwait('y3w')
    for u in range(2):
        g.ds(f'ds_read_b128 v[{112+4*u}:{115+4*u}], v44 offset:{1024*u}', f'y3r{u}')
    for u in range(2):
        g.lwait(f'y3r{u}')
        a(f's_mov_b32 s14, {WS_YB + u*8*448*128}')
        g.vmem(f'buffer_store_dwordx4 v[{112+4*u}:{115+4*u}], v47, {WSR}, s14 offen sc1', 'yst')


def setup_gemm(g):
    a = g.a
    a(f'v_min_u32 v{V_FL}, 27, v1')
    a(f'v_lshlrev_b32 v{V_FL}, 3, v{V_FL}')
    a(f'v_lshrrev_b32 v{V_XW}, 1, v6')
    a(f'v_lshlrev_b32 v{V_XW}, 10, v{V_XW}')
    a(f'v_and_b32 v{V_STW}, 1, v6')
    a(f'v_lshl_add_u32 v{V_XW}, v{V_STW}, 9, v{V_XW}')
    a(f'v_lshl_add_u32 v{V_XW}, v3, 4, v{V_XW}')
    a('s_lshl_b32 s70, s3, 7')
    a(f's_add_u32 s70, s70, {L_R0}')
    a(f'v_add_u32 v{V_XW}, s70, v{V_XW}')
    a('s_lshl_b32 s70, s3, 6')
    a(f's_add_u32 s70, s70, {L_ST}')
    a(f'v_lshl_add_u32 v{V_STW}, v3, 3, s70')
    a(f'v_add_u32 v{V_B}, {L_R0}, v2')
    a('s_lshl_b32 s70, s5, 2')
    a('s_add_u32 s70, s70, s3')
    a('s_lshl_b32 s70, s70, 10')
    a(f'v_add_u32 v{V_RES}, s70, v{V_B}')
    a(f'v_and_b32 v{V_STR}, 31, v1')
    a(f'v_mul_u32_u24 v{V_OST}, 896, v{V_STR}')
    a(f'v_lshlrev_b32 v{V_STR}, 3, v{V_STR}')
    a(f'v_add_u32 v{V_STR}, {L_ST}, v{V_STR}')
    a(f'v_lshrrev_b32 v{V_Q}, 5, v1')
    a('s_lshl_b32 s70, s3, 8')
    a(f's_add_u32 s70, s70, {L_CS}')
    a(f'v_lshl_add_u32 v{V_CS}, v{V_Q}, 6, s70')
    a('s_mul_i32 s70, s3, 6144')
    a(f'v_add_u32 v{V_RED}, s70, v{V_B}')
    a(f'v_bfe_u32 v{V_XST}, v1, 3, 2')
    a(f'v_mul_u32_u24 v{V_XST}, 7168, v{V_XST}')
    a(f'v_lshl_add_u32 v{V_XST}, v3, 4, v{V_XST}')
    a('s_lshl_b32 s70, s3, 1')
    a(f'v_add_u32 v{V_Q}, s70, v{V_Q}')
    a(f'v_lshl_add_u32 v{V_XST}, v{V_Q}, 7, v{V_XST}')
    a(f'v_lshl_add_u32 v{V_OST}, v{V_Q}, 4, v{V_OST}')
    a('s_lshl_b32 s69, s4, 8')
    a(f's_add_u32 s69, s69, {WS_OF}')
    a('s_lshl_b32 s76, s5, 2')
    a('s_add_u32 s76, s76, s3')
    a('s_lshl_b32 s75, s76, 12')
    a('s_lshl_b32 s76, s76, 3')
    a('s_add_u32 s76, s76, s69')
    a(f's_mul_i32 s77, s4, {224*1024}')
    a('s_add_u32 s75, s75, s77')
    a(f's_mul_i32 s70, s3, {28*1024}')
    a('s_add_u32 s77, s77, s70')
    a('s_mul_i32 s78, s4, 57344')
    a('s_lshl_b32 s70, s5, 7')
    a('s_add_u32 s79, s78, s70')
    a('s_lshl_b32 s70, s5, 10')
    a('s_add_u32 s78, s78, s70')
    srd(a, 52, P_OUT, 0, XBYTES)
    a(f'v_mul_u32_u24 v76, {YP}, v3')
    a('s_mul_i32 s70, s3, 1792')
    a('v_add_u32 v76, s70, v76')
    a('s_and_b32 s70, s3, 1')
    a('s_lshl_b32 s70, s70, 2')
    a('v_xor_b32 v77, s70, v6')
    a('v_xor_b32 v78, 4, v77')
    a('v_lshl_add_u32 v77, v77, 4, v76')
    a('v_lshl_add_u32 v78, v78, 4, v76')
    a('v_lshrrev_b32 v44, 4, v1')
    a('v_bfe_u32 v45, v1, 1, 1')
    a('v_lshl_add_u32 v45, v44, 1, v45')
    a('v_lshlrev_b32 v45, 7, v45')
    a('v_bfe_u32 v46, v1, 2, 2')
    a('v_lshl_add_u32 v45, v46, 4, v45')
    a('v_and_b32 v46, 1, v1')
    a('v_lshl_add_u32 v45, v46, 3, v45')
    a(f's_mul_i32 s70, s3, {YP}')
    a('v_add_u32 v45, s70, v45')
    a('v_and_b32 v44, 1, v44')
    a('v_lshlrev_b32 v44, 6, v44')
    a(f'v_add_u32 v{V_YT0}, v45, v44')
    a('v_xor_b32 v44, 64, v44')
    a(f'v_add_u32 v{V_YT1}, v45, v44')
    a('v_min_u32 v47, 55, v1')
    a('v_lshlrev_b32 v47, 4, v47')
    a(f'v_lshlrev_b32 v{V_Q}, 3, v1')
    a(f'v_mov_b32 v{V_C0}, v136')
    a(f'v_mov_b32 v{V_C1}, v137')


def pub_op(op): return [f's_add_u32 s81, s76, {opflag(op)}']
def poll_op(op): return [f's_add_u32 s82, s69, {opflag(op)}']


def main_kernel(asm):
    g = G(asm)
    a = g.a
    asm(kernel_header(KNAME))
    if PROF:
        a('s_memrealtime s[100:101]')
        a('v_mov_b32 v7, 0')
        a('s_waitcnt lgkmcnt(0)')
        a('v_writelane_b32 v7, s100, 62')
        a('s_getreg_b32 s100, hwreg(HW_REG_XCC_ID)')
        a('v_writelane_b32 v7, s100, 61')
        a('s_getreg_b32 s100, hwreg(HW_REG_HW_ID)')
        a('v_writelane_b32 v7, s100, 60')
        stamp(g, 0)
    load_args(asm)
    a('s_cmp_ge_u32 s2, 224')
    a('s_cbranch_scc1 MAIN_END')
    front(g)
    conv(g)
    stamp(g, 11)
    setup_late = True
    g.vwait('yst')
    g.barrier()
    a('s_mul_i32 s81, s9, 224')
    a('s_add_u32 s81, s81, s2')
    a('s_lshl_b32 s81, s81, 3')
    a(f's_add_u32 s81, s81, {WS_CF}')
    publish(g, 'yst', [])
    stamp(g, 7)
    g.pump(100)
    g.qrd(1)
    a(f'v_mov_b32 v{V_W2S}, v{F_W2S}')
    a('s_sub_u32 s70, s59, s58')
    a(f'v_add_u32 v136, s70, v{F_T2}')
    a(f'v_add_u32 v137, s70, v{F_T2+1}')
    setup_gemm(g)
    g.w2s, g.w2t, g.fixw = V_W2S, 126, 131
    cf_setup = ['s_lshr_b32 s82, s4, 4', 's_mul_i32 s82, s82, 1792', f's_add_u32 s82, s82, {WS_CF}']
    g.lwait('qr')
    r = Rec(g); ln1_stats(r, 1, 80)
    for i, (_, f) in enumerate(r.items):
        f()
        if i == 40: poll_issue(g, 'v47', cf_setup, 116, 'cf', wide=2)
        if i % 6 == 5 and g.fixq: g.fixq.popleft()()
    while g.fixq: g.fixq.popleft()()
    stamp(g, 8)
    poll_check(g, 'CFP', 'v47', 116, 'cf', wide=2)
    stamp(g, 9)
    a('s_mul_i32 s70, s4, 57344')
    a('s_mul_i32 s72, s3, 14336')
    a('s_add_u32 s70, s70, s72')
    a(f's_add_u32 s70, s70, {WS_YB}')
    YL = [80 + 4 * i for i in range(12)] + [132, 140]
    for i in range(14):
        r = YL[i]
        g.vmem(f'buffer_load_dwordx4 v[{r}:{r+3}], v2, {WSR}, s70 offen offset:{1024*(i%4)} sc1', f'yl{i}')
        if i % 4 == 3: a('s_add_u32 s70, s70, 4096')
    for k in range(12):
        for x in range(2): g.bg.append(g.w2raw(k, x))
    for k in (25, 26, 27): g.bg.append(g.w2l(k))
    g.pump(4)
    for i in range(14):
        r = YL[i]
        g.vwait(f'yl{i}')
        g.ds(f'ds_write_b128 {"v78" if (i>>1)&1 else "v77"}, v[{r}:{r+3}] offset:{128*i}')
    g.barrier()
    stamp(g, 10)
    y_tr(g, 0)
    for i in range(4): a(f'v_mov_b32 v{132+i}, s62')
    r = Rec(g); p3(r, 0, 0); g.add(r)
    for k in range(28):
        for ft2 in range(2):
            o = 224 + 16 * ft2
            c = f'v[{o}:{o+15}]' if k else '0'
            rr = w1_reg(ft2, k)
            a(f'v_mfma_f32_32x32x16_bf16 v[{o}:{o+15}], a[{rr}:{rr+3}], v[132:135], {c}')
            g.fill(99, 7)
        g.pump(1)
    g.flush()
    a('s_mov_b32 exec_lo, 1')
    a('s_mov_b32 exec_hi, 1')
    for q in range(8):
        g.ds(f'ds_write_b128 v{V_CS}, v[{224+4*q}:{227+4*q}] offset:{(q//4)*128 + (q%4)*16}')
    a('s_mov_b64 exec, -1')
    for layer in range(2):
        sb = 12 + 16 * layer
        g.barrier()
        stamp(g, sb)
        r = Rec(g)
        if layer == 0:
            y_tr(r, 1)
            r.barrier()
            for k in range(12, 16):
                for x in range(2): g.bg.append(g.w2raw(k, x))
            for k in range(16, 24): g.bg.append(g.w2l(k))
        else:
            r.vwait('x1')
        p3(r, layer, 1)
        g.add(r)
        m1(g, layer, 0, 7, bgp=1 if layer == 0 else 0, bg_from=4)
        stamp(g, sb + 1)
        g.flush()
        g.barrier()
        stamp(g, sb + 2)
        if layer == 0:
            a(f'v_add_u32 v126, {8*8192}, v{V_C0}')
            a(f'v_add_u32 v127, {8*8192}, v{V_C1}')
            a(f's_add_u32 s70, s59, {8*8192}')
            a('v_add_u32 v131, s70, v2')
            for k in range(16):
                g.bg.append(g.fix_w(2, k, 0))
                g.bg.append(g.fix_r(2, k, 0))
            def last():
                g.lwait('fx0')
                g.w2l(24)()
            g.bg.append(last)
        r = Rec(g)
        e1(r, layer, 0, 80)
        r.at(38); publish(r, 'hst0', pub_op(4 * layer))
        r.at(48); poll_issue(r, f'v{V_FL}', poll_op(4 * layer), 124, 'pf')
        g.add(r)
        m1(g, layer, 1, 6, bgp=2 if layer == 0 else 0)
        stamp(g, sb + 3)
        g.flush()
        g.pump(100)
        poll_check(g, f'PH{layer}0', f'v{V_FL}', 124, 'pf')
        stamp(g, sb + 4)
        e1(g, layer, 1, WT, plain=False)
        r = Rec(g)
        publish(r, 'hst1', pub_op(4 * layer + 1))
        r.at(36); poll_issue(r, f'v{V_FL}', poll_op(4 * layer + 1), 76, 'pf')
        g.add(r)
        m2(g, layer, 0, 5, 0)
        stamp(g, sb + 5)
        g.flush()
        e2_head(g, layer, 0)
        poll_check(g, f'PH{layer}1', f'v{V_FL}', 76, 'pf')
        if layer == 1:
            for k in range(NSL): h_load(g, layer, 1, k)
        e2_tail(g, layer, 0)
        stamp(g, sb + 6)
        r = Rec(g)
        if layer == 0:
            publish(r, 'xst0', pub_op(2))
            r.at(34); poll_issue(r, f'v{V_FL}', poll_op(2), 44, 'pf')
            r.at(50); poll_check(r, 'PX0', f'v{V_FL}', 44, 'pf')
            x_loads(r, 0)
        g.add(r)
        m2(g, layer, 1, 5, NSL if layer == 1 else 0)
        stamp(g, sb + 7)
        g.flush()
        e2_head(g, layer, 1)
        if layer == 0:
            st_loads(g, 0)
            y_loads(g, 0)
        e2_tail(g, layer, 1)
        stamp(g, sb + 8)
        if layer == 0:
            ln1_combine(g, 0)
            g.vwait('y0')
            stamp(g, sb + 9)
            def yb(e, i):
                if i < 4: return
                for ii in (range(5) if i == 4 else [i]):
                    def f(g, ii=ii):
                        g.a(f's_add_u32 s72, s71, {WS_YX + 4*7168 + 1024*ii}')
                        g.vmem(f'buffer_load_dwordx4 v[{YR+4*ii}:{YR+4*ii+3}], v2, {WSR}, s72 offen sc1', 'y1')
                    e.group(f)
            r = Rec(g); p3(r, 1, 0, plain=False, after_group=yb)
            for i, (_, f) in enumerate(r.items):
                f()
                if i == 150: publish(g, 'xst1', pub_op(3))
                if i == 260: poll_issue(g, f'v{V_FL}', poll_op(3), 76, 'pf')
            stamp(g, sb + 10)
            poll_check(g, 'PX1', f'v{V_FL}', 76, 'pf')
            st_loads(g, 1)
            x_loads(g, 1)
            ln1_combine(g, 1)
    if PROF:
        a('s_waitcnt vmcnt(0)')
        stamp(g, 40)
        a('s_memrealtime s[100:101]')
        a('s_waitcnt lgkmcnt(0)')
        a('v_writelane_b32 v7, s100, 63')
        a('s_lshl_b32 s70, s2, 2')
        a('s_add_u32 s70, s70, s3')
        a('s_lshl_b32 s70, s70, 8')
        a(f's_add_u32 s70, s70, {WS_PROF + 0x10000}')
        a('v_lshlrev_b32 v16, 2, v1')
        a(f'buffer_store_dword v7, v16, {WSR}, s70 offen')
    g.label('MAIN_END')
    a('s_endpgm')


def main(out):
    asm = Asm()
    main_kernel(asm)
    hdr = open(f'cdna_kernels/{NAME}.s.ref').read().split('; Override launch')[0]
    hdr += f"""; @launch grid=(224,1,1) block=(256,1,1) lds={LDS_BYTES}
.amdgcn_target "amdgcn-amd-amdhsa--gfx950"
.text
"""
    tail = '.section .rodata,"a"\n' + kernel_desc(KNAME, 512, sgpr=102, accum=256)
    open(out, 'w').write(hdr + asm.text() + tail)


if __name__ == '__main__':
    PROF = '--prof' in sys.argv
    main(sys.argv[1] if len(sys.argv) > 1 and not sys.argv[1].startswith('--') else f'cdna_kernels/{NAME}.s')
```

```python
import sys
import gen4
from gen4 import *

CODEPF = '--nopf' not in sys.argv
WS_PF = 0x803000
WS_W1F = 0xA00000
WS_W2F = 0xC00000
WS_XQ = 0xE00000
WS_SQ = 0x980000
PRE_SCR = 9216
PRE_LDS = PRE_SCR + 4 * 8192


def nonce_publish(g, tag):
    a = g.a
    a('s_or_b32 s8, s2, s3')
    a('s_cmp_lg_u32 s8, 0')
    a(f's_cbranch_scc1 {tag}_SKIP')
    a('s_memrealtime s[8:9]')
    a('s_waitcnt lgkmcnt(0)')
    a('s_or_b32 s8, s8, 1')
    a('v_mov_b32 v4, s8')
    a('v_mov_b32 v5, 0')
    a('s_mov_b64 exec, 1')
    a('buffer_atomic_cmpswap v[4:5], v0, s[88:91], 0 offen sc1')
    a('s_mov_b64 exec, -1')
    g.label(f'{tag}_SKIP')


def nonce_get(g, tag, t):
    a = g.a
    g.vwait('nonce')
    g.label(f'{tag}_P')
    a(f'v_readfirstlane_b32 s66, v{t}')
    a('s_cmp_lg_u32 s66, 0')
    a(f's_cbranch_scc1 {tag}_D')
    a(f's_add_u32 {SPIN}, {SPIN}, 1')
    a(f's_cmp_gt_u32 {SPIN}, 0x40000')
    a(f's_cbranch_scc1 {tag}_D')
    a(f'buffer_load_dword v{t}, v0, s[88:91], 0 offen sc1')
    a('s_waitcnt vmcnt(0)')
    a(f's_branch {tag}_P')
    g.label(f'{tag}_D')
    a('s_not_b32 s67, s66')
    a('v_mov_b32 v4, s66')
    a('v_mov_b32 v5, s67')


def consts(a):
    a('s_mov_b32 s60, 0x00003f80')
    a('s_mov_b32 s61, 0x3f800000')
    a('s_mov_b32 s62, 0x3f803f80')
    a('s_mov_b32 s63, 0x3b124925')
    a('s_mov_b32 s64, 0xffff0000')
    a('s_mov_b32 s65, 0xffff')
    a(f's_mov_b32 {SPIN}, 0')


def prof_begin(g):
    if not gen4.PROF: return
    a = g.a
    a('s_memrealtime s[100:101]')
    a('v_mov_b32 v7, 0')
    a('s_waitcnt lgkmcnt(0)')
    a('v_writelane_b32 v7, s100, 62')
    stamp(g, 0)


def prof_end(g, region):
    if not gen4.PROF: return
    a = g.a
    a('s_waitcnt vmcnt(0)')
    stamp(g, 40)
    a('s_memrealtime s[100:101]')
    a('s_waitcnt lgkmcnt(0)')
    a('v_writelane_b32 v7, s100, 63')
    a('s_lshl_b32 s70, s2, 2')
    a('s_add_u32 s70, s70, s3')
    a('s_lshl_b32 s70, s70, 8')
    a(f's_add_u32 s70, s70, {WS_PROF + region}')
    a('v_lshlrev_b32 v16, 2, v1')
    a(f'buffer_store_dword v7, v16, {WSR}, s70 offen')


def m1_jit(g, nfill):
    s = 0
    ACC = XR(s)
    def rd(k):
        sl = BR + 4 * (k % 2)
        g.ds(f'ds_read_b128 v[{sl}:{sl+3}], v{V_B} offset:{1024*k}', f'b{k}')
    rd(0)
    g.ds(f'ds_read_b128 v[8:11], v{V_RES}')
    g.ds(f'ds_read_b64 v[{V_ST}:{V_ST+1}], v{V_STR}')
    for i in range(4): g.a(f'v_mov_b32 v{BR+8+i}, s62')
    for k in range(28):
        if k + 1 < 28: rd(k + 1)
        g.wait2(f'w1_{k}', f'b{k}')
        sl = BR + 4 * (k % 2)
        for ft2 in range(2):
            r = w1_reg(ft2, k)
            for o, bb in ((ACC + 16 * ft2, sl), (224 + 16 * ft2, BR + 8)):
                c = f'v[{o}:{o+15}]' if k else '0'
                g.a(f'v_mfma_f32_32x32x16_bf16 v[{o}:{o+15}], a[{r}:{r+3}], v[{bb}:{bb+3}], {c}')
                g.fill(4 * k, nfill)
            g.pump(1)


def m1f(g, layer, s, bgp=0, bg_from=0):
    ACC = XR(s)
    def rd(n):
        sl = BR + 4 * (n % 3)
        g.ds(f'ds_read_b128 v[{sl}:{sl+3}], v{V_B} offset:{s*R_SZ + 1024*(n%28)}', f'b{n}')
    rd(0); rd(1)
    RES = 8 + 4 * s
    g.ds(f'ds_read_b128 v[{RES}:{RES+3}], v{V_RES} offset:{s*R_SZ}')
    g.ds(f'ds_read_b64 v[{V_ST+2*s}:{V_ST+2*s+1}], v{V_STR} offset:{s*256}')
    for n in range(56):
        ft2, k = divmod(n, 28)
        if n == 29:
            r = Rec(g); e1(r, layer, s, 108, halves=(0,)); g.add(r)
        if n + 2 < 56: rd(n + 2)
        g.lwait(f'b{n}')
        sl = BR + 4 * (n % 3)
        o = ACC + 16 * ft2
        c = f'v[{o}:{o+15}]' if k else '0'
        r = w1_reg(ft2, k)
        g.a(f'v_mfma_f32_32x32x16_bf16 v[{o}:{o+15}], a[{r}:{r+3}], v[{sl}:{sl+3}], {c}')
        g.fill(n, 4)
        if n >= bg_from and n % 2 == 0: g.pump(bgp)
    g.flush()
    e1(g, layer, s, 108, plain=False, halves=(1,))


def m2b(g, layer, s, nfill, first_issued):
    ACC = XR(s)
    for k in range(first_issued, NSL): h_load(g, layer, s, k)
    def rdw(k):
        if k == 24: g.a(f'v_add_u32 v{V_C0}, 0x10000, v{V_C0}')
        for dt in range(2):
            r = WT + 8 * (k % 2) + 4 * dt
            g.ds(f'ds_read_b128 v[{r}:{r+3}], v{V_C0} offset:{8192*((k-16)%8) + 1024*dt}', f'w{k}')
    for k in range(28):
        if k in (14, 15): rdw(k + 2)
        g.wait2(f'h{s}_{k}', f'w{k}' if k >= 16 else None)
        sl = h_slot(s, k)
        for dt in range(2):
            o = ACC + 16 * dt
            c = f'v[{o}:{o+15}]' if k else '0'
            kind, r = w2_loc(k, dt)
            if kind == 'l': kind, r = 'v', WT + 8 * (k % 2) + 4 * dt
            g.a(f'v_mfma_f32_32x32x16_bf16 v[{o}:{o+15}], {kind}[{r}:{r+3}], v[{sl}:{sl+3}], {c}')
            g.fill(2 * k + dt, nfill)
        if k + NSL < 28: h_load(g, layer, s, k + NSL)
        if 16 <= k and k + 2 < 28: rdw(k + 2)
    g.a(f'v_subrev_u32 v{V_C0}, 0x10000, v{V_C0}')


def main_kernel(asm):
    g = G(asm)
    a = g.a
    asm(kernel_header(KNAME))
    prof_begin(g)
    a('s_memrealtime s[98:99]')
    a('s_memtime s[100:101]')
    a('s_waitcnt lgkmcnt(0)')
    a('v_writelane_b32 v7, s98, 0')
    a('v_writelane_b32 v7, s100, 1')
    load_args(asm)
    a('s_cmp_ge_u32 s2, 224')
    a('s_cbranch_scc1 MAIN_END')
    if CODEPF:
        a('s_getpc_b64 s[86:87]')
        g.label('PPF_PC')
        a('v_lshlrev_b32 v71, 7, v0')
        a('global_load_dword v72, v71, s[86:87]')
        a('v_add_u32 v71, 0x8000, v71')
        a('v_cmp_gt_u32 vcc, MAIN_END-PPF_PC, v71')
        a('s_and_saveexec_b64 s[78:79], vcc')
        a('s_cbranch_execz PPF_S')
        a('global_load_dword v72, v71, s[86:87]')
        g.label('PPF_S')
        a('s_mov_b64 exec, -1')
    MK, AC, PR, KO, TAP, KR, VR, HH, FT = 80, 112, 120, 128, 136, 152, 172, 180, 196
    a('v_and_b32 v1, 63, v0')
    a('v_lshrrev_b32 v2, 6, v0')
    a('v_readfirstlane_b32 s3, v2')
    a(f's_mul_hi_u32 s6, s2, {magic(7)}')
    a('s_mul_i32 s7, s6, 7')
    a('s_sub_u32 s7, s2, s7')
    a('v_and_b32 v252, 7, v0')
    a('v_lshrrev_b32 v253, 3, v0')
    a('s_lshl_b32 s8, s6, 6')
    a('v_lshl_add_u32 v254, v253, 1, s8')
    a('s_movk_i32 s8, 896')
    a('v_mul_lo_u32 v254, v254, s8')
    a('s_lshl_b32 s8, s7, 7')
    a('v_lshl_add_u32 v255, v252, 4, s8')
    a('v_add_u32 v254, v254, v255')
    a('v_add_u32 v44, -896, v254')
    a('v_add_u32 v45, -1792, v254')
    a('v_add_u32 v46, -2688, v254')
    a('v_lshlrev_b32 v255, 2, v255')
    a('v_lshlrev_b32 v2, 4, v1')
    a('s_waitcnt lgkmcnt(0)')
    srd(a, 88, P_SHK, 0, 448 * 8)
    srd(a, 56, P_K, 0, XBYTES)
    srd(a, 84, P_V, 0, XBYTES)
    for i in range(4):
        g.vmem(f'buffer_load_dwordx4 v[{TAP+4*i}:{TAP+4*i+3}], v255, s[88:91], 0 offen offset:{16*i}', 'tap')
    g.vmem(f'buffer_load_dwordx4 v[{KR}:{KR+3}], v46, s[56:59], 0 offen', 'k')
    g.vmem(f'buffer_load_dwordx4 v[{KR+4}:{KR+7}], v45, s[56:59], 0 offen', 'k')
    g.vmem(f'buffer_load_dwordx4 v[{KR+8}:{KR+11}], v44, s[56:59], 0 offen', 'k')
    g.vmem(f'buffer_load_dwordx4 v[{KR+12}:{KR+15}], v254, s[56:59], 0 offen', 'k')
    g.vmem(f'buffer_load_dwordx4 v[{KR+16}:{KR+19}], v254, s[56:59], 0 offen offset:896', 'k')
    g.vmem(f'buffer_load_dwordx4 v[{VR}:{VR+3}], v254, s[84:87], 0 offen', 'v')
    g.vmem(f'buffer_load_dwordx4 v[{VR+4}:{VR+7}], v254, s[84:87], 0 offen offset:896', 'v')
    srd(a, 88, P_DBG, 0, 256)
    srd(a, 40, P_WS, 0, WS_SIZE + (0x100000 if gen4.PROF else 0))
    a('v_mov_b32 v0, 0')
    nonce_publish(g, 'PN')
    a('s_lshr_b32 s8, s3, 1')
    a('s_and_b32 s9, s3, 1')
    a('s_lshl_b32 s10, s2, 1')
    a('s_add_u32 s10, s10, s8')
    a('s_lshl_b32 s11, s10, 12')
    a(f's_mul_i32 s12, s8, {K2_CB}')
    a('s_lshl_b32 s13, s9, 11')
    a(f'v_add_u32 v{F_T16}, s13, v2')
    a(f'v_add_u32 v77, -16, v{F_T16}')
    srd(a, 44, P_SSMK, 's11', 4096)
    a('s_lshl_b32 s14, s2, 2')
    a('s_load_dword s15, s[26:27], s14')
    a('s_lshl_b32 s68, s7, 2')
    a('s_add_u32 s68, s68, s3')
    a('s_sub_u32 s69, 31, s6')
    a('s_lshl_b32 s80, s68, 16')
    a('s_lshl_b32 s70, s69, 7')
    a('s_add_u32 s80, s80, s70')
    a('s_lshl_b32 s81, s68, 5')
    a('s_add_u32 s81, s81, s69')
    a('s_lshl_b32 s81, s81, 3')
    a(f's_add_u32 s81, s81, {WS_KF}')
    a(f'v_lshrrev_b32 v{F_G4}, 4, v1')
    a('v_bfe_u32 v48, v1, 2, 2')
    a('v_and_b32 v49, 3, v1')
    a(f'v_lshl_add_u32 v50, v{F_G4}, 3, v48')
    a('v_mul_u32_u24 v50, 144, v50')
    a('v_lshl_add_u32 v50, v49, 3, v50')
    a('s_lshl_b32 s13, s3, 5')
    a(f's_add_u32 s13, s13, {K2_SCR}')
    a('v_add_u32 v50, s13, v50')
    a(f'v_and_b32 v{F_N15}, 15, v1')
    a('s_lshl_b32 s58, s3, 13')
    a(f's_add_u32 s58, s58, {L_R0}')
    a(f'v_mul_u32_u24 v51, 144, v{F_N15}')
    a(f'v_lshl_add_u32 v51, v{F_G4}, 4, v51')
    a('v_add_u32 v51, s58, v51')
    a('v_and_b32 v3, 7, v1')
    a('v_lshrrev_b32 v6, 3, v1')
    a('v_mul_u32_u24 v52, 144, v6')
    a('v_lshl_add_u32 v52, v3, 4, v52')
    a('v_add_u32 v52, s58, v52')
    a('v_lshlrev_b32 v53, 12, v6')
    a('v_lshl_add_u32 v53, v3, 4, v53')
    a('v_lshlrev_b32 v54, 1, v253')
    a('v_sub_u32 v54, 62, v54')
    a('v_mul_u32_u24 v54, 144, v54')
    a('v_lshl_add_u32 v54, v252, 4, v54')
    a(f'v_add_u32 v54, {K2_SCR}, v54')
    consts(a)
    srd(a, 92, P_W1, 0, WBYTES)
    srd(a, 96, P_W2, 0, WBYTES)
    srd(a, 48, P_Q, 0, XBYTES)
    a('s_lshl_b32 s84, s2, 2')
    a('s_add_u32 s84, s84, s3')
    a('v_bfe_u32 v55, v1, 4, 1')
    a('v_lshlrev_b32 v55, 2, v55')
    a('v_xor_b32 v55, v55, v3')
    a('v_lshlrev_b32 v55, 4, v55')
    a('s_movk_i32 s13, 3584')
    a('v_mad_u32_u24 v56, v6, s13, v55')
    a('s_movk_i32 s13, 896')
    a('v_mad_u32_u24 v57, v6, s13, v55')
    a(f's_mul_hi_u32 s72, s84, {magic(28)}')
    a('s_mul_i32 s73, s72, 28')
    a('s_sub_u32 s73, s84, s73')
    a(f's_mul_i32 s74, s72, {16*3584}')
    a('s_lshl_b32 s13, s73, 7')
    a('s_add_u32 s74, s74, s13')
    a('s_mul_i32 s75, s73, 56')
    a('s_add_u32 s75, s75, s72')
    a('s_lshl_b32 s75, s75, 10')
    a(f's_add_u32 s75, s75, {WS_W1F}')
    a(f's_mul_hi_u32 s72, s84, {magic(7)}')
    a('s_mul_i32 s73, s72, 7')
    a('s_sub_u32 s73, s84, s73')
    a(f's_mul_i32 s76, s72, {16*896}')
    a('s_lshl_b32 s13, s73, 7')
    a('s_add_u32 s76, s76, s13')
    a('s_mul_i32 s77, s73, 224')
    a('s_add_u32 s77, s77, s72')
    a('s_lshl_b32 s77, s77, 10')
    a(f's_add_u32 s77, s77, {WS_W2F}')
    a(f'v_and_b32 v58, 1, v{F_G4}')
    a('v_lshlrev_b32 v58, 5, v58')
    a('v_lshl_add_u32 v58, v49, 3, v58')
    a('v_lshl_add_u32 v58, v48, 7, v58')
    a('v_lshrrev_b32 v59, 1, v48')
    a('v_lshlrev_b32 v59, 6, v59')
    a('v_xor_b32 v60, 64, v59')
    a(f'v_lshrrev_b32 v61, 1, v{F_G4}')
    a('v_lshl_add_u32 v62, v61, 10, v58')
    a('v_lshl_add_u32 v63, v61, 9, v58')
    a('v_add3_u32 v64, v62, v59, s58')
    a('v_add3_u32 v65, v62, v60, s58')
    a('v_add3_u32 v66, v63, v59, s58')
    a('v_add3_u32 v67, v63, v60, s58')
    a('v_add_u32 v68, s58, v2')
    a('v_xor_b32 v69, v3, v6')
    a('v_lshlrev_b32 v70, 4, v69')
    a('s_movk_i32 s13, 896')
    a('v_mad_u32_u24 v70, v6, s13, v70')
    a('v_lshl_add_u32 v69, v3, 3, v69')
    a('v_lshl_add_u32 v69, v69, 4, s58')
    WR = 72 if False else 216
    g.vwait('tap')
    for e in range(8):
        A, B = TAP + 2 * e, TAP + 2 * e + 1
        if e % 2 == 0:
            a(f'v_and_b32 v{MK+e}, s65, v{A}')
            a(f'v_lshrrev_b32 v{MK+8+e}, 16, v{A}')
            a(f'v_and_b32 v{MK+16+e}, s65, v{B}')
            a(f'v_lshrrev_b32 v{MK+24+e}, 16, v{B}')
        else:
            a(f'v_lshlrev_b32 v{MK+e}, 16, v{A}')
            a(f'v_and_b32 v{MK+8+e}, s64, v{A}')
            a(f'v_lshlrev_b32 v{MK+16+e}, 16, v{B}')
            a(f'v_and_b32 v{MK+24+e}, s64, v{B}')
    g.vwait('v')
    stamp(g, 1)
    g.vmem('buffer_load_dword v252, v0, s[88:91], 0 offen sc1', 'nonce')
    g.vmem(f'buffer_load_dwordx4 v[{HH}:{HH+3}], v77, s[44:47], 0 offen', 'h0')
    g.vmem(f'buffer_load_dwordx4 v[{HH+4}:{HH+7}], v{F_T16}, s[44:47], 0 offen', 'h0')
    g.vmem(f'buffer_load_dwordx4 v[{HH+8}:{HH+11}], v{F_T16}, s[44:47], 0 offen offset:1008', 'h1')
    g.vmem(f'buffer_load_dwordx4 v[{HH+12}:{HH+15}], v{F_T16}, s[44:47], 0 offen offset:1024', 'h1')
    for rr in range(2):
        K3, K2, K1, K0 = [KR + 4 * (rr + i) for i in range(4)]
        for e in range(8): a(f'v_dot2_f32_bf16 v{AC+e}, v{K3+e//2}, v{MK+24+e}, 0')
        for e in range(8): a(f'v_dot2_f32_bf16 v{PR+e}, v{K2+e//2}, v{MK+16+e}, 0')
        for Kx, m in ((K1, 8), (K0, 0), (None, None)):
            for e in range(8): a(f'v_cvt_pk_bf16_f32 v{AC+e}, v{AC+e}, v{PR+e}')
            if Kx is not None:
                for e in range(8): a(f'v_dot2_f32_bf16 v{PR+e}, v{Kx+e//2}, v{MK+m+e}, 0')
            for e in range(8): a(f'v_dot2_f32_bf16 v{AC+e}, v{AC+e}, s62, 0')
        for p in range(4): a(f'v_cvt_pk_bf16_f32 v{PR+p}, v{AC+2*p}, v{AC+2*p+1}')
        for p in range(4):
            a(f'v_and_b32 v{AC+2*p}, s65, v{VR+4*rr+p}')
            a(f'v_and_b32 v{AC+2*p+1}, s64, v{VR+4*rr+p}')
        for e in range(8): a(f'v_dot2_f32_bf16 v{AC+e}, v{PR+e//2}, v{AC+e}, 0')
        for p in range(4): a(f'v_cvt_pk_bf16_f32 v{KO+4*rr+p}, v{AC+2*p}, v{AC+2*p+1}')
        g.ds(f'ds_write_b128 v54, v[{KO+4*rr}:{KO+4*rr+3}] offset:{144*(1-rr)}')
    g.barrier()
    for u in range(2):
        for hh in range(2):
            g.ds(f'ds_read_b64_tr_b16 v[{KO+4*u+2*hh}:{KO+4*u+2*hh+1}], v50 offset:{(32*u+4*hh)*144}', f'kt{u}')
    for u in range(2):
        g.lwait(f'kt{u}')
        g.ds(f'ds_write_b128 v51, v[{KO+4*u}:{KO+4*u+3}] offset:{64*u}', 'k2w')
    g.lwait('k2w')
    for u in range(2):
        g.ds(f'ds_read_b128 v[{KO+4*u}:{KO+4*u+3}], v52 offset:{8*144*u}', f'k2r{u}')
    a('s_add_u32 s13, s80, 32768')
    for u in range(2):
        g.lwait(f'k2r{u}')
        g.vmem(f'buffer_store_dwordx4 v[{KO+4*u}:{KO+4*u+3}], v53, {WSR}, {"s13" if u else "s80"} offen sc1', 'kst')
    stamp(g, 2)
    nonce_get(g, 'PN', 252)
    publish(g, 'kst', [])
    stamp(g, 24)
    a(f's_add_u32 s13, s74, {8*3584}')
    g.vmem(f'buffer_load_dwordx4 v[{WR}:{WR+3}], v56, s[92:95], s74 offen', 'wr')
    g.vmem(f'buffer_load_dwordx4 v[{WR+4}:{WR+7}], v56, s[92:95], s13 offen', 'wr')
    a(f's_add_u32 s13, s76, {8*896}')
    g.vmem(f'buffer_load_dwordx4 v[{WR+8}:{WR+11}], v57, s[96:99], s76 offen', 'wr')
    g.vmem(f'buffer_load_dwordx4 v[{WR+12}:{WR+15}], v57, s[96:99], s13 offen', 'wr')
    g.vwait('h1')
    a(f'v_add_u32 v{F_FB}, s12, v{F_T16}')
    for i in range(4): a(f'v_mov_b32 v{236+i}, 0')
    a(f'v_lshlrev_b32 v{F_VF}, 2, v3')
    a('s_mov_b32 s14, 0x1cb88541')
    a(f'v_lshrrev_b32 v{F_VF}, v{F_VF}, s14')
    a(f'v_and_b32 v{F_VF}, 15, v{F_VF}')
    a('v_mul_u32_u24 v252, 272, v3')
    a(f'v_add_u32 v{F_VF}, v{F_VF}, v252')
    a(f'v_lshl_add_u32 v{F_VF}, v{F_VF}, 4, s12')
    a('s_cmp_eq_u32 s9, 0')
    a('s_cbranch_scc0 CV_Z1')
    a('s_mov_b64 exec, 0xff')
    a(f'ds_write_b128 v{F_VF}, v[236:239]')
    a('s_mov_b64 exec, -1')
    a('s_branch CV_Z2')
    g.label('CV_Z1')
    a('v_add_u32 v252, s12, v2')
    a(f'ds_write_b128 v252, v[236:239] offset:{K2_G+4096}')
    g.label('CV_Z2')
    g.lg.issue()
    a('v_bfe_u32 v252, v1, 3, 1')
    a(f'v_add_u32 v252, v252, v{F_G4}')
    a(f'v_lshl_add_u32 v{F_VF}, v252, 4, v{F_VF}')
    a('s_lshl_b32 s14, s9, 8')
    a(f'v_add_u32 v{F_VF}, s14, v{F_VF}')
    a(f'v_lshlrev_b32 v{F_VG}, 5, v{F_N15}')
    a(f'v_lshlrev_b32 v252, 4, v{F_G4}')
    a(f'v_sub_u32 v{F_VG}, v252, v{F_VG}')
    a('s_add_u32 s14, s14, s12')
    a(f's_add_u32 s14, s14, {K2_G+480}')
    a(f'v_add_u32 v{F_VG}, s14, v{F_VG}')
    for p in range(2):
        d = HH + 8 * p
        t = FT if p == 0 else MK
        for k in range(6): a(f'v_mov_b32 v{t+k}, v{d+1+k}')
        for k in range(6): a(f'v_alignbyte_b32 v{t+6+k}, v{d+k+1}, v{d+k}, 2')
        for k in range(6): a(f'v_alignbyte_b32 v{t+12+k}, v{d+k+2}, v{d+k+1}, 2')
        src = {1: t + 6, 2: t, 3: t + 12, 4: d + 2, 5: t + 8, 6: t + 2, 7: t + 14, 8: d + 4}
        for r in range(1, 9):
            off = ((r - 1) * 272 + FC[r - 1] + 1) * 16 + 1024 * p
            g.ds(f'ds_write_b128 v{F_FB}, v[{src[r]}:{src[r]+3}] offset:{off}')
    stamp(g, 3)
    a('v_min_u32 v255, 15, v1')
    a('v_lshlrev_b32 v255, 3, v255')
    setup = ['s_lshr_b32 s82, s10, 4', 's_lshl_b32 s82, s82, 8', 's_lshl_b32 s14, s9, 7', 's_add_u32 s82, s82, s14',
             f's_add_u32 s82, s82, {WS_KF}']
    poll_issue(g, 'v255', setup, KO, 'kf')
    wg_map(a)
    a('s_lshl_b32 s71, s4, 3')
    a('s_add_u32 s71, s71, s3')
    a('s_lshl_b32 s73, s71, 6')
    a(f's_add_u32 s73, s73, {WS_SQ}')
    a('s_mul_i32 s71, s71, 7168')
    a('v_lshlrev_b32 v76, 3, v3')
    a('s_lshl_b32 s56, s5, 3')
    a('s_lshl_b32 s13, s3, 1')
    a('s_add_u32 s56, s56, s13')
    a(f's_mul_i32 s56, s56, {28*1024}')
    a(f's_add_u32 s56, s56, {WS_W1F}')
    a('s_mul_i32 s57, s5, 224')
    a('s_mul_i32 s13, s3, 28')
    a('s_add_u32 s57, s57, s13')
    a('s_lshl_b32 s57, s57, 10')
    a(f's_add_u32 s57, s57, {WS_W2F}')
    a('s_lshl_b32 s59, s3, 11')
    def w1ld(k, x):
        def f():
            r = w1_reg(x, k)
            a(f's_add_u32 s13, s56, {(28*x + (k//4)*4)*1024}')
            g.vmem(f'buffer_load_dwordx4 a[{r}:{r+3}], v2, {WSR}, s13 offen offset:{1024*(k%4)} sc1', f'w1_{k}')
        return f
    def w2ld(k, x):
        def f():
            kd, r = w2_loc(k, x)
            if kd == 'l':
                a(f's_add_u32 m0, s59, {(k-16)*8192 + x*1024}')
                a(f's_add_u32 s13, s57, {(112*x + k)*1024}')
                g.vmem(f'buffer_load_dwordx4 v2, {WSR}, s13 offen sc1 lds', 'w2')
            else:
                a(f's_add_u32 s13, s57, {(112*x + (k//4)*4)*1024}')
                g.vmem(f'buffer_load_dwordx4 {kd}[{r}:{r+3}], v2, {WSR}, s13 offen offset:{1024*(k%4)} sc1', 'w2')
        return f
    def xld(s, i):
        def f():
            a(f's_add_u32 s13, s71, {WS_XQ + s*4*7168 + 1024*i}')
            g.vmem(f'buffer_load_dwordx4 v[{XR(s)+4*i}:{XR(s)+4*i+3}], v2, {WSR}, s13 offen sc1', f'x{s}')
        return f
    for k in range(28):
        for x in range(2): g.bg.append(w1ld(k, x))
    poll_check(g, 'KFP', 'v255', KO, 'kf')
    stamp(g, 4)
    g.vmem(f'buffer_load_dwordx4 v[{KO}:{KO+3}], v{F_T16}, {WSR}, s11 offen sc1', 'kv0')
    g.vmem(f'buffer_load_dwordx4 v[{KO+4}:{KO+7}], v{F_T16}, {WSR}, s11 offen offset:1024 sc1', 'kv1')
    g.vwait('wr')
    for i in range(4):
        g.ds(f'ds_write_b128 v68, v[{WR+4*i}:{WR+4*i+3}] offset:{4096+1024*i}', 'ww')
    g.lwait('ww')
    for x in range(2):
        for hh in range(2):
            g.ds(f'ds_read_b64_tr_b16 v[{WR+4*x+2*hh}:{WR+4*x+2*hh+1}], v{64+x} offset:{4096+512*hh}', 'wt')
            g.ds(f'ds_read_b64_tr_b16 v[{WR+8+4*x+2*hh}:{WR+8+4*x+2*hh+1}], v{66+x} offset:{4096+2048+1024*hh}', 'wt')
    a('s_cmp_ge_u32 s84, 784')
    a('s_cselect_b32 s75, 0x7ff00000, s75')
    a('s_cselect_b32 s77, 0x7ff00000, s77')
    a(f's_add_u32 s13, s75, {28*1024}')
    a(f's_add_u32 s14, s77, {112*1024}')
    g.lwait('wt')
    g.vmem(f'buffer_store_dwordx4 v[{WR}:{WR+3}], v2, {WSR}, s75 offen sc1', 'wst')
    g.vmem(f'buffer_store_dwordx4 v[{WR+4}:{WR+7}], v2, {WSR}, s13 offen sc1', 'wst')
    g.vmem(f'buffer_store_dwordx4 v[{WR+8}:{WR+11}], v2, {WSR}, s77 offen sc1', 'wst')
    g.vmem(f'buffer_store_dwordx4 v[{WR+12}:{WR+15}], v2, {WSR}, s14 offen sc1', 'wst')
    a('s_lshl_b32 s14, s84, 11')
    g.vmem('buffer_load_dwordx4 v[16:19], v2, s[48:51], s14 offen')
    g.vmem('buffer_load_dwordx4 v[20:23], v2, s[48:51], s14 offen offset:1024')
    g.vwait('kv0')
    g.ds(f'ds_write_b128 v{F_FB}, v[{KO}:{KO+3}] offset:{K2_G}')
    g.vwait('kv1')
    g.ds(f'ds_write_b128 v{F_FB}, v[{KO+4}:{KO+7}] offset:{K2_G+1024}')
    a('v_mov_b32 v254, v70')
    a('v_mov_b32 v253, v69')
    a('v_mov_b32 v79, v68')
    a('v_min_u32 v252, 55, v1')
    a('v_lshlrev_b32 v252, 4, v252')
    g.barrier()
    stamp(g, 5)
    g.fixq = deque()
    g.w2pt = False
    a(f's_add_u32 s72, s71, {4*7168}')
    def qraw(s, i):
        def f():
            r = XR(s) + 4 * i
            g.vmem(f'buffer_load_dwordx4 v[{r}:{r+3}], v254, s[48:51], s{71+s} offen offset:{128*i}', f'q{s}')
        return f
    held = g.bg
    nop = lambda: None
    def pfpub():
        g.vwait('wst')
        a('s_barrier')
        a('s_lshl_b32 s81, s2, 3')
        a(f's_add_u32 s81, s81, {WS_PF}')
        a('s_cmp_lg_u32 s3, 0')
        publish(g, 'none', [], only='s_cselect_b32 s81, 0x7ff00000, s81')
    def pfissue(): poll_issue(g, 'v252', [f's_mov_b32 s82, {WS_PF}'], 68, 'pfl', wide=2)
    def pfcheck():
        poll_check(g, 'PFP', 'v252', 68, 'pfl', wide=2)
        g.bg.extend([qraw(1, i) for i in range(2, 7)])
        g.bg.extend(held)
        g.pump(8)
    g.bg = deque([nop] * 4 + [qraw(0, i) for i in range(7)] + [qraw(1, i) for i in range(2)] + [nop] * 14 + [pfpub])
    conv(g)
    stamp(g, 11)
    assert not g.bg
    a('v_add_u32 v136, s59, v2')
    a('v_mov_b32 v137, v136')
    setup_gemm(g)
    g.vwait('yst')
    g.barrier()
    a('s_mul_i32 s81, s9, 224')
    a('s_add_u32 s81, s81, s2')
    a('s_lshl_b32 s81, s81, 3')
    a(f's_add_u32 s81, s81, {WS_CF}')
    a('s_cmp_lg_u32 s8, 0')
    publish(g, 'yst', [], only='s_cselect_b32 s81, 0x7ff00000, s81')
    stamp(g, 7)
    pfissue()
    g.vwait('q0')
    for i in range(7):
        r = XR(0) + 4 * i
        g.ds(f'ds_write_b128 v79, v[{r}:{r+3}] offset:{1024*i}', 'qw')
    g.lwait('qw')
    for i in range(7):
        r = XR(0) + 4 * i
        g.ds(f'ds_read_b128 v[{r}:{r+3}], v253 offset:{1024*i}', 'qr')
    g.lwait('qr')
    pfcheck()
    stamp(g, 25)
    g.pump(10)
    for s in range(0):
        g.vwait(f'q{s}')
        for i in range(7):
            r = XR(s) + 4 * i
            g.ds(f'ds_write_b128 v79, v[{r}:{r+3}] offset:{1024*i}', 'qw')
        g.lwait('qw')
        for i in range(7):
            r = XR(s) + 4 * i
            g.ds(f'ds_read_b128 v[{r}:{r+3}], v253 offset:{1024*i}', 'qr')
        g.lwait('qr')
    cf_setup = ['s_lshr_b32 s82, s4, 4', 's_mul_i32 s82, s82, 1792', f's_add_u32 s82, s82, {WS_CF}']
    r = Rec(g); ln1_stats(r, 0, 80)
    for i, (_, f) in enumerate(r.items):
        f()
        if i % 16 == 15: g.pump(1)
    poll_issue(g, 'v47', cf_setup, 116, 'cf', wide=2)
    g.vwait('q1')
    for i in range(7):
        r = XR(1) + 4 * i
        g.ds(f'ds_write_b128 v79, v[{r}:{r+3}] offset:{1024*i}', 'qw')
    g.lwait('qw')
    for i in range(7):
        r = XR(1) + 4 * i
        g.ds(f'ds_read_b128 v[{r}:{r+3}], v253 offset:{1024*i}', 'qr')
    g.lwait('qr')
    ln1_stats(g, 1, 80)
    for k in list(range(12)) + [24, 25, 26, 27]:
        for x in range(2): g.bg.append(w2ld(k, x))
    stamp(g, 8)
    poll_check(g, 'CFP', 'v47', 116, 'cf', wide=2)
    stamp(g, 9)
    a('s_mul_i32 s70, s4, 57344')
    a('s_mul_i32 s72, s3, 14336')
    a('s_add_u32 s70, s70, s72')
    a(f's_add_u32 s70, s70, {WS_YB}')
    YL = [80 + 4 * i for i in range(12)] + [132, 140]
    for i in range(14):
        r = YL[i]
        g.vmem(f'buffer_load_dwordx4 v[{r}:{r+3}], v2, {WSR}, s70 offen offset:{1024*(i%4)} sc1', f'yl{i}')
        if i % 4 == 3: a('s_add_u32 s70, s70, 4096')
    g.pump(12)
    for i in range(14):
        r = YL[i]
        g.vwait(f'yl{i}')
        g.ds(f'ds_write_b128 {"v78" if (i>>1)&1 else "v77"}, v[{r}:{r+3}] offset:{128*i}')
    g.barrier()
    stamp(g, 10)
    y_tr(g, 0)
    for i in range(4): a(f'v_mov_b32 v{132+i}, s62')
    r = Rec(g); p3(r, 0, 0); g.add(r)
    for k in range(28):
        g.vwait(f'w1_{k}')
        for ft2 in range(2):
            o = 224 + 16 * ft2
            c = f'v[{o}:{o+15}]' if k else '0'
            rr = w1_reg(ft2, k)
            a(f'v_mfma_f32_32x32x16_bf16 v[{o}:{o+15}], a[{rr}:{rr+3}], v[132:135], {c}')
            g.fill(99, 7)
        g.pump(1)
    g.flush()
    a('s_mov_b32 exec_lo, 1')
    a('s_mov_b32 exec_hi, 1')
    for q in range(8):
        g.ds(f'ds_write_b128 v{V_CS}, v[{224+4*q}:{227+4*q}] offset:{(q//4)*128 + (q%4)*16}')
    a('s_mov_b64 exec, -1')
    for layer in range(2):
        sb = 12 + 16 * layer
        g.barrier()
        stamp(g, sb)
        r = Rec(g)
        if layer == 0:
            y_tr(r, 1)
            r.barrier()
            for k in range(12, 24):
                for x in range(2): g.bg.append(w2ld(k, x))
        else:
            r.at(2); poll_issue(r, f'v{V_FL}', poll_op(3), 76, 'pf')
            r.at(22)
            poll_check(r, 'PX1', f'v{V_FL}', 76, 'pf')
            st_loads(r, 1)
            x_loads(r, 1)
        g.add(r)
        m1f(g, layer, 0, bgp=1 if layer == 0 else 0, bg_from=8)
        stamp(g, sb + 1)
        if layer == 1:
            ln1_combine(g, 1)
            g.vwait('x1')
        r = Rec(g); p3(r, layer, 1, plain=False)
        for i, (_, f) in enumerate(r.items):
            f()
            if i == 150: publish(g, 'hst0', pub_op(4 * layer))
            if layer == 0 and i > 150 and i % 16 == 0: g.pump(1)
        g.barrier()
        stamp(g, sb + 2)
        r = Rec(g)
        r.at(20); poll_issue(r, f'v{V_FL}', poll_op(4 * layer), 126, 'pf')
        g.add(r)
        m1f(g, layer, 1, bgp=1 if layer == 0 else 0)
        stamp(g, sb + 3)
        g.pump(100)
        poll_check(g, f'PH{layer}0', f'v{V_FL}', 126, 'pf')
        stamp(g, sb + 4)
        r = Rec(g)
        publish(r, 'hst1', pub_op(4 * layer + 1))
        r.at(36); poll_issue(r, f'v{V_FL}', poll_op(4 * layer + 1), 76, 'pf')
        g.add(r)
        m2b(g, layer, 0, 5, 0)
        stamp(g, sb + 5)
        g.flush()
        e2_head(g, layer, 0)
        poll_check(g, f'PH{layer}1', f'v{V_FL}', 76, 'pf')
        if layer == 1:
            for k in range(NSL): h_load(g, layer, 1, k)
        e2_tail(g, layer, 0)
        stamp(g, sb + 6)
        r = Rec(g)
        if layer == 0:
            publish(r, 'xst0', pub_op(2))
            r.at(36); poll_issue(r, f'v{V_FL}', poll_op(2), 44, 'pf')
            r.at(52); poll_check(r, 'PX0', f'v{V_FL}', 44, 'pf')
            x_loads(r, 0)
        g.add(r)
        m2b(g, layer, 1, 5, NSL if layer == 1 else 0)
        stamp(g, sb + 7)
        g.flush()
        e2_head(g, layer, 1)
        if layer == 0:
            st_loads(g, 0)
            y_loads(g, 0)
        e2_tail(g, layer, 1)
        stamp(g, sb + 8)
        if layer == 0:
            ln1_combine(g, 0)
            g.vwait('y0')
            stamp(g, sb + 9)
            def yb(e, i):
                if i < 4: return
                for ii in (range(5) if i == 4 else [i]):
                    def f(g, ii=ii):
                        g.a(f's_add_u32 s72, s71, {WS_YX + 4*7168 + 1024*ii}')
                        g.vmem(f'buffer_load_dwordx4 v[{YR+4*ii}:{YR+4*ii+3}], v2, {WSR}, s72 offen sc1', 'y1')
                    e.group(f)
            r = Rec(g); p3(r, 1, 0, plain=False, after_group=yb)
            for i, (_, f) in enumerate(r.items):
                f()
                if i == 125: publish(g, 'xst1', pub_op(3))
            stamp(g, sb + 10)
    a('s_waitcnt vmcnt(0)')
    a('s_cmp_lg_u32 s3, 0')
    a('s_cbranch_scc1 MAIN_END')
    a('s_cmp_gt_u32 s2, 6')
    a('s_cbranch_scc1 MAIN_END')
    a('s_memrealtime s[98:99]')
    a('s_memtime s[100:101]')
    a('v_readlane_b32 s70, v7, 0')
    a('v_readlane_b32 s71, v7, 1')
    a('s_waitcnt lgkmcnt(0)')
    a('s_sub_u32 s98, s98, s70')
    a('s_sub_u32 s100, s100, s71')
    a('v_mov_b32 v16, s98')
    a('v_mov_b32 v17, s100')
    a('s_lshl_b32 s70, s2, 3')
    a('s_add_u32 s70, s70, 8')
    a('s_mov_b64 exec, 1')
    a('buffer_store_dwordx2 v[16:17], v0, s[88:91], s70 offen')
    g.label('MAIN_END')
    a('s_endpgm')


def main(out):
    asm = Asm()
    main_kernel(asm)
    hdr = open(f'cdna_kernels/{NAME}.s.ref').read().split('; Override launch')[0]
    hdr += f"""; @launch grid=(224,1,1) block=(256,1,1) lds={LDS_BYTES}
.amdgcn_target "amdgcn-amd-amdhsa--gfx950"
.text
"""
    tail = '.section .rodata,"a"\n' + kernel_desc(KNAME, 512, sgpr=102, accum=256)
    open(out, 'w').write(hdr + asm.text() + tail)


if __name__ == '__main__':
    gen4.PROF = '--prof' in sys.argv
    main(sys.argv[1] if len(sys.argv) > 1 and not sys.argv[1].startswith('--') else f'cdna_kernels/{NAME}.s')
```

```python
import sys
import gen4
from gen4 import *

CODEPF = '--nopf' not in sys.argv
WS_PF = 0x803000
WS_W1F = 0xA00000
WS_W2F = 0xC00000
WS_XQ = 0xE00000
WS_SQ = 0x980000
PRE_SCR = 9216
PRE_LDS = PRE_SCR + 4 * 8192


def nonce_publish(g, tag):
    a = g.a
    a('s_or_b32 s8, s2, s3')
    a('s_cmp_lg_u32 s8, 0')
    a(f's_cbranch_scc1 {tag}_SKIP')
    a('s_memrealtime s[8:9]')
    a('s_waitcnt lgkmcnt(0)')
    a('s_or_b32 s8, s8, 1')
    a('v_mov_b32 v4, s8')
    a('v_mov_b32 v5, 0')
    a('s_mov_b64 exec, 1')
    a('buffer_atomic_cmpswap v[4:5], v0, s[88:91], 0 offen sc1')
    a('s_mov_b64 exec, -1')
    g.label(f'{tag}_SKIP')


def nonce_get(g, tag, t):
    a = g.a
    g.vwait('nonce')
    g.label(f'{tag}_P')
    a(f'v_readfirstlane_b32 s66, v{t}')
    a('s_cmp_lg_u32 s66, 0')
    a(f's_cbranch_scc1 {tag}_D')
    a(f's_add_u32 {SPIN}, {SPIN}, 1')
    a(f's_cmp_gt_u32 {SPIN}, 0x40000')
    a(f's_cbranch_scc1 {tag}_D')
    a(f'buffer_load_dword v{t}, v0, s[88:91], 0 offen sc1')
    a('s_waitcnt vmcnt(0)')
    a(f's_branch {tag}_P')
    g.label(f'{tag}_D')
    a('s_not_b32 s67, s66')
    a('v_mov_b32 v4, s66')
    a('v_mov_b32 v5, s67')


def consts(a):
    a('s_mov_b32 s60, 0x00003f80')
    a('s_mov_b32 s61, 0x3f800000')
    a('s_mov_b32 s62, 0x3f803f80')
    a('s_mov_b32 s63, 0x3b124925')
    a('s_mov_b32 s64, 0xffff0000')
    a('s_mov_b32 s65, 0xffff')
    a(f's_mov_b32 {SPIN}, 0')


def prof_begin(g):
    if not gen4.PROF: return
    a = g.a
    a('s_memrealtime s[100:101]')
    a('v_mov_b32 v7, 0')
    a('s_waitcnt lgkmcnt(0)')
    a('v_writelane_b32 v7, s100, 62')
    stamp(g, 0)


def prof_end(g, region):
    if not gen4.PROF: return
    a = g.a
    a('s_waitcnt vmcnt(0)')
    stamp(g, 40)
    a('s_memrealtime s[100:101]')
    a('s_waitcnt lgkmcnt(0)')
    a('v_writelane_b32 v7, s100, 63')
    a('s_lshl_b32 s70, s2, 2')
    a('s_add_u32 s70, s70, s3')
    a('s_lshl_b32 s70, s70, 8')
    a(f's_add_u32 s70, s70, {WS_PROF + region}')
    a('v_lshlrev_b32 v16, 2, v1')
    a(f'buffer_store_dword v7, v16, {WSR}, s70 offen')


def m1_jit(g, nfill):
    s = 0
    ACC = XR(s)
    def rd(k):
        sl = BR + 4 * (k % 2)
        g.ds(f'ds_read_b128 v[{sl}:{sl+3}], v{V_B} offset:{1024*k}', f'b{k}')
    rd(0)
    g.ds(f'ds_read_b128 v[8:11], v{V_RES}')
    g.ds(f'ds_read_b64 v[{V_ST}:{V_ST+1}], v{V_STR}')
    for i in range(4): g.a(f'v_mov_b32 v{BR+8+i}, s62')
    for k in range(28):
        if k + 1 < 28: rd(k + 1)
        g.wait2(f'w1_{k}', f'b{k}')
        sl = BR + 4 * (k % 2)
        for ft2 in range(2):
            r = w1_reg(ft2, k)
            for o, bb in ((ACC + 16 * ft2, sl), (224 + 16 * ft2, BR + 8)):
                c = f'v[{o}:{o+15}]' if k else '0'
                g.a(f'v_mfma_f32_32x32x16_bf16 v[{o}:{o+15}], a[{r}:{r+3}], v[{bb}:{bb+3}], {c}')
                g.fill(4 * k, nfill)
            g.pump(1)


def m1f(g, layer, s, bgp=0, bg_from=0):
    ACC = XR(s)
    def rd(n):
        sl = BR + 4 * (n % 3)
        g.ds(f'ds_read_b128 v[{sl}:{sl+3}], v{V_B} offset:{s*R_SZ + 1024*(n%28)}', f'b{n}')
    rd(0); rd(1)
    RES = 8 + 4 * s
    g.ds(f'ds_read_b128 v[{RES}:{RES+3}], v{V_RES} offset:{s*R_SZ}')
    g.ds(f'ds_read_b64 v[{V_ST+2*s}:{V_ST+2*s+1}], v{V_STR} offset:{s*256}')
    for n in range(56):
        ft2, k = divmod(n, 28)
        if n == 29:
            r = Rec(g); e1(r, layer, s, 108, halves=(0,)); g.add(r)
        if n + 2 < 56: rd(n + 2)
        g.lwait(f'b{n}')
        sl = BR + 4 * (n % 3)
        o = ACC + 16 * ft2
        c = f'v[{o}:{o+15}]' if k else '0'
        r = w1_reg(ft2, k)
        g.a(f'v_mfma_f32_32x32x16_bf16 v[{o}:{o+15}], a[{r}:{r+3}], v[{sl}:{sl+3}], {c}')
        g.fill(n, 4)
        if n >= bg_from and n % 2 == 0: g.pump(bgp)
    g.flush()
    e1(g, layer, s, 108, plain=False, halves=(1,))


def m2b(g, layer, s, nfill, first_issued):
    ACC = XR(s)
    for k in range(first_issued, NSL): h_load(g, layer, s, k)
    def rdw(k):
        if k == 24: g.a(f'v_add_u32 v{V_C0}, 0x10000, v{V_C0}')
        for dt in range(2):
            r = WT + 8 * (k % 2) + 4 * dt
            g.ds(f'ds_read_b128 v[{r}:{r+3}], v{V_C0} offset:{8192*((k-16)%8) + 1024*dt}', f'w{k}')
    for k in range(28):
        if k in (14, 15): rdw(k + 2)
        g.wait2(f'h{s}_{k}', f'w{k}' if k >= 16 else None)
        sl = h_slot(s, k)
        for dt in range(2):
            o = ACC + 16 * dt
            c = f'v[{o}:{o+15}]' if k else '0'
            kind, r = w2_loc(k, dt)
            if kind == 'l': kind, r = 'v', WT + 8 * (k % 2) + 4 * dt
            g.a(f'v_mfma_f32_32x32x16_bf16 v[{o}:{o+15}], {kind}[{r}:{r+3}], v[{sl}:{sl+3}], {c}')
            g.fill(2 * k + dt, nfill)
        if k + NSL < 28: h_load(g, layer, s, k + NSL)
        if 16 <= k and k + 2 < 28: rdw(k + 2)
    g.a(f'v_subrev_u32 v{V_C0}, 0x10000, v{V_C0}')


def main_kernel(asm):
    g = G(asm)
    a = g.a
    asm(kernel_header(KNAME))
    prof_begin(g)
    load_args(asm)
    a('s_cmp_ge_u32 s2, 224')
    a('s_cbranch_scc1 MAIN_END')
    if CODEPF:
        a('s_getpc_b64 s[86:87]')
        g.label('PPF_PC')
        a('v_lshlrev_b32 v71, 7, v0')
        a('global_load_dword v72, v71, s[86:87]')
        a('v_add_u32 v71, 0x8000, v71')
        a('v_cmp_gt_u32 vcc, MAIN_END-PPF_PC, v71')
        a('s_and_saveexec_b64 s[78:79], vcc')
        a('s_cbranch_execz PPF_S')
        a('global_load_dword v72, v71, s[86:87]')
        g.label('PPF_S')
        a('s_mov_b64 exec, -1')
    MK, AC, PR, KO, TAP, KR, VR, HH, FT = 80, 112, 120, 128, 136, 152, 172, 180, 196
    a('v_and_b32 v1, 63, v0')
    a('v_lshrrev_b32 v2, 6, v0')
    a('v_readfirstlane_b32 s3, v2')
    a(f's_mul_hi_u32 s6, s2, {magic(7)}')
    a('s_mul_i32 s7, s6, 7')
    a('s_sub_u32 s7, s2, s7')
    a('v_and_b32 v252, 7, v0')
    a('v_lshrrev_b32 v253, 3, v0')
    a('s_lshl_b32 s8, s6, 6')
    a('v_lshl_add_u32 v254, v253, 1, s8')
    a('s_movk_i32 s8, 896')
    a('v_mul_lo_u32 v254, v254, s8')
    a('s_lshl_b32 s8, s7, 7')
    a('v_lshl_add_u32 v255, v252, 4, s8')
    a('v_add_u32 v254, v254, v255')
    a('v_add_u32 v44, -896, v254')
    a('v_add_u32 v45, -1792, v254')
    a('v_add_u32 v46, -2688, v254')
    a('v_lshlrev_b32 v255, 2, v255')
    a('v_lshlrev_b32 v2, 4, v1')
    a('s_waitcnt lgkmcnt(0)')
    srd(a, 88, P_SHK, 0, 448 * 8)
    srd(a, 56, P_K, 0, XBYTES)
    srd(a, 84, P_V, 0, XBYTES)
    for i in range(4):
        g.vmem(f'buffer_load_dwordx4 v[{TAP+4*i}:{TAP+4*i+3}], v255, s[88:91], 0 offen offset:{16*i}', 'tap')
    g.vmem(f'buffer_load_dwordx4 v[{KR}:{KR+3}], v46, s[56:59], 0 offen', 'k')
    g.vmem(f'buffer_load_dwordx4 v[{KR+4}:{KR+7}], v45, s[56:59], 0 offen', 'k')
    g.vmem(f'buffer_load_dwordx4 v[{KR+8}:{KR+11}], v44, s[56:59], 0 offen', 'k')
    g.vmem(f'buffer_load_dwordx4 v[{KR+12}:{KR+15}], v254, s[56:59], 0 offen', 'k')
    g.vmem(f'buffer_load_dwordx4 v[{KR+16}:{KR+19}], v254, s[56:59], 0 offen offset:896', 'k')
    g.vmem(f'buffer_load_dwordx4 v[{VR}:{VR+3}], v254, s[84:87], 0 offen', 'v')
    g.vmem(f'buffer_load_dwordx4 v[{VR+4}:{VR+7}], v254, s[84:87], 0 offen offset:896', 'v')
    srd(a, 88, P_DBG, 0, 256)
    srd(a, 40, P_WS, 0, WS_SIZE + (0x100000 if gen4.PROF else 0))
    a('v_mov_b32 v0, 0')
    nonce_publish(g, 'PN')
    srd(a, 52, P_OUT, 0, XBYTES)
    a('v_lshlrev_b32 v73, 19, v1')
    g.vmem(f'buffer_load_dword v74, v73, {WSR}, 0 offen')
    g.vmem('buffer_load_dword v75, v73, s[52:55], 0 offen')
    a('s_lshr_b32 s8, s3, 1')
    a('s_and_b32 s9, s3, 1')
    a('s_lshl_b32 s10, s2, 1')
    a('s_add_u32 s10, s10, s8')
    a('s_lshl_b32 s11, s10, 12')
    a(f's_mul_i32 s12, s8, {K2_CB}')
    a('s_lshl_b32 s13, s9, 11')
    a(f'v_add_u32 v{F_T16}, s13, v2')
    a(f'v_add_u32 v77, -16, v{F_T16}')
    srd(a, 44, P_SSMK, 's11', 4096)
    a('s_lshl_b32 s14, s2, 2')
    a('s_load_dword s15, s[26:27], s14')
    a('s_lshl_b32 s68, s7, 2')
    a('s_add_u32 s68, s68, s3')
    a('s_sub_u32 s69, 31, s6')
    a('s_lshl_b32 s80, s68, 16')
    a('s_lshl_b32 s70, s69, 7')
    a('s_add_u32 s80, s80, s70')
    a('s_lshl_b32 s81, s68, 5')
    a('s_add_u32 s81, s81, s69')
    a('s_lshl_b32 s81, s81, 3')
    a(f's_add_u32 s81, s81, {WS_KF}')
    a(f'v_lshrrev_b32 v{F_G4}, 4, v1')
    a('v_bfe_u32 v48, v1, 2, 2')
    a('v_and_b32 v49, 3, v1')
    a(f'v_lshl_add_u32 v50, v{F_G4}, 3, v48')
    a('v_mul_u32_u24 v50, 144, v50')
    a('v_lshl_add_u32 v50, v49, 3, v50')
    a('s_lshl_b32 s13, s3, 5')
    a(f's_add_u32 s13, s13, {K2_SCR}')
    a('v_add_u32 v50, s13, v50')
    a(f'v_and_b32 v{F_N15}, 15, v1')
    a('s_lshl_b32 s58, s3, 13')
    a(f's_add_u32 s58, s58, {L_R0}')
    a(f'v_mul_u32_u24 v51, 144, v{F_N15}')
    a(f'v_lshl_add_u32 v51, v{F_G4}, 4, v51')
    a('v_add_u32 v51, s58, v51')
    a('v_and_b32 v3, 7, v1')
    a('v_lshrrev_b32 v6, 3, v1')
    a('v_mul_u32_u24 v52, 144, v6')
    a('v_lshl_add_u32 v52, v3, 4, v52')
    a('v_add_u32 v52, s58, v52')
    a('v_lshlrev_b32 v53, 12, v6')
    a('v_lshl_add_u32 v53, v3, 4, v53')
    a('v_lshlrev_b32 v54, 1, v253')
    a('v_sub_u32 v54, 62, v54')
    a('v_mul_u32_u24 v54, 144, v54')
    a('v_lshl_add_u32 v54, v252, 4, v54')
    a(f'v_add_u32 v54, {K2_SCR}, v54')
    consts(a)
    srd(a, 92, P_W1, 0, WBYTES)
    srd(a, 96, P_W2, 0, WBYTES)
    srd(a, 48, P_Q, 0, XBYTES)
    a('s_lshl_b32 s84, s2, 2')
    a('s_add_u32 s84, s84, s3')
    a('v_bfe_u32 v55, v1, 4, 1')
    a('v_lshlrev_b32 v55, 2, v55')
    a('v_xor_b32 v55, v55, v3')
    a('v_lshlrev_b32 v55, 4, v55')
    a('s_movk_i32 s13, 3584')
    a('v_mad_u32_u24 v56, v6, s13, v55')
    a('s_movk_i32 s13, 896')
    a('v_mad_u32_u24 v57, v6, s13, v55')
    a(f's_mul_hi_u32 s72, s84, {magic(28)}')
    a('s_mul_i32 s73, s72, 28')
    a('s_sub_u32 s73, s84, s73')
    a(f's_mul_i32 s74, s72, {16*3584}')
    a('s_lshl_b32 s13, s73, 7')
    a('s_add_u32 s74, s74, s13')
    a('s_mul_i32 s75, s73, 56')
    a('s_add_u32 s75, s75, s72')
    a('s_lshl_b32 s75, s75, 10')
    a(f's_add_u32 s75, s75, {WS_W1F}')
    a(f's_mul_hi_u32 s72, s84, {magic(7)}')
    a('s_mul_i32 s73, s72, 7')
    a('s_sub_u32 s73, s84, s73')
    a(f's_mul_i32 s76, s72, {16*896}')
    a('s_lshl_b32 s13, s73, 7')
    a('s_add_u32 s76, s76, s13')
    a('s_mul_i32 s77, s73, 224')
    a('s_add_u32 s77, s77, s72')
    a('s_lshl_b32 s77, s77, 10')
    a(f's_add_u32 s77, s77, {WS_W2F}')
    a(f'v_and_b32 v58, 1, v{F_G4}')
    a('v_lshlrev_b32 v58, 5, v58')
    a('v_lshl_add_u32 v58, v49, 3, v58')
    a('v_lshl_add_u32 v58, v48, 7, v58')
    a('v_lshrrev_b32 v59, 1, v48')
    a('v_lshlrev_b32 v59, 6, v59')
    a('v_xor_b32 v60, 64, v59')
    a(f'v_lshrrev_b32 v61, 1, v{F_G4}')
    a('v_lshl_add_u32 v62, v61, 10, v58')
    a('v_lshl_add_u32 v63, v61, 9, v58')
    a('v_add3_u32 v64, v62, v59, s58')
    a('v_add3_u32 v65, v62, v60, s58')
    a('v_add3_u32 v66, v63, v59, s58')
    a('v_add3_u32 v67, v63, v60, s58')
    a('v_add_u32 v68, s58, v2')
    a('v_xor_b32 v69, v3, v6')
    a('v_lshlrev_b32 v70, 4, v69')
    a('s_movk_i32 s13, 896')
    a('v_mad_u32_u24 v70, v6, s13, v70')
    a('v_lshl_add_u32 v69, v3, 3, v69')
    a('v_lshl_add_u32 v69, v69, 4, s58')
    WR = 72 if False else 216
    g.vwait('tap')
    for e in range(8):
        A, B = TAP + 2 * e, TAP + 2 * e + 1
        if e % 2 == 0:
            a(f'v_and_b32 v{MK+e}, s65, v{A}')
            a(f'v_lshrrev_b32 v{MK+8+e}, 16, v{A}')
            a(f'v_and_b32 v{MK+16+e}, s65, v{B}')
            a(f'v_lshrrev_b32 v{MK+24+e}, 16, v{B}')
        else:
            a(f'v_lshlrev_b32 v{MK+e}, 16, v{A}')
            a(f'v_and_b32 v{MK+8+e}, s64, v{A}')
            a(f'v_lshlrev_b32 v{MK+16+e}, 16, v{B}')
            a(f'v_and_b32 v{MK+24+e}, s64, v{B}')
    g.vwait('v')
    stamp(g, 1)
    g.vmem('buffer_load_dword v252, v0, s[88:91], 0 offen sc1', 'nonce')
    g.vmem(f'buffer_load_dwordx4 v[{HH}:{HH+3}], v77, s[44:47], 0 offen', 'h0')
    g.vmem(f'buffer_load_dwordx4 v[{HH+4}:{HH+7}], v{F_T16}, s[44:47], 0 offen', 'h0')
    g.vmem(f'buffer_load_dwordx4 v[{HH+8}:{HH+11}], v{F_T16}, s[44:47], 0 offen offset:1008', 'h1')
    g.vmem(f'buffer_load_dwordx4 v[{HH+12}:{HH+15}], v{F_T16}, s[44:47], 0 offen offset:1024', 'h1')
    for rr in range(2):
        K3, K2, K1, K0 = [KR + 4 * (rr + i) for i in range(4)]
        for e in range(8): a(f'v_dot2_f32_bf16 v{AC+e}, v{K3+e//2}, v{MK+24+e}, 0')
        for e in range(8): a(f'v_dot2_f32_bf16 v{PR+e}, v{K2+e//2}, v{MK+16+e}, 0')
        for Kx, m in ((K1, 8), (K0, 0), (None, None)):
            for e in range(8): a(f'v_cvt_pk_bf16_f32 v{AC+e}, v{AC+e}, v{PR+e}')
            if Kx is not None:
                for e in range(8): a(f'v_dot2_f32_bf16 v{PR+e}, v{Kx+e//2}, v{MK+m+e}, 0')
            for e in range(8): a(f'v_dot2_f32_bf16 v{AC+e}, v{AC+e}, s62, 0')
        for p in range(4): a(f'v_cvt_pk_bf16_f32 v{PR+p}, v{AC+2*p}, v{AC+2*p+1}')
        for p in range(4):
            a(f'v_and_b32 v{AC+2*p}, s65, v{VR+4*rr+p}')
            a(f'v_and_b32 v{AC+2*p+1}, s64, v{VR+4*rr+p}')
        for e in range(8): a(f'v_dot2_f32_bf16 v{AC+e}, v{PR+e//2}, v{AC+e}, 0')
        for p in range(4): a(f'v_cvt_pk_bf16_f32 v{KO+4*rr+p}, v{AC+2*p}, v{AC+2*p+1}')
        g.ds(f'ds_write_b128 v54, v[{KO+4*rr}:{KO+4*rr+3}] offset:{144*(1-rr)}')
    g.barrier()
    for u in range(2):
        for hh in range(2):
            g.ds(f'ds_read_b64_tr_b16 v[{KO+4*u+2*hh}:{KO+4*u+2*hh+1}], v50 offset:{(32*u+4*hh)*144}', f'kt{u}')
    for u in range(2):
        g.lwait(f'kt{u}')
        g.ds(f'ds_write_b128 v51, v[{KO+4*u}:{KO+4*u+3}] offset:{64*u}', 'k2w')
    g.lwait('k2w')
    for u in range(2):
        g.ds(f'ds_read_b128 v[{KO+4*u}:{KO+4*u+3}], v52 offset:{8*144*u}', f'k2r{u}')
    a('s_add_u32 s13, s80, 32768')
    for u in range(2):
        g.lwait(f'k2r{u}')
        g.vmem(f'buffer_store_dwordx4 v[{KO+4*u}:{KO+4*u+3}], v53, {WSR}, {"s13" if u else "s80"} offen sc1', 'kst')
    stamp(g, 2)
    nonce_get(g, 'PN', 252)
    publish(g, 'kst', [])
    stamp(g, 24)
    a(f's_add_u32 s13, s74, {8*3584}')
    g.vmem(f'buffer_load_dwordx4 v[{WR}:{WR+3}], v56, s[92:95], s74 offen', 'wr')
    g.vmem(f'buffer_load_dwordx4 v[{WR+4}:{WR+7}], v56, s[92:95], s13 offen', 'wr')
    a(f's_add_u32 s13, s76, {8*896}')
    g.vmem(f'buffer_load_dwordx4 v[{WR+8}:{WR+11}], v57, s[96:99], s76 offen', 'wr')
    g.vmem(f'buffer_load_dwordx4 v[{WR+12}:{WR+15}], v57, s[96:99], s13 offen', 'wr')
    g.vwait('h1')
    a(f'v_add_u32 v{F_FB}, s12, v{F_T16}')
    for i in range(4): a(f'v_mov_b32 v{236+i}, 0')
    a(f'v_lshlrev_b32 v{F_VF}, 2, v3')
    a('s_mov_b32 s14, 0x1cb88541')
    a(f'v_lshrrev_b32 v{F_VF}, v{F_VF}, s14')
    a(f'v_and_b32 v{F_VF}, 15, v{F_VF}')
    a('v_mul_u32_u24 v252, 272, v3')
    a(f'v_add_u32 v{F_VF}, v{F_VF}, v252')
    a(f'v_lshl_add_u32 v{F_VF}, v{F_VF}, 4, s12')
    a('s_cmp_eq_u32 s9, 0')
    a('s_cbranch_scc0 CV_Z1')
    a('s_mov_b64 exec, 0xff')
    a(f'ds_write_b128 v{F_VF}, v[236:239]')
    a('s_mov_b64 exec, -1')
    a('s_branch CV_Z2')
    g.label('CV_Z1')
    a('v_add_u32 v252, s12, v2')
    a(f'ds_write_b128 v252, v[236:239] offset:{K2_G+4096}')
    g.label('CV_Z2')
    g.lg.issue()
    a('v_bfe_u32 v252, v1, 3, 1')
    a(f'v_add_u32 v252, v252, v{F_G4}')
    a(f'v_lshl_add_u32 v{F_VF}, v252, 4, v{F_VF}')
    a('s_lshl_b32 s14, s9, 8')
    a(f'v_add_u32 v{F_VF}, s14, v{F_VF}')
    a(f'v_lshlrev_b32 v{F_VG}, 5, v{F_N15}')
    a(f'v_lshlrev_b32 v252, 4, v{F_G4}')
    a(f'v_sub_u32 v{F_VG}, v252, v{F_VG}')
    a('s_add_u32 s14, s14, s12')
    a(f's_add_u32 s14, s14, {K2_G+480}')
    a(f'v_add_u32 v{F_VG}, s14, v{F_VG}')
    for p in range(2):
        d = HH + 8 * p
        t = FT if p == 0 else MK
        for k in range(6): a(f'v_mov_b32 v{t+k}, v{d+1+k}')
        for k in range(6): a(f'v_alignbyte_b32 v{t+6+k}, v{d+k+1}, v{d+k}, 2')
        for k in range(6): a(f'v_alignbyte_b32 v{t+12+k}, v{d+k+2}, v{d+k+1}, 2')
        src = {1: t + 6, 2: t, 3: t + 12, 4: d + 2, 5: t + 8, 6: t + 2, 7: t + 14, 8: d + 4}
        for r in range(1, 9):
            off = ((r - 1) * 272 + FC[r - 1] + 1) * 16 + 1024 * p
            g.ds(f'ds_write_b128 v{F_FB}, v[{src[r]}:{src[r]+3}] offset:{off}')
    stamp(g, 3)
    a('v_min_u32 v255, 15, v1')
    a('v_lshlrev_b32 v255, 3, v255')
    setup = ['s_lshr_b32 s82, s10, 4', 's_lshl_b32 s82, s82, 8', 's_lshl_b32 s14, s9, 7', 's_add_u32 s82, s82, s14',
             f's_add_u32 s82, s82, {WS_KF}']
    poll_issue(g, 'v255', setup, KO, 'kf')
    wg_map(a)
    a('s_lshl_b32 s71, s4, 3')
    a('s_add_u32 s71, s71, s3')
    a('s_lshl_b32 s73, s71, 6')
    a(f's_add_u32 s73, s73, {WS_SQ}')
    a('s_mul_i32 s71, s71, 7168')
    a('v_lshlrev_b32 v76, 3, v3')
    a('s_lshl_b32 s56, s5, 3')
    a('s_lshl_b32 s13, s3, 1')
    a('s_add_u32 s56, s56, s13')
    a(f's_mul_i32 s56, s56, {28*1024}')
    a(f's_add_u32 s56, s56, {WS_W1F}')
    a('s_mul_i32 s57, s5, 224')
    a('s_mul_i32 s13, s3, 28')
    a('s_add_u32 s57, s57, s13')
    a('s_lshl_b32 s57, s57, 10')
    a(f's_add_u32 s57, s57, {WS_W2F}')
    a('s_lshl_b32 s59, s3, 11')
    def w1ld(k, x):
        def f():
            r = w1_reg(x, k)
            a(f's_add_u32 s13, s56, {(28*x + (k//4)*4)*1024}')
            g.vmem(f'buffer_load_dwordx4 a[{r}:{r+3}], v2, {WSR}, s13 offen offset:{1024*(k%4)} sc1', f'w1_{k}')
        return f
    def w2ld(k, x):
        def f():
            kd, r = w2_loc(k, x)
            if kd == 'l':
                a(f's_add_u32 m0, s59, {(k-16)*8192 + x*1024}')
                a(f's_add_u32 s13, s57, {(112*x + k)*1024}')
                g.vmem(f'buffer_load_dwordx4 v2, {WSR}, s13 offen sc1 lds', 'w2')
            else:
                a(f's_add_u32 s13, s57, {(112*x + (k//4)*4)*1024}')
                g.vmem(f'buffer_load_dwordx4 {kd}[{r}:{r+3}], v2, {WSR}, s13 offen offset:{1024*(k%4)} sc1', 'w2')
        return f
    def xld(s, i):
        def f():
            a(f's_add_u32 s13, s71, {WS_XQ + s*4*7168 + 1024*i}')
            g.vmem(f'buffer_load_dwordx4 v[{XR(s)+4*i}:{XR(s)+4*i+3}], v2, {WSR}, s13 offen sc1', f'x{s}')
        return f
    for k in range(28):
        for x in range(2): g.bg.append(w1ld(k, x))
    poll_check(g, 'KFP', 'v255', KO, 'kf')
    stamp(g, 4)
    g.vmem(f'buffer_load_dwordx4 v[{KO}:{KO+3}], v{F_T16}, {WSR}, s11 offen sc1', 'kv0')
    g.vmem(f'buffer_load_dwordx4 v[{KO+4}:{KO+7}], v{F_T16}, {WSR}, s11 offen offset:1024 sc1', 'kv1')
    g.vwait('wr')
    for i in range(4):
        g.ds(f'ds_write_b128 v68, v[{WR+4*i}:{WR+4*i+3}] offset:{4096+1024*i}', 'ww')
    g.lwait('ww')
    for x in range(2):
        for hh in range(2):
            g.ds(f'ds_read_b64_tr_b16 v[{WR+4*x+2*hh}:{WR+4*x+2*hh+1}], v{64+x} offset:{4096+512*hh}', 'wt')
            g.ds(f'ds_read_b64_tr_b16 v[{WR+8+4*x+2*hh}:{WR+8+4*x+2*hh+1}], v{66+x} offset:{4096+2048+1024*hh}', 'wt')
    a('s_cmp_ge_u32 s84, 784')
    a('s_cselect_b32 s75, 0x7ff00000, s75')
    a('s_cselect_b32 s77, 0x7ff00000, s77')
    a(f's_add_u32 s13, s75, {28*1024}')
    a(f's_add_u32 s14, s77, {112*1024}')
    g.lwait('wt')
    g.vmem(f'buffer_store_dwordx4 v[{WR}:{WR+3}], v2, {WSR}, s75 offen sc1', 'wst')
    g.vmem(f'buffer_store_dwordx4 v[{WR+4}:{WR+7}], v2, {WSR}, s13 offen sc1', 'wst')
    g.vmem(f'buffer_store_dwordx4 v[{WR+8}:{WR+11}], v2, {WSR}, s77 offen sc1', 'wst')
    g.vmem(f'buffer_store_dwordx4 v[{WR+12}:{WR+15}], v2, {WSR}, s14 offen sc1', 'wst')
    a('s_lshl_b32 s14, s84, 11')
    g.vmem('buffer_load_dwordx4 v[16:19], v2, s[48:51], s14 offen')
    g.vmem('buffer_load_dwordx4 v[20:23], v2, s[48:51], s14 offen offset:1024')
    g.vwait('kv0')
    g.ds(f'ds_write_b128 v{F_FB}, v[{KO}:{KO+3}] offset:{K2_G}')
    g.vwait('kv1')
    g.ds(f'ds_write_b128 v{F_FB}, v[{KO+4}:{KO+7}] offset:{K2_G+1024}')
    a('v_mov_b32 v254, v70')
    a('v_mov_b32 v253, v69')
    a('v_mov_b32 v79, v68')
    a('v_min_u32 v252, 55, v1')
    a('v_lshlrev_b32 v252, 4, v252')
    g.barrier()
    stamp(g, 5)
    g.fixq = deque()
    g.w2pt = False
    a(f's_add_u32 s72, s71, {4*7168}')
    def qraw(s, i):
        def f():
            r = XR(s) + 4 * i
            g.vmem(f'buffer_load_dwordx4 v[{r}:{r+3}], v254, s[48:51], s{71+s} offen offset:{128*i}', f'q{s}')
        return f
    held = g.bg
    nop = lambda: None
    def pfpub():
        g.vwait('wst')
        a('s_barrier')
        a('s_lshl_b32 s81, s2, 3')
        a(f's_add_u32 s81, s81, {WS_PF}')
        a('s_cmp_lg_u32 s3, 0')
        publish(g, 'none', [], only='s_cselect_b32 s81, 0x7ff00000, s81')
    def pfissue(): poll_issue(g, 'v252', [f's_mov_b32 s82, {WS_PF}'], 68, 'pfl', wide=2)
    def pfcheck():
        poll_check(g, 'PFP', 'v252', 68, 'pfl', wide=2)
        g.bg.extend([qraw(1, i) for i in range(2, 7)])
        g.bg.extend(held)
        g.pump(8)
    g.bg = deque([nop] * 4 + [qraw(0, i) for i in range(7)] + [qraw(1, i) for i in range(2)] + [nop] * 14 + [pfpub])
    conv(g)
    stamp(g, 11)
    assert not g.bg
    a('v_add_u32 v136, s59, v2')
    a('v_mov_b32 v137, v136')
    setup_gemm(g)
    g.vwait('yst')
    g.barrier()
    a('s_mul_i32 s81, s9, 224')
    a('s_add_u32 s81, s81, s2')
    a('s_lshl_b32 s81, s81, 3')
    a(f's_add_u32 s81, s81, {WS_CF}')
    a('s_cmp_lg_u32 s8, 0')
    publish(g, 'yst', [], only='s_cselect_b32 s81, 0x7ff00000, s81')
    stamp(g, 7)
    pfissue()
    g.vwait('q0')
    for i in range(7):
        r = XR(0) + 4 * i
        g.ds(f'ds_write_b128 v79, v[{r}:{r+3}] offset:{1024*i}', 'qw')
    g.lwait('qw')
    for i in range(7):
        r = XR(0) + 4 * i
        g.ds(f'ds_read_b128 v[{r}:{r+3}], v253 offset:{1024*i}', 'qr')
    g.lwait('qr')
    pfcheck()
    stamp(g, 25)
    g.pump(10)
    for s in range(0):
        g.vwait(f'q{s}')
        for i in range(7):
            r = XR(s) + 4 * i
            g.ds(f'ds_write_b128 v79, v[{r}:{r+3}] offset:{1024*i}', 'qw')
        g.lwait('qw')
        for i in range(7):
            r = XR(s) + 4 * i
            g.ds(f'ds_read_b128 v[{r}:{r+3}], v253 offset:{1024*i}', 'qr')
        g.lwait('qr')
    cf_setup = ['s_lshr_b32 s82, s4, 4', 's_mul_i32 s82, s82, 1792', f's_add_u32 s82, s82, {WS_CF}']
    r = Rec(g); ln1_stats(r, 0, 80)
    for i, (_, f) in enumerate(r.items):
        f()
        if i % 16 == 15: g.pump(1)
    poll_issue(g, 'v47', cf_setup, 116, 'cf', wide=2)
    g.vwait('q1')
    for i in range(7):
        r = XR(1) + 4 * i
        g.ds(f'ds_write_b128 v79, v[{r}:{r+3}] offset:{1024*i}', 'qw')
    g.lwait('qw')
    for i in range(7):
        r = XR(1) + 4 * i
        g.ds(f'ds_read_b128 v[{r}:{r+3}], v253 offset:{1024*i}', 'qr')
    g.lwait('qr')
    ln1_stats(g, 1, 80)
    for k in list(range(12)) + [24, 25, 26, 27]:
        for x in range(2): g.bg.append(w2ld(k, x))
    stamp(g, 8)
    poll_check(g, 'CFP', 'v47', 116, 'cf', wide=2)
    stamp(g, 9)
    a('s_mul_i32 s70, s4, 57344')
    a('s_mul_i32 s72, s3, 14336')
    a('s_add_u32 s70, s70, s72')
    a(f's_add_u32 s70, s70, {WS_YB}')
    YL = [80 + 4 * i for i in range(12)] + [132, 140]
    for i in range(14):
        r = YL[i]
        g.vmem(f'buffer_load_dwordx4 v[{r}:{r+3}], v2, {WSR}, s70 offen offset:{1024*(i%4)} sc1', f'yl{i}')
        if i % 4 == 3: a('s_add_u32 s70, s70, 4096')
    g.pump(12)
    for i in range(14):
        r = YL[i]
        g.vwait(f'yl{i}')
        g.ds(f'ds_write_b128 {"v78" if (i>>1)&1 else "v77"}, v[{r}:{r+3}] offset:{128*i}')
    g.barrier()
    stamp(g, 10)
    y_tr(g, 0)
    for i in range(4): a(f'v_mov_b32 v{132+i}, s62')
    r = Rec(g); p3(r, 0, 0); g.add(r)
    for k in range(28):
        g.vwait(f'w1_{k}')
        for ft2 in range(2):
            o = 224 + 16 * ft2
            c = f'v[{o}:{o+15}]' if k else '0'
            rr = w1_reg(ft2, k)
            a(f'v_mfma_f32_32x32x16_bf16 v[{o}:{o+15}], a[{rr}:{rr+3}], v[132:135], {c}')
            g.fill(99, 7)
        g.pump(1)
    g.flush()
    a('s_mov_b32 exec_lo, 1')
    a('s_mov_b32 exec_hi, 1')
    for q in range(8):
        g.ds(f'ds_write_b128 v{V_CS}, v[{224+4*q}:{227+4*q}] offset:{(q//4)*128 + (q%4)*16}')
    a('s_mov_b64 exec, -1')
    for layer in range(2):
        sb = 12 + 16 * layer
        g.barrier()
        stamp(g, sb)
        r = Rec(g)
        if layer == 0:
            y_tr(r, 1)
            r.barrier()
            for k in range(12, 24):
                for x in range(2): g.bg.append(w2ld(k, x))
        else:
            r.at(2); poll_issue(r, f'v{V_FL}', poll_op(3), 76, 'pf')
            r.at(22)
            poll_check(r, 'PX1', f'v{V_FL}', 76, 'pf')
            st_loads(r, 1)
            x_loads(r, 1)
        g.add(r)
        m1f(g, layer, 0, bgp=1 if layer == 0 else 0, bg_from=8)
        stamp(g, sb + 1)
        if layer == 1:
            ln1_combine(g, 1)
            g.vwait('x1')
        r = Rec(g); p3(r, layer, 1, plain=False)
        for i, (_, f) in enumerate(r.items):
            f()
            if i == 150: publish(g, 'hst0', pub_op(4 * layer))
            if layer == 0 and i > 150 and i % 16 == 0: g.pump(1)
        g.barrier()
        stamp(g, sb + 2)
        r = Rec(g)
        r.at(20); poll_issue(r, f'v{V_FL}', poll_op(4 * layer), 126, 'pf')
        g.add(r)
        m1f(g, layer, 1, bgp=1 if layer == 0 else 0)
        stamp(g, sb + 3)
        g.pump(100)
        poll_check(g, f'PH{layer}0', f'v{V_FL}', 126, 'pf')
        stamp(g, sb + 4)
        r = Rec(g)
        publish(r, 'hst1', pub_op(4 * layer + 1))
        r.at(36); poll_issue(r, f'v{V_FL}', poll_op(4 * layer + 1), 76, 'pf')
        g.add(r)
        m2b(g, layer, 0, 5, 0)
        stamp(g, sb + 5)
        g.flush()
        e2_head(g, layer, 0)
        poll_check(g, f'PH{layer}1', f'v{V_FL}', 76, 'pf')
        if layer == 1:
            for k in range(NSL): h_load(g, layer, 1, k)
        e2_tail(g, layer, 0)
        stamp(g, sb + 6)
        r = Rec(g)
        if layer == 0:
            publish(r, 'xst0', pub_op(2))
            r.at(36); poll_issue(r, f'v{V_FL}', poll_op(2), 44, 'pf')
            r.at(52); poll_check(r, 'PX0', f'v{V_FL}', 44, 'pf')
            x_loads(r, 0)
        g.add(r)
        m2b(g, layer, 1, 5, NSL if layer == 1 else 0)
        stamp(g, sb + 7)
        g.flush()
        e2_head(g, layer, 1)
        if layer == 0:
            st_loads(g, 0)
            y_loads(g, 0)
        e2_tail(g, layer, 1)
        stamp(g, sb + 8)
        if layer == 0:
            ln1_combine(g, 0)
            g.vwait('y0')
            stamp(g, sb + 9)
            def yb(e, i):
                if i < 4: return
                for ii in (range(5) if i == 4 else [i]):
                    def f(g, ii=ii):
                        g.a(f's_add_u32 s72, s71, {WS_YX + 4*7168 + 1024*ii}')
                        g.vmem(f'buffer_load_dwordx4 v[{YR+4*ii}:{YR+4*ii+3}], v2, {WSR}, s72 offen sc1', 'y1')
                    e.group(f)
            r = Rec(g); p3(r, 1, 0, plain=False, after_group=yb)
            for i, (_, f) in enumerate(r.items):
                f()
                if i == 125: publish(g, 'xst1', pub_op(3))
            stamp(g, sb + 10)
    prof_end(g, 0x10000)
    g.label('MAIN_END')
    a('s_endpgm')


def main(out):
    asm = Asm()
    main_kernel(asm)
    hdr = open(f'cdna_kernels/{NAME}.s.ref').read().split('; Override launch')[0]
    hdr += f"""; @launch grid=(224,1,1) block=(256,1,1) lds={LDS_BYTES}
.amdgcn_target "amdgcn-amd-amdhsa--gfx950"
.text
"""
    tail = '.section .rodata,"a"\n' + kernel_desc(KNAME, 512, sgpr=102, accum=256)
    open(out, 'w').write(hdr + asm.text() + tail)


if __name__ == '__main__':
    gen4.PROF = '--prof' in sys.argv
    main(sys.argv[1] if len(sys.argv) > 1 and not sys.argv[1].startswith('--') else f'cdna_kernels/{NAME}.s')
```

```python
import sys
from collections import deque
from asmlib import *
from gen1 import (NAME, XBYTES, WBYTES, P_Q, P_K, P_V, P_SHK, P_SSMK, P_SSMD, P_W1, P_W2, P_OUT,
                  P_DBG, P_WS, load_args, srd, magic, FC, K2_CB, K2_G, K2_SCR, wg_map)

KNAME = NAME + '_kernel'
WS_KVR = 0x000000
WS_YB = 0x200000
WS_YX = 0x400000
WS_X2 = 0x600000
WS_SP = 0x900000
WS_KF = 0x800000
WS_CF = 0x802000
WS_OF = 0x804000
WS_HB = [0x1000000, 0x1800000]
WS_SIZE = 0x2000000
WS_PROF = 0x2000000
PROF = False
CONV_PUMP = 4
SLEEP = 1

L_W2 = 0
L_R0 = 98304
R_SZ = 28736
L_CS = L_R0 + 2 * R_SZ
L_ST = L_CS + 1024
LDS_BYTES = L_ST + 512
YP = 7184
RING = 14336

WSR = 's[40:43]'
SPIN = 's83'


class Ctr:
    def __init__(self, a, name, maxn):
        self.a, self.name, self.maxn, self.q = a, name, maxn, []

    def issue(self, tag=None): self.q.append(tag)

    def need(self, tag):
        idx = [i for i, t in enumerate(self.q) if t == tag]
        if not idx: return None
        n = len(self.q) - 1 - idx[-1]
        self.q = self.q[idx[-1] + 1:]
        return min(n, self.maxn)

    def wait(self, tag):
        n = self.need(tag)
        if n is not None: self.a(f's_waitcnt {self.name}({n})')

    def wait_all(self):
        self.a(f's_waitcnt {self.name}(0)')
        self.q = []


class G:
    def __init__(self, asm):
        self.asm = asm
        self.vm = Ctr(asm, 'vmcnt', 63)
        self.lg = Ctr(asm, 'lgkmcnt', 15)
        self.bg = deque()
        self.fq = deque()

    def a(self, text): self.asm(text)
    def label(self, n): self.asm.label(n)
    def vmem(self, text, tag=None): self.asm(text); self.vm.issue(tag)
    def ds(self, text, tag=None): self.asm(text); self.lg.issue(tag)
    def vwait(self, tag): self.vm.wait(tag)
    def lwait(self, tag): self.lg.wait(tag)
    def group(self, fn): fn(self)

    def wait2(self, vtag=None, ltag=None):
        parts = []
        for c, t in ((self.vm, vtag), (self.lg, ltag)):
            if t is not None:
                n = c.need(t)
                if n is not None: parts.append(f'{c.name}({n})')
        if parts: self.asm('s_waitcnt ' + ' '.join(parts))

    def barrier(self):
        self.lg.wait_all()
        self.asm('s_barrier')

    def pump(self, n=1):
        for _ in range(n):
            if not self.bg: return
            self.bg.popleft()()

    def fill(self, step, n):
        while n > 0 and self.fq and self.fq[0][0] <= step:
            self.fq.popleft()[1]()
            n -= 1

    def flush(self):
        while self.fq: self.fq.popleft()[1]()

    def add(self, rec, step=0):
        for s, f in rec.items: self.fq.append((max(step, s), f))


class Rec:
    def __init__(self, g): self.g, self.items, self.step = g, [], 0
    def _add(self, f): self.items.append((self.step, f))
    def at(self, step): self.step = step
    def a(self, text): self._add(lambda: self.g.a(text))
    def vmem(self, text, tag=None): self._add(lambda: self.g.vmem(text, tag))
    def ds(self, text, tag=None): self._add(lambda: self.g.ds(text, tag))
    def vwait(self, tag): self._add(lambda: self.g.vwait(tag))
    def lwait(self, tag): self._add(lambda: self.g.lwait(tag))
    def barrier(self): self._add(lambda: self.g.barrier())
    def group(self, fn): self._add(lambda: fn(self.g))


def stamp(e, k):
    if not PROF: return
    def f(g):
        g.a('s_memtime s[100:101]')
        g.lg.wait_all()
        g.a(f'v_writelane_b32 v7, s100, {k}')
    e.group(f)


def w1_reg(ft2, k): return (k * 2 + ft2) * 4


def w2_loc(k, dt):
    if k < 4: return ('a', 224 + k * 8 + dt * 4)
    if k < 16: return ('v', 160 + (k - 4) * 8 + dt * 4)
    return ('l', k - 16)


def reduce8(e, s, t):
    e.a(f'v_add_f32 v{s}, v{s}, v{s} row_ror:8')
    for sw in ('v_permlane16_swap_b32', 'v_permlane32_swap_b32'):
        e.a(f'v_mov_b32 v{t}, v{s}')
        e.a(f'{sw} v{s}, v{t}')
        e.a(f'v_add_f32 v{s}, v{s}, v{t}')


def rnd(e, d, s):
    e.a(f'v_cvt_pk_bf16_f32 v{d}, v{s}, v{s}')
    e.a(f'v_lshlrev_b32 v{d}, 16, v{d}')


def var_to_rinv(e, d, v):
    e.a(f'v_max_f32 v{v}, 0, v{v}')
    rnd(e, v, v)
    e.a(f'v_add_f32 v{v}, 0x3727c5ac, v{v}')
    rnd(e, v, v)
    e.a(f'v_sqrt_f32 v{v}, v{v}')
    rnd(e, v, v)
    e.a(f'v_rcp_f32 v{d}, v{v}')


def poll_issue(e, voff, soff_setup, t, tag, wide=0):
    def f(g):
        for l in soff_setup: g.a(l)
        if wide:
            for i in range(wide):
                g.vmem(f'buffer_load_dwordx4 v[{t+4*i}:{t+4*i+3}], {voff}, {WSR}, s82 offen offset:{896*i} sc1', tag)
        else:
            g.vmem(f'buffer_load_dwordx2 v[{t}:{t+1}], {voff}, {WSR}, s82 offen sc1', tag)
    e.group(f)


def poll_check(e, name, voff, t, tag, wide=0):
    def f(g):
        g.vwait(tag)
        g.label(name)
        n = 2 * wide if wide else 1
        for i in range(n):
            g.a(f'v_xor_b32 v{t+2*i}, s66, v{t+2*i}')
            g.a(f'v_xor_b32 v{t+2*i+1}, s67, v{t+2*i+1}')
        if wide == 1:
            g.a(f'v_or3_b32 v{t}, v{t}, v{t+1}, v{t+2}')
            g.a(f'v_or_b32 v{t}, v{t}, v{t+3}')
        elif wide:
            g.a(f'v_or3_b32 v{t}, v{t}, v{t+1}, v{t+2}')
            g.a(f'v_or3_b32 v{t+3}, v{t+3}, v{t+4}, v{t+5}')
            g.a(f'v_or3_b32 v{t}, v{t}, v{t+6}, v{t+7}')
            g.a(f'v_or_b32 v{t}, v{t}, v{t+3}')
        else:
            g.a(f'v_or_b32 v{t}, v{t}, v{t+1}')
        g.a(f'v_cmp_ne_u32 vcc, 0, v{t}')
        g.a(f's_cbranch_vccz {name}_D')
        g.a(f's_add_u32 {SPIN}, {SPIN}, 1')
        g.a(f's_cmp_gt_u32 {SPIN}, 0x40000')
        g.a(f's_cbranch_scc1 {name}_D')
        g.a(f's_sleep {4 if wide else SLEEP}')
        if wide:
            for i in range(wide):
                g.a(f'buffer_load_dwordx4 v[{t+4*i}:{t+4*i+3}], {voff}, {WSR}, s82 offen offset:{896*i} sc1')
        else:
            g.a(f'buffer_load_dwordx2 v[{t}:{t+1}], {voff}, {WSR}, s82 offen sc1')
        g.a('s_waitcnt vmcnt(0)')
        g.a(f's_branch {name}')
        g.label(name + '_D')
    e.group(f)


def publish(e, tag, soff_setup, only=None):
    def f(g):
        g.vwait(tag)
        for l in soff_setup: g.a(l)
        if only: g.a(only)
        g.a('s_mov_b64 exec, 1')
        g.vmem(f'buffer_store_dwordx2 v[4:5], v0, {WSR}, s81 offen sc1')
        g.a('s_mov_b64 exec, -1')
    e.group(f)


RA, RB = 16, 48
YR = 80
TT = 108
BR = 132
WT = 124
V_YT0, V_YT1, V_W2S = 128, 129, 130
V_Q, V_FL, V_XW, V_STW, V_B, V_RES, V_STR, V_CS, V_C0, V_RED, V_XST, V_OST = range(144, 156)
V_C1 = 3
V_ST = 156


def XR(s): return RA if s == 0 else RB
def ST1(s): return 8 + 4 * s


def ln1_stats(e, s, T):
    X = XR(s)
    mb, rinv = ST1(s), ST1(s) + 2
    acc, tmp, dm, sq = T, T + 1, T + 2, T + 4
    e.a(f'v_dot2_f32_bf16 v{acc}, v{X}, s62, 0')
    e.a(f'v_dot2_f32_bf16 v{tmp}, v{X+1}, s62, 0')
    for p in range(2, 28, 2):
        e.a(f'v_dot2_f32_bf16 v{acc}, v{X+p}, s62, v{acc}')
        e.a(f'v_dot2_f32_bf16 v{tmp}, v{X+p+1}, s62, v{tmp}')
    e.a(f'v_add_f32 v{acc}, v{acc}, v{tmp}')
    reduce8(e, acc, tmp)
    e.a(f'v_mul_f32 v{acc}, s63, v{acc}')
    rnd(e, mb, acc)
    e.a(f'v_sub_f32 v{dm}, v{acc}, v{mb}')
    e.a(f'v_sub_f32 v{mb+1}, 0, v{mb}')
    def d(p): return T + 6 + 2 * (p % 3)
    for p in range(30):
        if p < 28:
            e.a(f'v_dot2_f32_bf16 v{d(p)}, v{X+p}, s60, v{mb+1}')
            e.a(f'v_dot2_f32_bf16 v{d(p)+1}, v{X+p}, s61, v{mb+1}')
        if p >= 2:
            q = p - 2
            c = '0' if q == 0 else f'v[{sq}:{sq+1}]'
            e.a(f'v_pk_fma_f32 v[{sq}:{sq+1}], v[{d(q)}:{d(q)+1}], v[{d(q)}:{d(q)+1}], {c}')
    e.a(f'v_add_f32 v{acc}, v{sq}, v{sq+1}')
    reduce8(e, acc, tmp)
    e.a(f'v_mul_f32 v{dm}, v{dm}, v{dm}')
    e.a(f'v_fma_f32 v{acc}, s63, v{acc}, -v{dm}')
    var_to_rinv(e, rinv, acc)
    e.a(f'v_mul_f32 v{rinv+1}, v{mb+1}, v{rinv}')


def st_loads(e, s):
    SB = TT if s == 0 else 116
    e.a(f's_lshr_b32 s72, s71, 1')
    e.a(f's_add_u32 s72, s72, {WS_SP + s*2*7168}')
    for i in range(7):
        e.vmem(f'buffer_load_dwordx2 v[{SB+2*i}:{SB+2*i+1}], v{V_Q}, {WSR}, s72 offen offset:{512*i} sc1', f'sp{s}')


def ln1_combine(e, s):
    mb, rinv = ST1(s), ST1(s) + 2
    SB = TT if s == 0 else 116
    acc, tmp, q, m2 = (TT + 14, TT + 15, TT + 16, TT + 17) if s == 0 else (130, 131, 76, 77)
    e.vwait(f'sp{s}')
    e.a(f'v_add_f32 v{acc}, v{SB}, v{SB+2}')
    e.a(f'v_add_f32 v{m2}, v{SB+1}, v{SB+3}')
    for i in range(2, 7):
        e.a(f'v_add_f32 v{acc}, v{acc}, v{SB+2*i}')
        e.a(f'v_add_f32 v{m2}, v{m2}, v{SB+2*i+1}')
    reduce8(e, acc, tmp)
    e.a(f'v_mul_f32 v{acc}, s63, v{acc}')
    e.a(f'v_mul_f32 v{tmp}, 0xc1000000, v{acc}')
    for i in range(7): e.a(f'v_add_f32 v{SB+2*i}, v{SB+2*i}, v{tmp}')
    e.a(f'v_mul_f32 v{q}, v{SB}, v{SB}')
    for i in range(1, 7): e.a(f'v_fmac_f32 v{q}, v{SB+2*i}, v{SB+2*i}')
    e.a(f'v_fmac_f32 v{m2}, 0x3e000000, v{q}')
    rnd(e, mb, acc)
    reduce8(e, m2, tmp)
    e.a(f'v_mul_f32 v{m2}, s63, v{m2}')
    var_to_rinv(e, rinv, m2)
    e.a(f'v_mul_f32 v{rinv+1}, v{mb}, v{rinv}')
    e.a(f'v_sub_f32 v{rinv+1}, 0, v{rinv+1}')


def p3(e, layer, s, plain=True, after_group=None):
    X = XR(s)
    mb, rinv = ST1(s), ST1(s) + 2
    nm = f'P3_{layer}{s}'
    if layer == 0:
        def yx(g):
            g.a('s_lshl_b32 s72, s5, 10')
            g.a('s_add_u32 s72, s72, s71')
            g.a(f's_add_u32 s72, s72, {WS_YX + s*4*7168}')
            for i in range(7):
                g.a(f's_cmp_lg_u32 s5, {i}')
                g.a(f's_cbranch_scc1 {nm}_YX{i}')
                g.a(f'buffer_store_dwordx4 v[{YR+4*i}:{YR+4*i+3}], v2, {WSR}, s72 offen sc1')
                g.label(f'{nm}_YX{i}')
            g.vm.issue('yx')
        e.group(yx)
    sa, sb = TT + 16, TT + 17
    for i in range(7):
        t, u = TT, TT + 8
        for p in range(4):
            e.a(f'v_lshlrev_b32 v{t+2*p}, 16, v{X+4*i+p}')
            e.a(f'v_and_b32 v{t+2*p+1}, s64, v{X+4*i+p}')
        if plain:
            for h in range(2):
                for x in range(4): e.a(f'v_fma_f32 v{u+x}, v{t+4*h+x}, v{rinv}, v{rinv+1}')
                for p in range(2):
                    e.a(f'v_lshlrev_b32 v{u+4+2*p}, 16, v{YR+4*i+2*h+p}')
                    e.a(f'v_and_b32 v{u+4+2*p+1}, s64, v{YR+4*i+2*h+p}')
                for x in range(4): e.a(f'v_fmac_f32 v{t+4*h+x}, v{u+x}, v{u+4+x}')
        else:
            for h in range(2):
                for p in range(2):
                    e.a(f'v_pk_fma_f32 v[{u+2*p}:{u+2*p+1}], v[{t+4*h+2*p}:{t+4*h+2*p+1}], v[{rinv}:{rinv+1}], v[{rinv}:{rinv+1}] op_sel:[0,0,1] op_sel_hi:[1,0,1]')
                for p in range(2):
                    e.a(f'v_lshlrev_b32 v{u+4+2*p}, 16, v{YR+4*i+2*h+p}')
                    e.a(f'v_and_b32 v{u+4+2*p+1}, s64, v{YR+4*i+2*h+p}')
                for p in range(2):
                    e.a(f'v_pk_fma_f32 v[{t+4*h+2*p}:{t+4*h+2*p+1}], v[{u+2*p}:{u+2*p+1}], v[{u+4+2*p}:{u+4+2*p+1}], v[{t+4*h+2*p}:{t+4*h+2*p+1}]')
        for p in range(4):
            e.a(f'v_cvt_pk_bf16_f32 v{X+4*i+p}, v{t+2*p}, v{t+2*p+1}')
        e.ds(f'ds_write_b128 v{V_XW}, v[{X+4*i}:{X+4*i+3}] offset:{s*R_SZ + 4096*i}')
        if after_group: after_group(e, i)
        if plain:
            for x in range(8):
                if i == 0 and x == 0:
                    e.a(f'v_mov_b32 v{sa}, v{t}')
                    e.a(f'v_mul_f32 v{sb}, v{t}, v{t}')
                else:
                    e.a(f'v_add_f32 v{sa}, v{sa}, v{t+x}')
                    e.a(f'v_fmac_f32 v{sb}, v{t+x}, v{t+x}')
        else:
            for p in range(4):
                first = (i == 0 and p == 0)
                e.a(f'v_dot2_f32_bf16 v{sa}, v{X+4*i+p}, s62, {"0" if first else f"v{sa}"}')
                e.a(f'v_dot2_f32_bf16 v{sb}, v{X+4*i+p}, v{X+4*i+p}, {"0" if first else f"v{sb}"}')
    ta, tb = TT + 18, TT + 19
    e.a(f'v_add_f32 v{sa}, v{sa}, v{sa} row_ror:8')
    e.a(f'v_add_f32 v{sb}, v{sb}, v{sb} row_ror:8')
    for sw in ('v_permlane16_swap_b32', 'v_permlane32_swap_b32'):
        e.a(f'v_mov_b32 v{ta}, v{sa}')
        e.a(f'v_mov_b32 v{tb}, v{sb}')
        e.a(f'{sw} v{sa}, v{ta}')
        e.a(f'{sw} v{sb}, v{tb}')
        e.a(f'v_add_f32 v{sa}, v{sa}, v{ta}')
        e.a(f'v_add_f32 v{sb}, v{sb}, v{tb}')
    e.a(f'v_mul_f32 v{sa}, s63, v{sa}')
    e.a(f'v_mul_f32 v{ta}, v{sa}, v{sa}')
    e.a(f'v_fma_f32 v{sb}, s63, v{sb}, -v{ta}')
    var_to_rinv(e, tb, sb)
    rnd(e, sa, sa)
    e.a(f'v_sub_f32 v{ta}, 0, v{sa}')
    def w(g):
        g.a('s_mov_b64 exec, 0xff')
        g.ds(f'ds_write_b64 v{V_STW}, v[{ta}:{tb}] offset:{s*256}')
        g.a('s_mov_b64 exec, -1')
    e.group(w)


def y_tr(e, s):
    for i in range(7):
        e.ds(f'ds_read_b64_tr_b16 v[{YR+4*i}:{YR+4*i+1}], v{V_YT0} offset:{s*4*YP + 1024*i}', 'ytr')
        e.ds(f'ds_read_b64_tr_b16 v[{YR+4*i+2}:{YR+4*i+3}], v{V_YT1} offset:{s*4*YP + 1024*i}', 'ytr')
    e.lwait('ytr')


def x_loads(e, s):
    X = XR(s)
    e.a(f's_add_u32 s72, s71, {WS_X2 + s*4*7168}')
    e.a(f's_add_u32 s74, s71, {WS_X2 + s*4*7168 + 4096}')
    for i in range(7):
        so, off = ('s72', 1024 * i) if i < 4 else ('s74', 1024 * (i - 4))
        e.vmem(f'buffer_load_dwordx4 v[{X+4*i}:{X+4*i+3}], v2, {WSR}, {so} offen offset:{off} sc1', f'x{s}')


def y_loads(e, s):
    e.a(f's_add_u32 s72, s71, {WS_YX + s*4*7168}')
    e.a(f's_add_u32 s74, s71, {WS_YX + s*4*7168 + 4096}')
    for i in range(7):
        so, off = ('s72', 1024 * i) if i < 4 else ('s74', 1024 * (i - 4))
        e.vmem(f'buffer_load_dwordx4 v[{YR+4*i}:{YR+4*i+3}], v2, {WSR}, {so} offen offset:{off} sc1', f'y{s}')


def opflag(op): return op * 32 * 256


def m1(g, layer, s, nfill, bgp=0, bg_from=0):
    ACC = XR(s)
    def rd(k):
        sl = BR + 4 * (k % 3)
        g.ds(f'ds_read_b128 v[{sl}:{sl+3}], v{V_B} offset:{s*R_SZ + 1024*k}', f'b{k}')
    rd(0); rd(1)
    RES = 8 + 4 * s
    g.ds(f'ds_read_b128 v[{RES}:{RES+3}], v{V_RES} offset:{s*R_SZ}')
    g.ds(f'ds_read_b64 v[{V_ST+2*s}:{V_ST+2*s+1}], v{V_STR} offset:{s*256}')
    for k in range(28):
        if k + 2 < 28: rd(k + 2)
        g.lwait(f'b{k}')
        sl = BR + 4 * (k % 3)
        for ft2 in range(2):
            o = ACC + 16 * ft2
            c = f'v[{o}:{o+15}]' if k else '0'
            r = w1_reg(ft2, k)
            g.a(f'v_mfma_f32_32x32x16_bf16 v[{o}:{o+15}], a[{r}:{r+3}], v[{sl}:{sl+3}], {c}')
            g.fill(2 * k + ft2, nfill)
        if k >= bg_from: g.pump(bgp)


def e1(e, layer, s, CT, plain=True, halves=(0, 1)):
    ACC = XR(s)
    mm = V_ST + 2 * s
    e.a(f's_add_u32 s73, s75, {WS_HB[layer] + s*112*1024}')
    for ft2 in halves:
        o = ACC + 16 * ft2
        for hb in range(2):
            for q in range(2):
                e.ds(f'ds_read_b128 v[{CT+4*q}:{CT+4*q+3}], v{V_CS} offset:{ft2*128 + hb*32 + q*16}', 'cs')
            e.lwait('cs')
            for x in range(8): e.a(f'v_fmac_f32 v{o+8*hb+x}, v{CT+x}, v{mm}')
        if plain:
            for x in range(16): e.a(f'v_max_f32 v{o+x}, 0, v{o+x}')
        for p in range(8):
            e.a(f'v_cvt_pk_bf16_f32 v{o+p}, v{o+2*p}, v{o+2*p+1}')
        if not plain:
            for p in range(8):
                e.a(f'v_pk_max_i16 v{o+p}, v{o+p}, 0')
        for hf in range(2):
            r = o + 4 * hf
            e.vmem(f'buffer_store_dwordx4 v[{r}:{r+3}], v2, {WSR}, s73 offen offset:{2048*ft2 + 1024*hf} sc1', f'hst{s}')


HSL = [96 + 4 * i for i in range(7)] + [80, 84, 88, 92, 140]
NSL = len(HSL)


XSL = {}


def h_slot(s, k):
    x = XSL.get(s, [])
    n = NSL + len(x)
    k %= n
    return HSL[(k + 4 * s) % NSL] if k < NSL else x[k - NSL]


def n_slots(s): return NSL + len(XSL.get(s, []))


def h_load(e, layer, s, k):
    sl = h_slot(s, k)
    def f(g):
        g.a(f's_add_u32 s70, s77, {WS_HB[layer] + s*112*1024 + 4096*(k//4)}')
        g.vmem(f'buffer_load_dwordx4 v[{sl}:{sl+3}], v2, {WSR}, s70 offen offset:{1024*(k%4)} sc1', f'h{s}_{k}')
    e.group(f)


def m2(g, layer, s, nfill, first_issued, after=None):
    ACC = XR(s)
    for k in range(first_issued, NSL): h_load(g, layer, s, k)
    def rdw(k):
        if k == 24:
            g.a(f'v_add_u32 v{V_C0}, 0x10000, v{V_C0}')
            g.a(f'v_add_u32 v{V_C1}, 0x10000, v{V_C1}')
        for dt in range(2):
            r = WT + 8 * (k % 2) + 4 * dt
            for hh in range(2):
                g.ds(f'ds_read_b64_tr_b16 v[{r+2*hh}:{r+2*hh+1}], v{V_C1 if dt else V_C0} offset:{8192*((k-16)%8) + 1024*hh}', f'w{k}')
    for k in range(28):
        if k == 14: g.vwait('w2l')
        if k in (14, 15): rdw(k + 2)
        g.wait2(f'h{s}_{k}', f'w{k}' if k >= 16 else None)
        sl = h_slot(s, k)
        for dt in range(2):
            o = ACC + 16 * dt
            c = f'v[{o}:{o+15}]' if k else '0'
            kind, r = w2_loc(k, dt)
            if kind == 'l': kind, r = 'v', WT + 8 * (k % 2) + 4 * dt
            g.a(f'v_mfma_f32_32x32x16_bf16 v[{o}:{o+15}], {kind}[{r}:{r+3}], v[{sl}:{sl+3}], {c}')
            g.fill(2 * k + dt, nfill)
        if k + NSL < 28: h_load(g, layer, s, k + NSL)
        elif after: after(k)
        if 16 <= k and k + 2 < 28: rdw(k + 2)
    g.a(f'v_subrev_u32 v{V_C0}, 0x10000, v{V_C0}')
    g.a(f'v_subrev_u32 v{V_C1}, 0x10000, v{V_C1}')


def e2_head(g, layer, s):
    ACC = XR(s)
    nm = f'E2_{layer}{s}'
    done = f'{nm}_RD'
    for w in range(4):
        if w < 3:
            g.a(f's_cmp_lg_u32 s3, {w}')
            g.a(f's_cbranch_scc1 {nm}_R{w+1}')
        for t in range(4):
            if t == w: continue
            slot = (w - t - 1) % 4
            for q in range(2):
                r = ACC + 8 * t + 4 * q
                g.a(f'ds_write_b128 v{V_B}, v[{r}:{r+3}] offset:{s*R_SZ + t*6144 + slot*2048 + q*1024}')
        if w != 0:
            for x in range(8): g.a(f'v_mov_b32 v{ACC+x}, v{ACC+8*w+x}')
        if w < 3:
            g.a(f's_branch {done}')
            g.label(f'{nm}_R{w+1}')
    g.label(done)
    for _ in range(6): g.lg.issue()


def e2_tail(e, layer, s, defer=False):
    ACC = XR(s)
    e.barrier()
    for i in range(6):
        e.ds(f'ds_read_b128 v[{ACC+8+4*i}:{ACC+11+4*i}], v{V_RED} offset:{s*R_SZ + 1024*i}', f'rr{i}')
    r2 = V_ST + 2 * s + 1
    for sl in range(3):
        e.lwait(f'rr{2*sl+1}')
        for p in range(4):
            e.a(f'v_pk_add_f32 v[{ACC+2*p}:{ACC+2*p+1}], v[{ACC+2*p}:{ACC+2*p+1}], v[{ACC+8+8*sl+2*p}:{ACC+9+8*sl+2*p}]')
    for x in range(8): e.a(f'v_mul_f32 v{ACC+x}, v{ACC+x}, v{r2}')
    P = ACC + 8
    for p in range(4): e.a(f'v_cvt_pk_bf16_f32 v{P+p}, v{ACC+2*p}, v{ACC+2*p+1}')
    e.a(f'v_permlane32_swap_b32 v{P}, v{P+2}')
    e.a(f'v_permlane32_swap_b32 v{P+1}, v{P+3}')
    RES = 8 + 4 * s
    for p in range(4):
        e.a(f'v_lshlrev_b32 v{ACC+2*p}, 16, v{P+p}')
        e.a(f'v_and_b32 v{ACC+2*p+1}, s64, v{P+p}')
    for p in range(4):
        e.a(f'v_dot2_f32_bf16 v{ACC+2*p}, v{RES+p}, s60, v{ACC+2*p}')
        e.a(f'v_dot2_f32_bf16 v{ACC+2*p+1}, v{RES+p}, s61, v{ACC+2*p+1}')
    for p in range(4): e.a(f'v_cvt_pk_bf16_f32 v{P+20+p}, v{ACC+2*p}, v{ACC+2*p+1}')
    Q = P + 20
    if layer == 0:
        z = ACC + 8
        e.a(f'v_pk_add_f32 v[{z}:{z+1}], v[{ACC}:{ACC+1}], v[{ACC+2}:{ACC+3}]')
        e.a(f'v_pk_add_f32 v[{z+2}:{z+3}], v[{ACC+4}:{ACC+5}], v[{ACC+6}:{ACC+7}]')
        e.a(f'v_pk_add_f32 v[{z}:{z+1}], v[{z}:{z+1}], v[{z+2}:{z+3}]')
        e.a(f'v_add_f32 v{ACC+24}, v{z}, v{z+1}')
        e.a(f'v_mul_f32 v{z+2}, 0xbe000000, v{ACC+24}')
        for p in range(4):
            e.a(f'v_pk_add_f32 v[{ACC+2*p}:{ACC+2*p+1}], v[{ACC+2*p}:{ACC+2*p+1}], v[{z+2}:{z+3}] op_sel_hi:[1,0]')
        e.a(f'v_pk_mul_f32 v[{z+4}:{z+5}], v[{ACC}:{ACC+1}], v[{ACC}:{ACC+1}]')
        for p in range(1, 4):
            e.a(f'v_pk_fma_f32 v[{z+4}:{z+5}], v[{ACC+2*p}:{ACC+2*p+1}], v[{ACC+2*p}:{ACC+2*p+1}], v[{z+4}:{z+5}]')
        e.a(f'v_add_f32 v{ACC+25}, v{z+4}, v{z+5}')
        e.a(f'v_lshrrev_b32 v{ACC+26}, 1, v{V_XST}')
        if not defer: e2_stores(e, s)
    else:
        e.a(f's_add_u32 s73, s79, {s*4*7168}')
        e.vmem(f'buffer_store_dwordx4 v[{Q}:{Q+3}], v{V_OST}, s[52:55], s73 offen')


def e2_stores(e, s):
    ACC = XR(s)
    Q, z = ACC + 28, ACC + 24
    def f(g):
        g.a(f's_add_u32 s73, s78, {WS_X2 + s*4*7168}')
        g.vmem(f'buffer_store_dwordx4 v[{Q}:{Q+3}], v{V_XST}, {WSR}, s73 offen sc1', f'xst{s}')
        g.a('s_lshr_b32 s73, s78, 1')
        g.a(f's_add_u32 s73, s73, {WS_SP + s*2*7168}')
        g.vmem(f'buffer_store_dwordx2 v[{z}:{z+1}], v{z+2}, {WSR}, s73 offen sc1', f'xst{s}')
    e.group(f)


F_W1S, F_W2S, F_T1, F_T2, F_FB, F_VF, F_VG, F_N15, F_G4, F_T16 = 240, 241, 242, 244, 246, 247, 248, 249, 250, 251


def front(g):
    a = g.a
    MK, AC, PR, KO, TAP, KR, VR, HH, FT = 80, 112, 120, 128, 136, 152, 172, 180, 196
    a('v_and_b32 v1, 63, v0')
    a('v_lshrrev_b32 v2, 6, v0')
    a('v_readfirstlane_b32 s3, v2')
    a(f's_mul_hi_u32 s6, s2, {magic(7)}')
    a('s_mul_i32 s7, s6, 7')
    a('s_sub_u32 s7, s2, s7')
    a('v_and_b32 v252, 7, v0')
    a('v_lshrrev_b32 v253, 3, v0')
    a('s_lshl_b32 s8, s6, 6')
    a('v_lshl_add_u32 v254, v253, 1, s8')
    a('s_movk_i32 s8, 896')
    a('v_mul_lo_u32 v254, v254, s8')
    a('s_lshl_b32 s8, s7, 7')
    a('v_lshl_add_u32 v255, v252, 4, s8')
    a('v_add_u32 v254, v254, v255')
    a('v_add_u32 v44, -896, v254')
    a('v_add_u32 v45, -1792, v254')
    a('v_add_u32 v46, -2688, v254')
    a('v_lshlrev_b32 v255, 2, v255')
    a('v_lshlrev_b32 v2, 4, v1')
    a('s_waitcnt lgkmcnt(0)')
    srd(a, 88, P_SHK, 0, 448 * 8)
    srd(a, 56, P_K, 0, XBYTES)
    srd(a, 84, P_V, 0, XBYTES)
    for i in range(4):
        g.vmem(f'buffer_load_dwordx4 v[{TAP+4*i}:{TAP+4*i+3}], v255, s[88:91], 0 offen offset:{16*i}', 'tap')
    g.vmem(f'buffer_load_dwordx4 v[{KR}:{KR+3}], v46, s[56:59], 0 offen', 'k')
    g.vmem(f'buffer_load_dwordx4 v[{KR+4}:{KR+7}], v45, s[56:59], 0 offen', 'k')
    g.vmem(f'buffer_load_dwordx4 v[{KR+8}:{KR+11}], v44, s[56:59], 0 offen', 'k')
    g.vmem(f'buffer_load_dwordx4 v[{KR+12}:{KR+15}], v254, s[56:59], 0 offen', 'k')
    g.vmem(f'buffer_load_dwordx4 v[{KR+16}:{KR+19}], v254, s[56:59], 0 offen offset:896', 'k')
    g.vmem(f'buffer_load_dwordx4 v[{VR}:{VR+3}], v254, s[84:87], 0 offen', 'v')
    g.vmem(f'buffer_load_dwordx4 v[{VR+4}:{VR+7}], v254, s[84:87], 0 offen offset:896', 'v')
    srd(a, 88, P_DBG, 0, 256)
    srd(a, 40, P_WS, 0, WS_SIZE + (0x100000 if PROF else 0))
    a('v_mov_b32 v0, 0')
    a('s_or_b32 s8, s2, s3')
    a('s_cmp_lg_u32 s8, 0')
    a('s_cbranch_scc1 NONCE_SKIP')
    a('s_memrealtime s[8:9]')
    a('s_waitcnt lgkmcnt(0)')
    a('s_or_b32 s8, s8, 1')
    a('v_mov_b32 v4, s8')
    a('buffer_store_dword v4, v0, s[88:91], 0 offen sc1')
    g.label('NONCE_SKIP')
    a('s_lshr_b32 s8, s3, 1')
    a('s_and_b32 s9, s3, 1')
    a('s_lshl_b32 s10, s2, 1')
    a('s_add_u32 s10, s10, s8')
    a('s_lshl_b32 s11, s10, 12')
    a(f's_mul_i32 s12, s8, {K2_CB}')
    a('s_lshl_b32 s13, s9, 11')
    a(f'v_add_u32 v{F_T16}, s13, v2')
    a(f'v_add_u32 v8, -16, v{F_T16}')
    srd(a, 44, P_SSMK, 's11', 4096)
    a('s_lshl_b32 s14, s2, 2')
    a('s_load_dword s15, s[26:27], s14')
    a('s_lshl_b32 s68, s7, 2')
    a('s_add_u32 s68, s68, s3')
    a('s_sub_u32 s69, 31, s6')
    a('s_lshl_b32 s80, s68, 16')
    a('s_lshl_b32 s70, s69, 7')
    a('s_add_u32 s80, s80, s70')
    a('s_lshl_b32 s81, s68, 5')
    a('s_add_u32 s81, s81, s69')
    a('s_lshl_b32 s81, s81, 3')
    a(f's_add_u32 s81, s81, {WS_KF}')
    a(f'v_lshrrev_b32 v{F_G4}, 4, v1')
    a('v_bfe_u32 v10, v1, 2, 2')
    a('v_and_b32 v11, 3, v1')
    a(f'v_lshl_add_u32 v12, v{F_G4}, 3, v10')
    a('v_mul_u32_u24 v12, 144, v12')
    a('v_lshl_add_u32 v12, v11, 3, v12')
    a('s_lshl_b32 s13, s3, 5')
    a(f's_add_u32 s13, s13, {K2_SCR}')
    a('v_add_u32 v12, s13, v12')
    a(f'v_and_b32 v{F_N15}, 15, v1')
    a(f'v_mul_u32_u24 v13, 144, v{F_N15}')
    a(f'v_lshl_add_u32 v13, v{F_G4}, 4, v13')
    a(f's_mul_i32 s13, s3, {RING}')
    a(f's_add_u32 s13, s13, {L_R0}')
    a('v_add_u32 v13, s13, v13')
    a('v_lshrrev_b32 v46, 3, v1')
    a('v_and_b32 v47, 7, v1')
    a('v_mul_u32_u24 v44, 144, v46')
    a('v_lshl_add_u32 v44, v47, 4, v44')
    a('v_add_u32 v76, s13, v44')
    a('v_lshlrev_b32 v46, 12, v46')
    a('v_lshl_add_u32 v77, v47, 4, v46')
    a('v_mov_b32 v254, v76')
    a('v_mov_b32 v255, v77')
    a('v_lshlrev_b32 v14, 1, v253')
    a('v_sub_u32 v14, 62, v14')
    a('v_mul_u32_u24 v14, 144, v14')
    a('v_lshl_add_u32 v14, v252, 4, v14')
    a(f'v_add_u32 v14, {K2_SCR}, v14')
    wg_map(a)
    a('v_and_b32 v3, 7, v1')
    a('v_lshrrev_b32 v6, 3, v1')
    a('v_xor_b32 v15, v3, v6')
    a('v_lshlrev_b32 v15, 4, v15')
    a('s_movk_i32 s13, 896')
    a('v_mad_u32_u24 v15, v6, s13, v15')
    a('s_lshl_b32 s71, s4, 3')
    a('s_add_u32 s71, s71, s3')
    a('s_mul_i32 s71, s71, 7168')
    a(f's_add_u32 s72, s71, {4*7168}')
    srd(a, 48, P_Q, 0, XBYTES)
    a('s_mov_b32 s60, 0x00003f80')
    a('s_mov_b32 s61, 0x3f800000')
    a('s_mov_b32 s62, 0x3f803f80')
    a('s_mov_b32 s63, 0x3b124925')
    a('s_mov_b32 s64, 0xffff0000')
    a('s_mov_b32 s65, 0xffff')
    a(f's_mov_b32 {SPIN}, 0')
    srd(a, 92, P_W1, 0, WBYTES)
    srd(a, 96, P_W2, 0, WBYTES)
    a('v_bfe_u32 v76, v1, 4, 1')
    a('v_lshlrev_b32 v76, 2, v76')
    a('v_xor_b32 v76, v76, v3')
    a('v_lshlrev_b32 v76, 4, v76')
    a('s_movk_i32 s13, 3584')
    a(f'v_mad_u32_u24 v{F_W1S}, v6, s13, v76')
    a('s_movk_i32 s13, 896')
    a(f'v_mad_u32_u24 v{F_W2S}, v6, s13, v76')
    a('s_lshl_b32 s56, s5, 9')
    a('s_lshl_b32 s13, s3, 7')
    a('s_add_u32 s56, s56, s13')
    a(f's_mul_i32 s57, s3, {448*896}')
    a('s_lshl_b32 s13, s5, 7')
    a('s_add_u32 s57, s57, s13')
    a(f's_mul_i32 s58, s3, {RING}')
    a(f's_add_u32 s58, s58, {L_R0}')
    a('s_lshl_b32 s59, s3, 11')
    a(f'v_and_b32 v76, 1, v{F_G4}')
    a('v_lshlrev_b32 v76, 5, v76')
    a('v_lshl_add_u32 v76, v11, 3, v76')
    a('v_lshl_add_u32 v76, v10, 7, v76')
    a('v_lshrrev_b32 v77, 1, v10')
    a('v_lshlrev_b32 v77, 6, v77')
    a('v_xor_b32 v78, 64, v77')
    a(f'v_lshrrev_b32 v79, 1, v{F_G4}')
    a('v_lshl_add_u32 v44, v79, 10, v76')
    a('v_lshl_add_u32 v45, v79, 9, v76')
    a(f'v_add3_u32 v{F_T1}, v44, v77, s58')
    a(f'v_add3_u32 v{F_T1+1}, v44, v78, s58')
    a(f'v_add3_u32 v{F_T2}, v45, v77, s58')
    a(f'v_add3_u32 v{F_T2+1}, v45, v78, s58')

    a('v_xor_b32 v78, v3, v6')
    a('v_lshl_add_u32 v78, v3, 3, v78')
    a('v_lshl_add_u32 v78, v78, 4, s58')
    g.w2s, g.w2t, g.fixw = F_W2S, F_T2, 252
    a('v_add_u32 v79, s58, v2')
    def qraw(s):
        for gi in range(7 * s, 7 * s + 7):
            r = XR(gi // 7) + 4 * (gi % 7)
            g.vmem(f'buffer_load_dwordx4 v[{r}:{r+3}], v15, s[48:51], s{71+gi//7} offen offset:{128*(gi%7)}', f'q{gi//7}')
    def qrd(s):
        g.vwait(f'q{s}')
        for i in range(7):
            r = XR(s) + 4 * i
            g.ds(f'ds_write_b128 v79, v[{r}:{r+3}] offset:{(7+i)*1024}', 'qw')
        g.lwait('qw')
        for i in range(7):
            r = XR(s) + 4 * i
            g.ds(f'ds_read_b128 v[{r}:{r+3}], v78 offset:{(7+i)*1024}', 'qr')
    g.qrd, g.qraw = qrd, qraw
    def w1raw(k, x):
        def f():
            r = w1_reg(x, k)
            g.vmem(f'buffer_load_dwordx4 a[{r}:{r+3}], v{F_W1S}, s[92:95], s56 offen', f'r1_{k}')
            a('s_add_u32 s56, s56, 28672')
        return f
    def w2raw(k, x):
        def f():
            kd, r = w2_loc(k, x)
            a(f's_add_u32 s13, s57, {7168*(2*k + x)}')
            g.vmem(f'buffer_load_dwordx4 {kd}[{r}:{r+3}], v{g.w2s}, s[96:99], s13 offen', f'r2_{k}')
        return f
    def w2l(k):
        def f():
            for blk in range(2):
                a(f's_add_u32 m0, s59, {(k-16)*8192 + blk*1024}')
                a(f's_add_u32 s13, s57, {7168*(2*k + blk)}')
                g.vmem(f'buffer_load_dwordx4 v{g.w2s}, s[96:99], s13 offen lds', 'w2l')
        return f
    def fix_w(mat, k, slot):
        def f():
            g.vwait(f'r{mat}_{k}')
            g.lwait(f'fx{slot}')
            for x in range(2):
                kd, r = ('a', w1_reg(x, k)) if mat == 1 else w2_loc(k, x)
                wa = 'v79' if mat == 1 else f'v{g.fixw}'
                g.ds(f'ds_write_b128 {wa}, {kd}[{r}:{r+3}] offset:{slot*2048 + 1024*x}', f'fw{mat}_{k}')
        return f
    def fix_r(mat, k, slot):
        def f():
            g.lwait(f'fw{mat}_{k}')
            for x in range(2):
                for hh in range(2):
                    if mat == 1:
                        r = w1_reg(x, k) + 2 * hh
                        g.ds(f'ds_read_b64_tr_b16 a[{r}:{r+1}], v{F_T1+x} offset:{slot*2048 + 512*hh}', f'fx{slot}')
                    else:
                        kd, r = w2_loc(k, x)
                        r += 2 * hh
                        g.ds(f'ds_read_b64_tr_b16 {kd}[{r}:{r+1}], v{g.w2t+x} offset:{slot*2048 + 1024*hh}', f'fx{slot}')
        return f
    g.fix_ok = lambda: (57 - len(g.fixq)) // 2 + 1 <= (56 - len(g.bg) - 12) // 2
    g.w1raw, g.w2raw, g.w2l, g.fix_w, g.fix_r = w1raw, w2raw, w2l, fix_w, fix_r
    for k in range(28):
        for x in range(2): g.bg.append(w1raw(k, x))
    g.fixq = deque()
    g.fix_w_done, g.fix_r_done = 0, 0
    def fw(k):
        def f(): fix_w(1, k, k % 3)(); g.fix_w_done = k + 1
        return f
    def fr(k):
        def f(): fix_r(1, k, k % 3)(); g.fix_r_done = k + 1
        return f
    for k in range(30):
        if k < 28: g.fixq.append(fw(k))
        if k >= 2: g.fixq.append(fr(k - 2))
    g.fix_ok = lambda: g.fix_w_done + 1 <= (56 - len(g.bg) - 12) // 2
    g.vwait('tap')
    for e in range(8):
        A, B = TAP + 2 * e, TAP + 2 * e + 1
        if e % 2 == 0:
            a(f'v_and_b32 v{MK+e}, s65, v{A}')
            a(f'v_lshrrev_b32 v{MK+8+e}, 16, v{A}')
            a(f'v_and_b32 v{MK+16+e}, s65, v{B}')
            a(f'v_lshrrev_b32 v{MK+24+e}, 16, v{B}')
        else:
            a(f'v_lshlrev_b32 v{MK+e}, 16, v{A}')
            a(f'v_and_b32 v{MK+8+e}, s64, v{A}')
            a(f'v_lshlrev_b32 v{MK+16+e}, 16, v{B}')
            a(f'v_and_b32 v{MK+24+e}, s64, v{B}')
    g.vwait('v')
    stamp(g, 1)
    g.vmem(f'buffer_load_dwordx4 v[{HH}:{HH+3}], v8, s[44:47], 0 offen', 'h0')
    g.vmem(f'buffer_load_dwordx4 v[{HH+4}:{HH+7}], v{F_T16}, s[44:47], 0 offen', 'h0')
    g.vmem(f'buffer_load_dwordx4 v[{HH+8}:{HH+11}], v{F_T16}, s[44:47], 0 offen offset:1008', 'h1')
    g.vmem(f'buffer_load_dwordx4 v[{HH+12}:{HH+15}], v{F_T16}, s[44:47], 0 offen offset:1024', 'h1')
    g.vmem('buffer_load_dword v252, v0, s[88:91], 0 offen sc1', 'nonce')
    for rr in range(2):
        K3, K2, K1, K0 = [KR + 4 * (rr + i) for i in range(4)]
        for e in range(8): a(f'v_dot2_f32_bf16 v{AC+e}, v{K3+e//2}, v{MK+24+e}, 0')
        for e in range(8): a(f'v_dot2_f32_bf16 v{PR+e}, v{K2+e//2}, v{MK+16+e}, 0')
        for Kx, m in ((K1, 8), (K0, 0), (None, None)):
            for e in range(8): a(f'v_cvt_pk_bf16_f32 v{AC+e}, v{AC+e}, v{PR+e}')
            if Kx is not None:
                for e in range(8): a(f'v_dot2_f32_bf16 v{PR+e}, v{Kx+e//2}, v{MK+m+e}, 0')
            for e in range(8): a(f'v_dot2_f32_bf16 v{AC+e}, v{AC+e}, s62, 0')
        for p in range(4): a(f'v_cvt_pk_bf16_f32 v{PR+p}, v{AC+2*p}, v{AC+2*p+1}')
        if rr == 0: g.vwait('v')
        for p in range(4):
            a(f'v_and_b32 v{AC+2*p}, s65, v{VR+4*rr+p}')
            a(f'v_and_b32 v{AC+2*p+1}, s64, v{VR+4*rr+p}')
        for e in range(8): a(f'v_dot2_f32_bf16 v{AC+e}, v{PR+e//2}, v{AC+e}, 0')
        for p in range(4): a(f'v_cvt_pk_bf16_f32 v{KO+4*rr+p}, v{AC+2*p}, v{AC+2*p+1}')
        g.ds(f'ds_write_b128 v14, v[{KO+4*rr}:{KO+4*rr+3}] offset:{144*(1-rr)}')
        if rr == 0:
            a('s_lshl_b32 s84, s2, 2')
            a('s_add_u32 s84, s84, s3')
            a('s_lshl_b32 s14, s84, 11')
            a('s_mul_i32 s84, s84, 1792')
            g.vmem(f'buffer_load_dwordx4 v[{TAP}:{TAP+3}], v2, s[92:95], s84 offen')
            g.vmem(f'buffer_load_dwordx4 v[{TAP+4}:{TAP+7}], v2, s[92:95], s84 offen offset:768')
            g.vmem(f'buffer_load_dwordx4 v[{TAP+8}:{TAP+11}], v2, s[48:51], s14 offen')
            g.vmem(f'buffer_load_dwordx4 v[{TAP+12}:{TAP+15}], v2, s[48:51], s14 offen offset:1024')
    g.barrier()
    for u in range(2):
        for hh in range(2):
            g.ds(f'ds_read_b64_tr_b16 v[{KO+4*u+2*hh}:{KO+4*u+2*hh+1}], v12 offset:{(32*u+4*hh)*144}', f'kt{u}')
    for u in range(2):
        g.lwait(f'kt{u}')
        g.ds(f'ds_write_b128 v13, v[{KO+4*u}:{KO+4*u+3}] offset:{64*u}', 'k2w')
    g.lwait('k2w')
    for u in range(2):
        g.ds(f'ds_read_b128 v[{KO+4*u}:{KO+4*u+3}], v254 offset:{8*144*u}', f'k2r{u}')
    a('s_add_u32 s13, s80, 32768')
    for u in range(2):
        g.lwait(f'k2r{u}')
        g.vmem(f'buffer_store_dwordx4 v[{KO+4*u}:{KO+4*u+3}], v255, {WSR}, {"s13" if u else "s80"} offen sc1', 'kst')
    stamp(g, 2)
    g.vwait('nonce')
    g.label('NONCE_P')
    a('v_readfirstlane_b32 s66, v252')
    a('s_cmp_lg_u32 s66, 0')
    a('s_cbranch_scc1 NONCE_D')
    a(f's_add_u32 {SPIN}, {SPIN}, 1')
    a(f's_cmp_gt_u32 {SPIN}, 0x40000')
    a('s_cbranch_scc1 NONCE_D')
    a('buffer_load_dword v252, v0, s[88:91], 0 offen sc1')
    a('s_waitcnt vmcnt(0)')
    a('s_branch NONCE_P')
    g.label('NONCE_D')
    a('s_not_b32 s67, s66')
    a('v_mov_b32 v4, s66')
    a('v_mov_b32 v5, s67')
    stamp(g, 24)
    a(f'v_add_u32 v{F_FB}, s12, v{F_T16}')
    for i in range(4): a(f'v_mov_b32 v{236+i}, 0')
    a(f'v_lshlrev_b32 v{F_VF}, 2, v3')
    a('s_mov_b32 s14, 0x1cb88541')
    a(f'v_lshrrev_b32 v{F_VF}, v{F_VF}, s14')
    a(f'v_and_b32 v{F_VF}, 15, v{F_VF}')
    a('v_mul_u32_u24 v252, 272, v3')
    a(f'v_add_u32 v{F_VF}, v{F_VF}, v252')
    a(f'v_lshl_add_u32 v{F_VF}, v{F_VF}, 4, s12')
    a('s_cmp_eq_u32 s9, 0')
    a('s_cbranch_scc0 CV_Z1')
    a('s_mov_b64 exec, 0xff')
    a(f'ds_write_b128 v{F_VF}, v[236:239]')
    a('s_mov_b64 exec, -1')
    a('s_branch CV_Z2')
    g.label('CV_Z1')
    a('v_add_u32 v252, s12, v2')
    a(f'ds_write_b128 v252, v[236:239] offset:{K2_G+4096}')
    g.label('CV_Z2')
    g.lg.issue()
    a('v_bfe_u32 v252, v1, 3, 1')
    a(f'v_add_u32 v252, v252, v{F_G4}')
    a(f'v_lshl_add_u32 v{F_VF}, v252, 4, v{F_VF}')
    a('s_lshl_b32 s14, s9, 8')
    a(f'v_add_u32 v{F_VF}, s14, v{F_VF}')
    a(f'v_lshlrev_b32 v{F_VG}, 5, v{F_N15}')
    a(f'v_lshlrev_b32 v252, 4, v{F_G4}')
    a(f'v_sub_u32 v{F_VG}, v252, v{F_VG}')
    a('s_add_u32 s14, s14, s12')
    a(f's_add_u32 s14, s14, {K2_G+480}')
    a(f'v_add_u32 v{F_VG}, s14, v{F_VG}')
    for p in range(2):
        d = HH + 8 * p
        t = FT + 20 * p
        g.vwait(f'h{p}')
        for k in range(6): a(f'v_mov_b32 v{t+k}, v{d+1+k}')
        for k in range(6): a(f'v_alignbyte_b32 v{t+6+k}, v{d+k+1}, v{d+k}, 2')
        for k in range(6): a(f'v_alignbyte_b32 v{t+12+k}, v{d+k+2}, v{d+k+1}, 2')
        src = {1: t + 6, 2: t, 3: t + 12, 4: d + 2, 5: t + 8, 6: t + 2, 7: t + 14, 8: d + 4}
        for r in range(1, 9):
            off = ((r - 1) * 272 + FC[r - 1] + 1) * 16 + 1024 * p
            g.ds(f'ds_write_b128 v{F_FB}, v[{src[r]}:{src[r]+3}] offset:{off}')
            if r in (3, 6) : g.pump(2)
    stamp(g, 25)
    publish(g, 'kst', [])
    stamp(g, 3)
    qraw(0)
    a('v_min_u32 v255, 15, v1')
    a('v_lshlrev_b32 v255, 3, v255')
    setup = ['s_lshr_b32 s82, s10, 4', 's_lshl_b32 s82, s82, 8', 's_lshl_b32 s14, s9, 7', 's_add_u32 s82, s82, s14',
             f's_add_u32 s82, s82, {WS_KF}']
    poll_issue(g, 'v255', setup, KO, 'kf')
    g.pump(10)
    g.qrd(0)
    stamp(g, 26)
    poll_check(g, 'KFP', 'v255', KO, 'kf')
    stamp(g, 4)
    g.vmem(f'buffer_load_dwordx4 v[{KO}:{KO+3}], v{F_T16}, {WSR}, s11 offen sc1', 'kv0')
    g.vmem(f'buffer_load_dwordx4 v[{KO+4}:{KO+7}], v{F_T16}, {WSR}, s11 offen offset:1024 sc1', 'kv1')
    qraw(1)
    g.lwait('qr')
    r = Rec(g); ln1_stats(r, 0, 80)
    for i, (_, f) in enumerate(r.items):
        f()
        if i % 20 == 19: g.pump(1)
        if i % 10 == 4 and g.fix_ok(): g.fixq.popleft()()
    stamp(g, 27)
    g.vwait('kv0')
    g.ds(f'ds_write_b128 v{F_FB}, v[{KO}:{KO+3}] offset:{K2_G}')
    g.vwait('kv1')
    g.ds(f'ds_write_b128 v{F_FB}, v[{KO+4}:{KO+7}] offset:{K2_G+1024}')
    g.barrier()
    stamp(g, 5)


def conv(g):
    a = g.a
    ACC = 80
    def Fr(b, s): return 112 + 64 * b + 4 * s
    def Gr(b, t): return 144 + 64 * b + 4 * t
    def reads(qq):
        b = qq & 1
        L = []
        for t in range(8):
            L.append((f'ds_read_b128 v[{Fr(b,t)}:{Fr(b,t)+3}], v{F_VF} offset:{512*t+64*qq}', f'c{qq}_{t}'))
            L.append((f'ds_read_b128 v[{Gr(b,t)}:{Gr(b,t)+3}], v{F_VG} offset:{512*(7-t)+64*qq}', f'c{qq}_{t}'))
        return L
    for l, tg in reads(0): g.ds(l, tg)
    if getattr(g, 'w2pt', True):
        g.vmem('buffer_load_dwordx4 v[44:47], v2, s[96:99], s84 offen')
        g.vmem('buffer_load_dwordx4 v[252:255], v2, s[96:99], s84 offen offset:768', 'pt2')
    started = set()
    nm = 0
    for qq in range(4):
        b = qq & 1
        nxt = reads(qq + 1) if qq < 3 else []
        for m in range(8):
            pairs = [(s, t) for s in range(m + 1) for t in range(m + 1) if max(s, t) == m and s + t <= 7]
            g.lwait(f'c{qq}_{m}')
            for (s, t) in pairs:
                o = ACC + 4 * (s + t)
                c = f'v[{o}:{o+3}]' if (s + t) in started else '0'
                started.add(s + t)
                a(f'v_mfma_f32_16x16x32_bf16 v[{o}:{o+3}], v[{Fr(b,s)}:{Fr(b,s)+3}], v[{Gr(b,t)}:{Gr(b,t)+3}], {c}')
                nm += 1
                if nxt and m >= 2:
                    l, tg = nxt.pop(0); g.ds(l, tg)
                if nm % CONV_PUMP == 0: g.pump(1)
                if nm % 3 == 2 and g.fixq and g.fix_ok(): g.fixq.popleft()()
        for l, tg in nxt: g.ds(l, tg)
    stamp(g, 6)
    g.vwait('pt2')
    a('s_lshl_b32 s14, s3, 12')
    a(f's_add_u32 s14, s14, {K2_SCR}')
    a('v_add_u32 v44, s14, v2')
    a('s_xor_b32 s14, s3, 1')
    a('s_lshl_b32 s14, s14, 12')
    a(f's_add_u32 s14, s14, {K2_SCR}')
    a('v_add_u32 v45, s14, v2')
    a('s_cmp_eq_u32 s9, 0')
    a('s_cbranch_scc0 CV_R1')
    for j in range(4):
        a(f'ds_write_b128 v44, v[{ACC+16+4*j}:{ACC+19+4*j}] offset:{1024*j}')
    a('s_branch CV_R2')
    g.label('CV_R1')
    for j in range(4):
        a(f'ds_write_b128 v44, v[{ACC+4*j}:{ACC+3+4*j}] offset:{1024*j}')
    for j in range(16):
        a(f'v_mov_b32 v{ACC+j}, v{ACC+16+j}')
    g.label('CV_R2')
    a(f'v_lshlrev_b32 v46, 5, v{F_N15}')
    a(f'v_lshl_add_u32 v46, v{F_G4}, 3, v46')
    a('s_lshl_b32 s14, s9, 11')
    a(f's_sub_u32 s14, {K2_G + 4088 - 3*512}, s14')
    a('s_add_u32 s14, s14, s12')
    a('v_sub_u32 v46, s14, v46')
    for j in range(4):
        a(f'ds_read_b64 v[{128+2*j}:{129+2*j}], v46 offset:{(3-j)*512}')
    a('s_lshl_b32 s14, s15, 16')
    a('s_and_b32 s15, s15, 0xffff0000')
    a('s_cmp_eq_u32 s8, 0')
    a('s_cselect_b32 s15, s14, s15')
    g.barrier()
    for j in range(4):
        g.ds(f'ds_read_b128 v[{112+4*j}:{115+4*j}], v45 offset:{1024*j}', f'r{j}')
    a('s_lshl_b32 s14, s9, 11')
    a('s_add_u32 s14, s14, s12')
    a(f'v_lshlrev_b32 v46, 5, v{F_N15}')
    a(f'v_lshl_add_u32 v46, v{F_G4}, 3, v46')
    a('v_add_u32 v46, s14, v46')
    a('v_add_u32 v44, s14, v2')
    a('s_lshl_b32 s14, s9, 4')
    a('v_add_u32 v47, s14, v6')
    a('v_mul_u32_u24 v47, 448, v47')
    a('v_add_u32 v47, s10, v47')
    a('v_lshlrev_b32 v47, 7, v47')
    a('v_lshl_add_u32 v47, v3, 4, v47')
    for j in range(4):
        g.lwait(f'r{j}')
        for r in range(4): a(f'v_add_f32 v{ACC+4*j+r}, v{ACC+4*j+r}, v{112+4*j+r}')
        k0, k1 = 128 + 2 * j, 129 + 2 * j
        a(f'v_and_b32 v144, s64, v{k1}')
        a(f'v_lshlrev_b32 v145, 16, v{k1}')
        a(f'v_and_b32 v146, s64, v{k0}')
        a(f'v_lshlrev_b32 v147, 16, v{k0}')
        for r in range(4): a(f'v_mul_f32 v{144+r}, s15, v{144+r}')
        for r in range(4): a(f'v_cvt_pk_bf16_f32 v{144+r}, v{144+r}, v{ACC+4*j+r}')
        for r in range(4): a(f'v_dot2_f32_bf16 v{144+r}, v{144+r}, s62, 0')
        a(f'v_cvt_pk_bf16_f32 v{148+2*j}, v144, v145')
        a(f'v_cvt_pk_bf16_f32 v{149+2*j}, v146, v147')
        g.ds(f'ds_write_b64 v46, v[{148+2*j}:{149+2*j}] offset:{512*j}', 'y3w')
    g.lwait('y3w')
    for u in range(2):
        g.ds(f'ds_read_b128 v[{112+4*u}:{115+4*u}], v44 offset:{1024*u}', f'y3r{u}')
    for u in range(2):
        g.lwait(f'y3r{u}')
        a(f's_mov_b32 s14, {WS_YB + u*8*448*128}')
        g.vmem(f'buffer_store_dwordx4 v[{112+4*u}:{115+4*u}], v47, {WSR}, s14 offen sc1', 'yst')


def setup_gemm(g):
    a = g.a
    a(f'v_min_u32 v{V_FL}, 27, v1')
    a(f'v_lshlrev_b32 v{V_FL}, 3, v{V_FL}')
    a(f'v_lshrrev_b32 v{V_XW}, 1, v6')
    a(f'v_lshlrev_b32 v{V_XW}, 10, v{V_XW}')
    a(f'v_and_b32 v{V_STW}, 1, v6')
    a(f'v_lshl_add_u32 v{V_XW}, v{V_STW}, 9, v{V_XW}')
    a(f'v_lshl_add_u32 v{V_XW}, v3, 4, v{V_XW}')
    a('s_lshl_b32 s70, s3, 7')
    a(f's_add_u32 s70, s70, {L_R0}')
    a(f'v_add_u32 v{V_XW}, s70, v{V_XW}')
    a('s_lshl_b32 s70, s3, 6')
    a(f's_add_u32 s70, s70, {L_ST}')
    a(f'v_lshl_add_u32 v{V_STW}, v3, 3, s70')
    a(f'v_add_u32 v{V_B}, {L_R0}, v2')
    a('s_lshl_b32 s70, s5, 2')
    a('s_add_u32 s70, s70, s3')
    a('s_lshl_b32 s70, s70, 10')
    a(f'v_add_u32 v{V_RES}, s70, v{V_B}')
    a(f'v_and_b32 v{V_STR}, 31, v1')
    a(f'v_mul_u32_u24 v{V_OST}, 896, v{V_STR}')
    a(f'v_lshlrev_b32 v{V_STR}, 3, v{V_STR}')
    a(f'v_add_u32 v{V_STR}, {L_ST}, v{V_STR}')
    a(f'v_lshrrev_b32 v{V_Q}, 5, v1')
    a('s_lshl_b32 s70, s3, 8')
    a(f's_add_u32 s70, s70, {L_CS}')
    a(f'v_lshl_add_u32 v{V_CS}, v{V_Q}, 6, s70')
    a('s_mul_i32 s70, s3, 6144')
    a(f'v_add_u32 v{V_RED}, s70, v{V_B}')
    a(f'v_bfe_u32 v{V_XST}, v1, 3, 2')
    a(f'v_mul_u32_u24 v{V_XST}, 7168, v{V_XST}')
    a(f'v_lshl_add_u32 v{V_XST}, v3, 4, v{V_XST}')
    a('s_lshl_b32 s70, s3, 1')
    a(f'v_add_u32 v{V_Q}, s70, v{V_Q}')
    a(f'v_lshl_add_u32 v{V_XST}, v{V_Q}, 7, v{V_XST}')
    a(f'v_lshl_add_u32 v{V_OST}, v{V_Q}, 4, v{V_OST}')
    a('s_lshl_b32 s69, s4, 8')
    a(f's_add_u32 s69, s69, {WS_OF}')
    a('s_lshl_b32 s76, s5, 2')
    a('s_add_u32 s76, s76, s3')
    a('s_lshl_b32 s75, s76, 12')
    a('s_lshl_b32 s76, s76, 3')
    a('s_add_u32 s76, s76, s69')
    a(f's_mul_i32 s77, s4, {224*1024}')
    a('s_add_u32 s75, s75, s77')
    a(f's_mul_i32 s70, s3, {28*1024}')
    a('s_add_u32 s77, s77, s70')
    a('s_mul_i32 s78, s4, 57344')
    a('s_lshl_b32 s70, s5, 7')
    a('s_add_u32 s79, s78, s70')
    a('s_lshl_b32 s70, s5, 10')
    a('s_add_u32 s78, s78, s70')
    srd(a, 52, P_OUT, 0, XBYTES)
    a(f'v_mul_u32_u24 v76, {YP}, v3')
    a('s_mul_i32 s70, s3, 1792')
    a('v_add_u32 v76, s70, v76')
    a('s_and_b32 s70, s3, 1')
    a('s_lshl_b32 s70, s70, 2')
    a('v_xor_b32 v77, s70, v6')
    a('v_xor_b32 v78, 4, v77')
    a('v_lshl_add_u32 v77, v77, 4, v76')
    a('v_lshl_add_u32 v78, v78, 4, v76')
    a('v_lshrrev_b32 v44, 4, v1')
    a('v_bfe_u32 v45, v1, 1, 1')
    a('v_lshl_add_u32 v45, v44, 1, v45')
    a('v_lshlrev_b32 v45, 7, v45')
    a('v_bfe_u32 v46, v1, 2, 2')
    a('v_lshl_add_u32 v45, v46, 4, v45')
    a('v_and_b32 v46, 1, v1')
    a('v_lshl_add_u32 v45, v46, 3, v45')
    a(f's_mul_i32 s70, s3, {YP}')
    a('v_add_u32 v45, s70, v45')
    a('v_and_b32 v44, 1, v44')
    a('v_lshlrev_b32 v44, 6, v44')
    a(f'v_add_u32 v{V_YT0}, v45, v44')
    a('v_xor_b32 v44, 64, v44')
    a(f'v_add_u32 v{V_YT1}, v45, v44')
    a('v_min_u32 v47, 55, v1')
    a('v_lshlrev_b32 v47, 4, v47')
    a(f'v_lshlrev_b32 v{V_Q}, 3, v1')
    a(f'v_mov_b32 v{V_C0}, v136')
    a(f'v_mov_b32 v{V_C1}, v137')


def pub_op(op): return [f's_add_u32 s81, s76, {opflag(op)}']
def poll_op(op): return [f's_add_u32 s82, s69, {opflag(op)}']


def main_kernel(asm):
    g = G(asm)
    a = g.a
    asm(kernel_header(KNAME))
    if PROF:
        a('s_memrealtime s[100:101]')
        a('v_mov_b32 v7, 0')
        a('s_waitcnt lgkmcnt(0)')
        a('v_writelane_b32 v7, s100, 62')
        a('s_getreg_b32 s100, hwreg(HW_REG_XCC_ID)')
        a('v_writelane_b32 v7, s100, 61')
        a('s_getreg_b32 s100, hwreg(HW_REG_HW_ID)')
        a('v_writelane_b32 v7, s100, 60')
        stamp(g, 0)
    load_args(asm)
    a('s_cmp_ge_u32 s2, 224')
    a('s_cbranch_scc1 MAIN_END')
    front(g)
    conv(g)
    stamp(g, 11)
    setup_late = True
    g.vwait('yst')
    g.barrier()
    a('s_mul_i32 s81, s9, 224')
    a('s_add_u32 s81, s81, s2')
    a('s_lshl_b32 s81, s81, 3')
    a(f's_add_u32 s81, s81, {WS_CF}')
    publish(g, 'yst', [])
    stamp(g, 7)
    g.pump(100)
    g.qrd(1)
    a(f'v_mov_b32 v{V_W2S}, v{F_W2S}')
    a('s_sub_u32 s70, s59, s58')
    a(f'v_add_u32 v136, s70, v{F_T2}')
    a(f'v_add_u32 v137, s70, v{F_T2+1}')
    setup_gemm(g)
    g.w2s, g.w2t, g.fixw = V_W2S, 126, 131
    cf_setup = ['s_lshr_b32 s82, s4, 4', 's_mul_i32 s82, s82, 1792', f's_add_u32 s82, s82, {WS_CF}']
    g.lwait('qr')
    r = Rec(g); ln1_stats(r, 1, 80)
    for i, (_, f) in enumerate(r.items):
        f()
        if i == 40: poll_issue(g, 'v47', cf_setup, 116, 'cf', wide=2)
        if i % 6 == 5 and g.fixq: g.fixq.popleft()()
    while g.fixq: g.fixq.popleft()()
    stamp(g, 8)
    poll_check(g, 'CFP', 'v47', 116, 'cf', wide=2)
    stamp(g, 9)
    a('s_mul_i32 s70, s4, 57344')
    a('s_mul_i32 s72, s3, 14336')
    a('s_add_u32 s70, s70, s72')
    a(f's_add_u32 s70, s70, {WS_YB}')
    YL = [80 + 4 * i for i in range(12)] + [132, 140]
    for i in range(14):
        r = YL[i]
        g.vmem(f'buffer_load_dwordx4 v[{r}:{r+3}], v2, {WSR}, s70 offen offset:{1024*(i%4)} sc1', f'yl{i}')
        if i % 4 == 3: a('s_add_u32 s70, s70, 4096')
    for k in range(12):
        for x in range(2): g.bg.append(g.w2raw(k, x))
    for k in (25, 26, 27): g.bg.append(g.w2l(k))
    g.pump(4)
    for i in range(14):
        r = YL[i]
        g.vwait(f'yl{i}')
        g.ds(f'ds_write_b128 {"v78" if (i>>1)&1 else "v77"}, v[{r}:{r+3}] offset:{128*i}')
    g.barrier()
    stamp(g, 10)
    y_tr(g, 0)
    for i in range(4): a(f'v_mov_b32 v{132+i}, s62')
    r = Rec(g); p3(r, 0, 0); g.add(r)
    for k in range(28):
        for ft2 in range(2):
            o = 224 + 16 * ft2
            c = f'v[{o}:{o+15}]' if k else '0'
            rr = w1_reg(ft2, k)
            a(f'v_mfma_f32_32x32x16_bf16 v[{o}:{o+15}], a[{rr}:{rr+3}], v[132:135], {c}')
            g.fill(99, 7)
        g.pump(1)
    g.flush()
    a('s_mov_b32 exec_lo, 1')
    a('s_mov_b32 exec_hi, 1')
    for q in range(8):
        g.ds(f'ds_write_b128 v{V_CS}, v[{224+4*q}:{227+4*q}] offset:{(q//4)*128 + (q%4)*16}')
    a('s_mov_b64 exec, -1')
    for layer in range(2):
        sb = 12 + 16 * layer
        g.barrier()
        stamp(g, sb)
        r = Rec(g)
        if layer == 0:
            y_tr(r, 1)
            r.barrier()
            for k in range(12, 16):
                for x in range(2): g.bg.append(g.w2raw(k, x))
            for k in range(16, 24): g.bg.append(g.w2l(k))
        else:
            r.vwait('x1')
        p3(r, layer, 1)
        g.add(r)
        m1(g, layer, 0, 7, bgp=1 if layer == 0 else 0, bg_from=4)
        stamp(g, sb + 1)
        g.flush()
        g.barrier()
        stamp(g, sb + 2)
        if layer == 0:
            a(f'v_add_u32 v126, {8*8192}, v{V_C0}')
            a(f'v_add_u32 v127, {8*8192}, v{V_C1}')
            a(f's_add_u32 s70, s59, {8*8192}')
            a('v_add_u32 v131, s70, v2')
            for k in range(16):
                g.bg.append(g.fix_w(2, k, 0))
                g.bg.append(g.fix_r(2, k, 0))
            def last():
                g.lwait('fx0')
                g.w2l(24)()
            g.bg.append(last)
        r = Rec(g)
        e1(r, layer, 0, 80)
        r.at(38); publish(r, 'hst0', pub_op(4 * layer))
        r.at(48); poll_issue(r, f'v{V_FL}', poll_op(4 * layer), 124, 'pf')
        g.add(r)
        m1(g, layer, 1, 6, bgp=2 if layer == 0 else 0)
        stamp(g, sb + 3)
        g.flush()
        g.pump(100)
        poll_check(g, f'PH{layer}0', f'v{V_FL}', 124, 'pf')
        stamp(g, sb + 4)
        e1(g, layer, 1, WT, plain=False)
        r = Rec(g)
        publish(r, 'hst1', pub_op(4 * layer + 1))
        r.at(36); poll_issue(r, f'v{V_FL}', poll_op(4 * layer + 1), 76, 'pf')
        g.add(r)
        m2(g, layer, 0, 5, 0)
        stamp(g, sb + 5)
        g.flush()
        e2_head(g, layer, 0)
        poll_check(g, f'PH{layer}1', f'v{V_FL}', 76, 'pf')
        if layer == 1:
            for k in range(NSL): h_load(g, layer, 1, k)
        e2_tail(g, layer, 0)
        stamp(g, sb + 6)
        r = Rec(g)
        if layer == 0:
            publish(r, 'xst0', pub_op(2))
            r.at(34); poll_issue(r, f'v{V_FL}', poll_op(2), 44, 'pf')
            r.at(50); poll_check(r, 'PX0', f'v{V_FL}', 44, 'pf')
            x_loads(r, 0)
        g.add(r)
        m2(g, layer, 1, 5, NSL if layer == 1 else 0)
        stamp(g, sb + 7)
        g.flush()
        e2_head(g, layer, 1)
        if layer == 0:
            st_loads(g, 0)
            y_loads(g, 0)
        e2_tail(g, layer, 1)
        stamp(g, sb + 8)
        if layer == 0:
            ln1_combine(g, 0)
            g.vwait('y0')
            stamp(g, sb + 9)
            def yb(e, i):
                if i < 4: return
                for ii in (range(5) if i == 4 else [i]):
                    def f(g, ii=ii):
                        g.a(f's_add_u32 s72, s71, {WS_YX + 4*7168 + 1024*ii}')
                        g.vmem(f'buffer_load_dwordx4 v[{YR+4*ii}:{YR+4*ii+3}], v2, {WSR}, s72 offen sc1', 'y1')
                    e.group(f)
            r = Rec(g); p3(r, 1, 0, plain=False, after_group=yb)
            for i, (_, f) in enumerate(r.items):
                f()
                if i == 150: publish(g, 'xst1', pub_op(3))
                if i == 260: poll_issue(g, f'v{V_FL}', poll_op(3), 76, 'pf')
            stamp(g, sb + 10)
            poll_check(g, 'PX1', f'v{V_FL}', 76, 'pf')
            st_loads(g, 1)
            x_loads(g, 1)
            ln1_combine(g, 1)
    if PROF:
        a('s_waitcnt vmcnt(0)')
        stamp(g, 40)
        a('s_memrealtime s[100:101]')
        a('s_waitcnt lgkmcnt(0)')
        a('v_writelane_b32 v7, s100, 63')
        a('s_lshl_b32 s70, s2, 2')
        a('s_add_u32 s70, s70, s3')
        a('s_lshl_b32 s70, s70, 8')
        a(f's_add_u32 s70, s70, {WS_PROF + 0x10000}')
        a('v_lshlrev_b32 v16, 2, v1')
        a(f'buffer_store_dword v7, v16, {WSR}, s70 offen')
    g.label('MAIN_END')
    a('s_endpgm')


def main(out):
    asm = Asm()
    main_kernel(asm)
    hdr = open(f'cdna_kernels/{NAME}.s.ref').read().split('; Override launch')[0]
    hdr += f"""; @launch grid=(224,1,1) block=(256,1,1) lds={LDS_BYTES}
.amdgcn_target "amdgcn-amd-amdhsa--gfx950"
.text
"""
    tail = '.section .rodata,"a"\n' + kernel_desc(KNAME, 512, sgpr=102, accum=256)
    open(out, 'w').write(hdr + asm.text() + tail)


if __name__ == '__main__':
    PROF = '--prof' in sys.argv
    main(sys.argv[1] if len(sys.argv) > 1 and not sys.argv[1].startswith('--') else f'cdna_kernels/{NAME}.s')
```

```python
import sys
import gen4
from gen4 import *

CODEPF = '--nopf' not in sys.argv
WS_PF = 0x803000
WS_W1F = 0xA00000
WS_W2F = 0xC00000
WS_XQ = 0xE00000
WS_SQ = 0x980000
PRE_SCR = 9216
PRE_LDS = PRE_SCR + 4 * 8192


def nonce_publish(g, tag):
    a = g.a
    a('s_or_b32 s8, s2, s3')
    a('s_cmp_lg_u32 s8, 0')
    a(f's_cbranch_scc1 {tag}_SKIP')
    a('s_memrealtime s[8:9]')
    a('s_waitcnt lgkmcnt(0)')
    a('s_or_b32 s8, s8, 1')
    a('v_mov_b32 v4, s8')
    a('v_mov_b32 v5, 0')
    a('s_mov_b64 exec, 1')
    a('buffer_atomic_cmpswap v[4:5], v0, s[88:91], 0 offen sc1')
    a('s_mov_b64 exec, -1')
    g.label(f'{tag}_SKIP')


def nonce_get(g, tag, t):
    a = g.a
    g.vwait('nonce')
    g.label(f'{tag}_P')
    a(f'v_readfirstlane_b32 s66, v{t}')
    a('s_cmp_lg_u32 s66, 0')
    a(f's_cbranch_scc1 {tag}_D')
    a(f's_add_u32 {SPIN}, {SPIN}, 1')
    a(f's_cmp_gt_u32 {SPIN}, 0x40000')
    a(f's_cbranch_scc1 {tag}_D')
    a(f'buffer_load_dword v{t}, v0, s[88:91], 0 offen sc1')
    a('s_waitcnt vmcnt(0)')
    a(f's_branch {tag}_P')
    g.label(f'{tag}_D')
    a('s_not_b32 s67, s66')
    a('v_mov_b32 v4, s66')
    a('v_mov_b32 v5, s67')


def consts(a):
    a('s_mov_b32 s60, 0x00003f80')
    a('s_mov_b32 s61, 0x3f800000')
    a('s_mov_b32 s62, 0x3f803f80')
    a('s_mov_b32 s63, 0x3b124925')
    a('s_mov_b32 s64, 0xffff0000')
    a('s_mov_b32 s65, 0xffff')
    a(f's_mov_b32 {SPIN}, 0')


def prof_begin(g):
    if not gen4.PROF: return
    a = g.a
    a('s_memrealtime s[100:101]')
    a('v_mov_b32 v7, 0')
    a('s_waitcnt lgkmcnt(0)')
    a('v_writelane_b32 v7, s100, 62')
    stamp(g, 0)


def prof_end(g, region):
    if not gen4.PROF: return
    a = g.a
    a('s_waitcnt vmcnt(0)')
    stamp(g, 40)
    a('s_memrealtime s[100:101]')
    a('s_waitcnt lgkmcnt(0)')
    a('v_writelane_b32 v7, s100, 63')
    a('s_lshl_b32 s70, s2, 2')
    a('s_add_u32 s70, s70, s3')
    a('s_lshl_b32 s70, s70, 8')
    a(f's_add_u32 s70, s70, {WS_PROF + region}')
    a('v_lshlrev_b32 v16, 2, v1')
    a(f'buffer_store_dword v7, v16, {WSR}, s70 offen')


def m1_jit(g, nfill):
    s = 0
    ACC = XR(s)
    def rd(k):
        sl = BR + 4 * (k % 2)
        g.ds(f'ds_read_b128 v[{sl}:{sl+3}], v{V_B} offset:{1024*k}', f'b{k}')
    rd(0)
    g.ds(f'ds_read_b128 v[8:11], v{V_RES}')
    g.ds(f'ds_read_b64 v[{V_ST}:{V_ST+1}], v{V_STR}')
    for i in range(4): g.a(f'v_mov_b32 v{BR+8+i}, s62')
    for k in range(28):
        if k + 1 < 28: rd(k + 1)
        g.wait2(f'w1_{k}', f'b{k}')
        sl = BR + 4 * (k % 2)
        for ft2 in range(2):
            r = w1_reg(ft2, k)
            for o, bb in ((ACC + 16 * ft2, sl), (224 + 16 * ft2, BR + 8)):
                c = f'v[{o}:{o+15}]' if k else '0'
                g.a(f'v_mfma_f32_32x32x16_bf16 v[{o}:{o+15}], a[{r}:{r+3}], v[{bb}:{bb+3}], {c}')
                g.fill(4 * k, nfill)
            g.pump(1)


def m1f(g, layer, s, bgp=0, bg_from=0):
    ACC = XR(s)
    def rd(n):
        sl = BR + 4 * (n % 3)
        g.ds(f'ds_read_b128 v[{sl}:{sl+3}], v{V_B} offset:{s*R_SZ + 1024*(n%28)}', f'b{n}')
    rd(0); rd(1)
    RES = 8 + 4 * s
    g.ds(f'ds_read_b128 v[{RES}:{RES+3}], v{V_RES} offset:{s*R_SZ}')
    g.ds(f'ds_read_b64 v[{V_ST+2*s}:{V_ST+2*s+1}], v{V_STR} offset:{s*256}')
    for n in range(56):
        ft2, k = divmod(n, 28)
        if n == 29:
            r = Rec(g); e1(r, layer, s, 108, halves=(0,)); g.add(r)
        if n + 2 < 56: rd(n + 2)
        g.lwait(f'b{n}')
        sl = BR + 4 * (n % 3)
        o = ACC + 16 * ft2
        c = f'v[{o}:{o+15}]' if k else '0'
        r = w1_reg(ft2, k)
        g.a(f'v_mfma_f32_32x32x16_bf16 v[{o}:{o+15}], a[{r}:{r+3}], v[{sl}:{sl+3}], {c}')
        g.fill(n, 4)
        if n >= bg_from and n % 2 == 0: g.pump(bgp)
    g.flush()
    e1(g, layer, s, 108, plain=False, halves=(1,))


def m2b(g, layer, s, nfill, first_issued):
    ACC = XR(s)
    for k in range(first_issued, NSL): h_load(g, layer, s, k)
    def rdw(k):
        if k == 24: g.a(f'v_add_u32 v{V_C0}, 0x10000, v{V_C0}')
        for dt in range(2):
            r = WT + 8 * (k % 2) + 4 * dt
            g.ds(f'ds_read_b128 v[{r}:{r+3}], v{V_C0} offset:{8192*((k-16)%8) + 1024*dt}', f'w{k}')
    for k in range(28):
        if k in (14, 15): rdw(k + 2)
        g.wait2(f'h{s}_{k}', f'w{k}' if k >= 16 else None)
        sl = h_slot(s, k)
        for dt in range(2):
            o = ACC + 16 * dt
            c = f'v[{o}:{o+15}]' if k else '0'
            kind, r = w2_loc(k, dt)
            if kind == 'l': kind, r = 'v', WT + 8 * (k % 2) + 4 * dt
            g.a(f'v_mfma_f32_32x32x16_bf16 v[{o}:{o+15}], {kind}[{r}:{r+3}], v[{sl}:{sl+3}], {c}')
            g.fill(2 * k + dt, nfill)
        if k + NSL < 28: h_load(g, layer, s, k + NSL)
        if 16 <= k and k + 2 < 28: rdw(k + 2)
    g.a(f'v_subrev_u32 v{V_C0}, 0x10000, v{V_C0}')


def main_kernel(asm):
    g = G(asm)
    a = g.a
    asm(kernel_header(KNAME))
    prof_begin(g)
    load_args(asm)
    a('s_cmp_ge_u32 s2, 224')
    a('s_cbranch_scc1 MAIN_END')
    if CODEPF:
        a('s_getpc_b64 s[86:87]')
        g.label('PPF_PC')
        a('v_lshlrev_b32 v71, 7, v0')
        a('global_load_dword v72, v71, s[86:87]')
        a('v_add_u32 v71, 0x8000, v71')
        a('v_cmp_gt_u32 vcc, MAIN_END-PPF_PC, v71')
        a('s_and_saveexec_b64 s[78:79], vcc')
        a('s_cbranch_execz PPF_S')
        a('global_load_dword v72, v71, s[86:87]')
        g.label('PPF_S')
        a('s_mov_b64 exec, -1')
    MK, AC, PR, KO, TAP, KR, VR, HH, FT = 80, 112, 120, 128, 136, 152, 172, 180, 196
    a('v_and_b32 v1, 63, v0')
    a('v_lshrrev_b32 v2, 6, v0')
    a('v_readfirstlane_b32 s3, v2')
    a(f's_mul_hi_u32 s6, s2, {magic(7)}')
    a('s_mul_i32 s7, s6, 7')
    a('s_sub_u32 s7, s2, s7')
    a('v_and_b32 v252, 7, v0')
    a('v_lshrrev_b32 v253, 3, v0')
    a('s_lshl_b32 s8, s6, 6')
    a('v_lshl_add_u32 v254, v253, 1, s8')
    a('s_movk_i32 s8, 896')
    a('v_mul_lo_u32 v254, v254, s8')
    a('s_lshl_b32 s8, s7, 7')
    a('v_lshl_add_u32 v255, v252, 4, s8')
    a('v_add_u32 v254, v254, v255')
    a('v_add_u32 v44, -896, v254')
    a('v_add_u32 v45, -1792, v254')
    a('v_add_u32 v46, -2688, v254')
    a('v_lshlrev_b32 v255, 2, v255')
    a('v_lshlrev_b32 v2, 4, v1')
    a('s_waitcnt lgkmcnt(0)')
    srd(a, 88, P_SHK, 0, 448 * 8)
    srd(a, 56, P_K, 0, XBYTES)
    srd(a, 84, P_V, 0, XBYTES)
    for i in range(4):
        g.vmem(f'buffer_load_dwordx4 v[{TAP+4*i}:{TAP+4*i+3}], v255, s[88:91], 0 offen offset:{16*i}', 'tap')
    g.vmem(f'buffer_load_dwordx4 v[{KR}:{KR+3}], v46, s[56:59], 0 offen', 'k')
    g.vmem(f'buffer_load_dwordx4 v[{KR+4}:{KR+7}], v45, s[56:59], 0 offen', 'k')
    g.vmem(f'buffer_load_dwordx4 v[{KR+8}:{KR+11}], v44, s[56:59], 0 offen', 'k')
    g.vmem(f'buffer_load_dwordx4 v[{KR+12}:{KR+15}], v254, s[56:59], 0 offen', 'k')
    g.vmem(f'buffer_load_dwordx4 v[{KR+16}:{KR+19}], v254, s[56:59], 0 offen offset:896', 'k')
    g.vmem(f'buffer_load_dwordx4 v[{VR}:{VR+3}], v254, s[84:87], 0 offen', 'v')
    g.vmem(f'buffer_load_dwordx4 v[{VR+4}:{VR+7}], v254, s[84:87], 0 offen offset:896', 'v')
    stamp(g, 41)
    srd(a, 88, P_DBG, 0, 256)
    srd(a, 40, P_WS, 0, WS_SIZE + (0x100000 if gen4.PROF else 0))
    a('v_mov_b32 v0, 0')
    nonce_publish(g, 'PN')
    a('s_lshr_b32 s8, s3, 1')
    a('s_and_b32 s9, s3, 1')
    a('s_lshl_b32 s10, s2, 1')
    a('s_add_u32 s10, s10, s8')
    a('s_lshl_b32 s11, s10, 12')
    a(f's_mul_i32 s12, s8, {K2_CB}')
    a('s_lshl_b32 s13, s9, 11')
    a(f'v_add_u32 v{F_T16}, s13, v2')
    a(f'v_add_u32 v77, -16, v{F_T16}')
    srd(a, 44, P_SSMK, 's11', 4096)
    a('s_lshl_b32 s14, s2, 2')
    a('s_load_dword s15, s[26:27], s14')
    a('s_lshl_b32 s68, s7, 2')
    a('s_add_u32 s68, s68, s3')
    a('s_sub_u32 s69, 31, s6')
    a('s_lshl_b32 s80, s68, 16')
    a('s_lshl_b32 s70, s69, 7')
    a('s_add_u32 s80, s80, s70')
    a('s_lshl_b32 s81, s68, 5')
    a('s_add_u32 s81, s81, s69')
    a('s_lshl_b32 s81, s81, 3')
    a(f's_add_u32 s81, s81, {WS_KF}')
    a(f'v_lshrrev_b32 v{F_G4}, 4, v1')
    a('v_bfe_u32 v48, v1, 2, 2')
    a('v_and_b32 v49, 3, v1')
    a(f'v_lshl_add_u32 v50, v{F_G4}, 3, v48')
    a('v_mul_u32_u24 v50, 144, v50')
    a('v_lshl_add_u32 v50, v49, 3, v50')
    a('s_lshl_b32 s13, s3, 5')
    a(f's_add_u32 s13, s13, {K2_SCR}')
    a('v_add_u32 v50, s13, v50')
    a(f'v_and_b32 v{F_N15}, 15, v1')
    a('s_lshl_b32 s58, s3, 13')
    a(f's_add_u32 s58, s58, {L_R0}')
    a(f'v_mul_u32_u24 v51, 144, v{F_N15}')
    a(f'v_lshl_add_u32 v51, v{F_G4}, 4, v51')
    a('v_add_u32 v51, s58, v51')
    a('v_and_b32 v3, 7, v1')
    a('v_lshrrev_b32 v6, 3, v1')
    a('v_mul_u32_u24 v52, 144, v6')
    a('v_lshl_add_u32 v52, v3, 4, v52')
    a('v_add_u32 v52, s58, v52')
    a('v_lshlrev_b32 v53, 12, v6')
    a('v_lshl_add_u32 v53, v3, 4, v53')
    a('v_lshlrev_b32 v54, 1, v253')
    a('v_sub_u32 v54, 62, v54')
    a('v_mul_u32_u24 v54, 144, v54')
    a('v_lshl_add_u32 v54, v252, 4, v54')
    a(f'v_add_u32 v54, {K2_SCR}, v54')
    consts(a)
    srd(a, 92, P_W1, 0, WBYTES)
    srd(a, 96, P_W2, 0, WBYTES)
    srd(a, 48, P_Q, 0, XBYTES)
    a('s_lshl_b32 s84, s2, 2')
    a('s_add_u32 s84, s84, s3')
    a('v_bfe_u32 v55, v1, 4, 1')
    a('v_lshlrev_b32 v55, 2, v55')
    a('v_xor_b32 v55, v55, v3')
    a('v_lshlrev_b32 v55, 4, v55')
    a('s_movk_i32 s13, 3584')
    a('v_mad_u32_u24 v56, v6, s13, v55')
    a('s_movk_i32 s13, 896')
    a('v_mad_u32_u24 v57, v6, s13, v55')
    a(f's_mul_hi_u32 s72, s84, {magic(28)}')
    a('s_mul_i32 s73, s72, 28')
    a('s_sub_u32 s73, s84, s73')
    a(f's_mul_i32 s74, s72, {16*3584}')
    a('s_lshl_b32 s13, s73, 7')
    a('s_add_u32 s74, s74, s13')
    a('s_mul_i32 s75, s73, 56')
    a('s_add_u32 s75, s75, s72')
    a('s_lshl_b32 s75, s75, 10')
    a(f's_add_u32 s75, s75, {WS_W1F}')
    a(f's_mul_hi_u32 s72, s84, {magic(7)}')
    a('s_mul_i32 s73, s72, 7')
    a('s_sub_u32 s73, s84, s73')
    a(f's_mul_i32 s76, s72, {16*896}')
    a('s_lshl_b32 s13, s73, 7')
    a('s_add_u32 s76, s76, s13')
    a('s_mul_i32 s77, s73, 224')
    a('s_add_u32 s77, s77, s72')
    a('s_lshl_b32 s77, s77, 10')
    a(f's_add_u32 s77, s77, {WS_W2F}')
    a(f'v_and_b32 v58, 1, v{F_G4}')
    a('v_lshlrev_b32 v58, 5, v58')
    a('v_lshl_add_u32 v58, v49, 3, v58')
    a('v_lshl_add_u32 v58, v48, 7, v58')
    a('v_lshrrev_b32 v59, 1, v48')
    a('v_lshlrev_b32 v59, 6, v59')
    a('v_xor_b32 v60, 64, v59')
    a(f'v_lshrrev_b32 v61, 1, v{F_G4}')
    a('v_lshl_add_u32 v62, v61, 10, v58')
    a('v_lshl_add_u32 v63, v61, 9, v58')
    a('v_add3_u32 v64, v62, v59, s58')
    a('v_add3_u32 v65, v62, v60, s58')
    a('v_add3_u32 v66, v63, v59, s58')
    a('v_add3_u32 v67, v63, v60, s58')
    a('v_add_u32 v68, s58, v2')
    a('v_xor_b32 v69, v3, v6')
    a('v_lshlrev_b32 v70, 4, v69')
    a('s_movk_i32 s13, 896')
    a('v_mad_u32_u24 v70, v6, s13, v70')
    a('v_lshl_add_u32 v69, v3, 3, v69')
    a('v_lshl_add_u32 v69, v69, 4, s58')
    WR = 72 if False else 216
    stamp(g, 42)
    g.vwait('tap')
    for e in range(8):
        A, B = TAP + 2 * e, TAP + 2 * e + 1
        if e % 2 == 0:
            a(f'v_and_b32 v{MK+e}, s65, v{A}')
            a(f'v_lshrrev_b32 v{MK+8+e}, 16, v{A}')
            a(f'v_and_b32 v{MK+16+e}, s65, v{B}')
            a(f'v_lshrrev_b32 v{MK+24+e}, 16, v{B}')
        else:
            a(f'v_lshlrev_b32 v{MK+e}, 16, v{A}')
            a(f'v_and_b32 v{MK+8+e}, s64, v{A}')
            a(f'v_lshlrev_b32 v{MK+16+e}, 16, v{B}')
            a(f'v_and_b32 v{MK+24+e}, s64, v{B}')
    g.vwait('v')
    stamp(g, 1)
    g.vmem('buffer_load_dword v252, v0, s[88:91], 0 offen sc1', 'nonce')
    g.vmem(f'buffer_load_dwordx4 v[{HH}:{HH+3}], v77, s[44:47], 0 offen', 'h0')
    g.vmem(f'buffer_load_dwordx4 v[{HH+4}:{HH+7}], v{F_T16}, s[44:47], 0 offen', 'h0')
    g.vmem(f'buffer_load_dwordx4 v[{HH+8}:{HH+11}], v{F_T16}, s[44:47], 0 offen offset:1008', 'h1')
    g.vmem(f'buffer_load_dwordx4 v[{HH+12}:{HH+15}], v{F_T16}, s[44:47], 0 offen offset:1024', 'h1')
    for rr in range(2):
        K3, K2, K1, K0 = [KR + 4 * (rr + i) for i in range(4)]
        for e in range(8): a(f'v_dot2_f32_bf16 v{AC+e}, v{K3+e//2}, v{MK+24+e}, 0')
        for e in range(8): a(f'v_dot2_f32_bf16 v{PR+e}, v{K2+e//2}, v{MK+16+e}, 0')
        for Kx, m in ((K1, 8), (K0, 0), (None, None)):
            for e in range(8): a(f'v_cvt_pk_bf16_f32 v{AC+e}, v{AC+e}, v{PR+e}')
            if Kx is not None:
                for e in range(8): a(f'v_dot2_f32_bf16 v{PR+e}, v{Kx+e//2}, v{MK+m+e}, 0')
            for e in range(8): a(f'v_dot2_f32_bf16 v{AC+e}, v{AC+e}, s62, 0')
        for p in range(4): a(f'v_cvt_pk_bf16_f32 v{PR+p}, v{AC+2*p}, v{AC+2*p+1}')
        for p in range(4):
            a(f'v_and_b32 v{AC+2*p}, s65, v{VR+4*rr+p}')
            a(f'v_and_b32 v{AC+2*p+1}, s64, v{VR+4*rr+p}')
        for e in range(8): a(f'v_dot2_f32_bf16 v{AC+e}, v{PR+e//2}, v{AC+e}, 0')
        for p in range(4): a(f'v_cvt_pk_bf16_f32 v{KO+4*rr+p}, v{AC+2*p}, v{AC+2*p+1}')
        g.ds(f'ds_write_b128 v54, v[{KO+4*rr}:{KO+4*rr+3}] offset:{144*(1-rr)}')
    g.barrier()
    for u in range(2):
        for hh in range(2):
            g.ds(f'ds_read_b64_tr_b16 v[{KO+4*u+2*hh}:{KO+4*u+2*hh+1}], v50 offset:{(32*u+4*hh)*144}', f'kt{u}')
    for u in range(2):
        g.lwait(f'kt{u}')
        g.ds(f'ds_write_b128 v51, v[{KO+4*u}:{KO+4*u+3}] offset:{64*u}', 'k2w')
    g.lwait('k2w')
    for u in range(2):
        g.ds(f'ds_read_b128 v[{KO+4*u}:{KO+4*u+3}], v52 offset:{8*144*u}', f'k2r{u}')
    a('s_add_u32 s13, s80, 32768')
    for u in range(2):
        g.lwait(f'k2r{u}')
        g.vmem(f'buffer_store_dwordx4 v[{KO+4*u}:{KO+4*u+3}], v53, {WSR}, {"s13" if u else "s80"} offen sc1', 'kst')
    stamp(g, 2)
    nonce_get(g, 'PN', 252)
    publish(g, 'kst', [])
    stamp(g, 24)
    a(f's_add_u32 s13, s74, {8*3584}')
    g.vmem(f'buffer_load_dwordx4 v[{WR}:{WR+3}], v56, s[92:95], s74 offen', 'wr')
    g.vmem(f'buffer_load_dwordx4 v[{WR+4}:{WR+7}], v56, s[92:95], s13 offen', 'wr')
    a(f's_add_u32 s13, s76, {8*896}')
    g.vmem(f'buffer_load_dwordx4 v[{WR+8}:{WR+11}], v57, s[96:99], s76 offen', 'wr')
    g.vmem(f'buffer_load_dwordx4 v[{WR+12}:{WR+15}], v57, s[96:99], s13 offen', 'wr')
    g.vwait('h1')
    a(f'v_add_u32 v{F_FB}, s12, v{F_T16}')
    for i in range(4): a(f'v_mov_b32 v{236+i}, 0')
    a(f'v_lshlrev_b32 v{F_VF}, 2, v3')
    a('s_mov_b32 s14, 0x1cb88541')
    a(f'v_lshrrev_b32 v{F_VF}, v{F_VF}, s14')
    a(f'v_and_b32 v{F_VF}, 15, v{F_VF}')
    a('v_mul_u32_u24 v252, 272, v3')
    a(f'v_add_u32 v{F_VF}, v{F_VF}, v252')
    a(f'v_lshl_add_u32 v{F_VF}, v{F_VF}, 4, s12')
    a('s_cmp_eq_u32 s9, 0')
    a('s_cbranch_scc0 CV_Z1')
    a('s_mov_b64 exec, 0xff')
    a(f'ds_write_b128 v{F_VF}, v[236:239]')
    a('s_mov_b64 exec, -1')
    a('s_branch CV_Z2')
    g.label('CV_Z1')
    a('v_add_u32 v252, s12, v2')
    a(f'ds_write_b128 v252, v[236:239] offset:{K2_G+4096}')
    g.label('CV_Z2')
    g.lg.issue()
    a('v_bfe_u32 v252, v1, 3, 1')
    a(f'v_add_u32 v252, v252, v{F_G4}')
    a(f'v_lshl_add_u32 v{F_VF}, v252, 4, v{F_VF}')
    a('s_lshl_b32 s14, s9, 8')
    a(f'v_add_u32 v{F_VF}, s14, v{F_VF}')
    a(f'v_lshlrev_b32 v{F_VG}, 5, v{F_N15}')
    a(f'v_lshlrev_b32 v252, 4, v{F_G4}')
    a(f'v_sub_u32 v{F_VG}, v252, v{F_VG}')
    a('s_add_u32 s14, s14, s12')
    a(f's_add_u32 s14, s14, {K2_G+480}')
    a(f'v_add_u32 v{F_VG}, s14, v{F_VG}')
    for p in range(2):
        d = HH + 8 * p
        t = FT if p == 0 else MK
        for k in range(6): a(f'v_mov_b32 v{t+k}, v{d+1+k}')
        for k in range(6): a(f'v_alignbyte_b32 v{t+6+k}, v{d+k+1}, v{d+k}, 2')
        for k in range(6): a(f'v_alignbyte_b32 v{t+12+k}, v{d+k+2}, v{d+k+1}, 2')
        src = {1: t + 6, 2: t, 3: t + 12, 4: d + 2, 5: t + 8, 6: t + 2, 7: t + 14, 8: d + 4}
        for r in range(1, 9):
            off = ((r - 1) * 272 + FC[r - 1] + 1) * 16 + 1024 * p
            g.ds(f'ds_write_b128 v{F_FB}, v[{src[r]}:{src[r]+3}] offset:{off}')
    stamp(g, 3)
    a('v_min_u32 v255, 15, v1')
    a('v_lshlrev_b32 v255, 3, v255')
    setup = ['s_lshr_b32 s82, s10, 4', 's_lshl_b32 s82, s82, 8', 's_lshl_b32 s14, s9, 7', 's_add_u32 s82, s82, s14',
             f's_add_u32 s82, s82, {WS_KF}']
    poll_issue(g, 'v255', setup, KO, 'kf')
    wg_map(a)
    a('s_lshl_b32 s71, s4, 3')
    a('s_add_u32 s71, s71, s3')
    a('s_lshl_b32 s73, s71, 6')
    a(f's_add_u32 s73, s73, {WS_SQ}')
    a('s_mul_i32 s71, s71, 7168')
    a('v_lshlrev_b32 v76, 3, v3')
    a('s_lshl_b32 s56, s5, 3')
    a('s_lshl_b32 s13, s3, 1')
    a('s_add_u32 s56, s56, s13')
    a(f's_mul_i32 s56, s56, {28*1024}')
    a(f's_add_u32 s56, s56, {WS_W1F}')
    a('s_mul_i32 s57, s5, 224')
    a('s_mul_i32 s13, s3, 28')
    a('s_add_u32 s57, s57, s13')
    a('s_lshl_b32 s57, s57, 10')
    a(f's_add_u32 s57, s57, {WS_W2F}')
    a('s_lshl_b32 s59, s3, 11')
    def w1ld(k, x):
        def f():
            r = w1_reg(x, k)
            a(f's_add_u32 s13, s56, {(28*x + (k//4)*4)*1024}')
            g.vmem(f'buffer_load_dwordx4 a[{r}:{r+3}], v2, {WSR}, s13 offen offset:{1024*(k%4)} sc1', f'w1_{k}')
        return f
    def w2ld(k, x):
        def f():
            kd, r = w2_loc(k, x)
            if kd == 'l':
                a(f's_add_u32 m0, s59, {(k-16)*8192 + x*1024}')
                a(f's_add_u32 s13, s57, {(112*x + k)*1024}')
                g.vmem(f'buffer_load_dwordx4 v2, {WSR}, s13 offen sc1 lds', 'w2')
            else:
                a(f's_add_u32 s13, s57, {(112*x + (k//4)*4)*1024}')
                g.vmem(f'buffer_load_dwordx4 {kd}[{r}:{r+3}], v2, {WSR}, s13 offen offset:{1024*(k%4)} sc1', 'w2')
        return f
    def xld(s, i):
        def f():
            a(f's_add_u32 s13, s71, {WS_XQ + s*4*7168 + 1024*i}')
            g.vmem(f'buffer_load_dwordx4 v[{XR(s)+4*i}:{XR(s)+4*i+3}], v2, {WSR}, s13 offen sc1', f'x{s}')
        return f
    for k in range(28):
        for x in range(2): g.bg.append(w1ld(k, x))
    poll_check(g, 'KFP', 'v255', KO, 'kf')
    stamp(g, 4)
    g.vmem(f'buffer_load_dwordx4 v[{KO}:{KO+3}], v{F_T16}, {WSR}, s11 offen sc1', 'kv0')
    g.vmem(f'buffer_load_dwordx4 v[{KO+4}:{KO+7}], v{F_T16}, {WSR}, s11 offen offset:1024 sc1', 'kv1')
    g.vwait('wr')
    for i in range(4):
        g.ds(f'ds_write_b128 v68, v[{WR+4*i}:{WR+4*i+3}] offset:{4096+1024*i}', 'ww')
    g.lwait('ww')
    for x in range(2):
        for hh in range(2):
            g.ds(f'ds_read_b64_tr_b16 v[{WR+4*x+2*hh}:{WR+4*x+2*hh+1}], v{64+x} offset:{4096+512*hh}', 'wt')
            g.ds(f'ds_read_b64_tr_b16 v[{WR+8+4*x+2*hh}:{WR+8+4*x+2*hh+1}], v{66+x} offset:{4096+2048+1024*hh}', 'wt')
    a('s_cmp_ge_u32 s84, 784')
    a('s_cselect_b32 s75, 0x7ff00000, s75')
    a('s_cselect_b32 s77, 0x7ff00000, s77')
    a(f's_add_u32 s13, s75, {28*1024}')
    a(f's_add_u32 s14, s77, {112*1024}')
    g.lwait('wt')
    g.vmem(f'buffer_store_dwordx4 v[{WR}:{WR+3}], v2, {WSR}, s75 offen sc1', 'wst')
    g.vmem(f'buffer_store_dwordx4 v[{WR+4}:{WR+7}], v2, {WSR}, s13 offen sc1', 'wst')
    g.vmem(f'buffer_store_dwordx4 v[{WR+8}:{WR+11}], v2, {WSR}, s77 offen sc1', 'wst')
    g.vmem(f'buffer_store_dwordx4 v[{WR+12}:{WR+15}], v2, {WSR}, s14 offen sc1', 'wst')
    a('s_lshl_b32 s14, s84, 11')
    g.vmem('buffer_load_dwordx4 v[16:19], v2, s[48:51], s14 offen')
    g.vmem('buffer_load_dwordx4 v[20:23], v2, s[48:51], s14 offen offset:1024')
    g.vwait('kv0')
    g.ds(f'ds_write_b128 v{F_FB}, v[{KO}:{KO+3}] offset:{K2_G}')
    g.vwait('kv1')
    g.ds(f'ds_write_b128 v{F_FB}, v[{KO+4}:{KO+7}] offset:{K2_G+1024}')
    a('v_mov_b32 v254, v70')
    a('v_mov_b32 v253, v69')
    a('v_mov_b32 v79, v68')
    a('v_min_u32 v252, 55, v1')
    a('v_lshlrev_b32 v252, 4, v252')
    g.barrier()
    stamp(g, 5)
    g.fixq = deque()
    g.w2pt = False
    a(f's_add_u32 s72, s71, {4*7168}')
    def qraw(s, i):
        def f():
            r = XR(s) + 4 * i
            g.vmem(f'buffer_load_dwordx4 v[{r}:{r+3}], v254, s[48:51], s{71+s} offen offset:{128*i}', f'q{s}')
        return f
    held = g.bg
    nop = lambda: None
    def pfpub():
        g.vwait('wst')
        a('s_barrier')
        a('s_lshl_b32 s81, s2, 3')
        a(f's_add_u32 s81, s81, {WS_PF}')
        a('s_cmp_lg_u32 s3, 0')
        publish(g, 'none', [], only='s_cselect_b32 s81, 0x7ff00000, s81')
    def pfissue(): poll_issue(g, 'v252', [f's_mov_b32 s82, {WS_PF}'], 68, 'pfl', wide=2)
    def pfcheck():
        poll_check(g, 'PFP', 'v252', 68, 'pfl', wide=2)
        g.bg.extend([qraw(1, i) for i in range(2, 7)])
        g.bg.extend(held)
        g.pump(8)
    g.bg = deque([nop] * 4 + [qraw(0, i) for i in range(7)] + [qraw(1, i) for i in range(2)] + [nop] * 14 + [pfpub])
    conv(g)
    stamp(g, 11)
    assert not g.bg
    a('v_add_u32 v136, s59, v2')
    a('v_mov_b32 v137, v136')
    setup_gemm(g)
    g.vwait('yst')
    g.barrier()
    a('s_mul_i32 s81, s9, 224')
    a('s_add_u32 s81, s81, s2')
    a('s_lshl_b32 s81, s81, 3')
    a(f's_add_u32 s81, s81, {WS_CF}')
    a('s_cmp_lg_u32 s8, 0')
    publish(g, 'yst', [], only='s_cselect_b32 s81, 0x7ff00000, s81')
    stamp(g, 7)
    pfissue()
    g.vwait('q0')
    for i in range(7):
        r = XR(0) + 4 * i
        g.ds(f'ds_write_b128 v79, v[{r}:{r+3}] offset:{1024*i}', 'qw')
    g.lwait('qw')
    for i in range(7):
        r = XR(0) + 4 * i
        g.ds(f'ds_read_b128 v[{r}:{r+3}], v253 offset:{1024*i}', 'qr')
    g.lwait('qr')
    pfcheck()
    stamp(g, 25)
    g.pump(10)
    for s in range(0):
        g.vwait(f'q{s}')
        for i in range(7):
            r = XR(s) + 4 * i
            g.ds(f'ds_write_b128 v79, v[{r}:{r+3}] offset:{1024*i}', 'qw')
        g.lwait('qw')
        for i in range(7):
            r = XR(s) + 4 * i
            g.ds(f'ds_read_b128 v[{r}:{r+3}], v253 offset:{1024*i}', 'qr')
        g.lwait('qr')
    cf_setup = ['s_lshr_b32 s82, s4, 4', 's_mul_i32 s82, s82, 1792', f's_add_u32 s82, s82, {WS_CF}']
    r = Rec(g); ln1_stats(r, 0, 80)
    for i, (_, f) in enumerate(r.items):
        f()
        if i % 16 == 15: g.pump(1)
    poll_issue(g, 'v47', cf_setup, 116, 'cf', wide=2)
    g.vwait('q1')
    for i in range(7):
        r = XR(1) + 4 * i
        g.ds(f'ds_write_b128 v79, v[{r}:{r+3}] offset:{1024*i}', 'qw')
    g.lwait('qw')
    for i in range(7):
        r = XR(1) + 4 * i
        g.ds(f'ds_read_b128 v[{r}:{r+3}], v253 offset:{1024*i}', 'qr')
    g.lwait('qr')
    ln1_stats(g, 1, 80)
    for k in list(range(12)) + [24, 25, 26, 27]:
        for x in range(2): g.bg.append(w2ld(k, x))
    stamp(g, 8)
    poll_check(g, 'CFP', 'v47', 116, 'cf', wide=2)
    stamp(g, 9)
    a('s_mul_i32 s70, s4, 57344')
    a('s_mul_i32 s72, s3, 14336')
    a('s_add_u32 s70, s70, s72')
    a(f's_add_u32 s70, s70, {WS_YB}')
    YL = [80 + 4 * i for i in range(12)] + [132, 140]
    for i in range(14):
        r = YL[i]
        g.vmem(f'buffer_load_dwordx4 v[{r}:{r+3}], v2, {WSR}, s70 offen offset:{1024*(i%4)} sc1', f'yl{i}')
        if i % 4 == 3: a('s_add_u32 s70, s70, 4096')
    g.pump(12)
    for i in range(14):
        r = YL[i]
        g.vwait(f'yl{i}')
        g.ds(f'ds_write_b128 {"v78" if (i>>1)&1 else "v77"}, v[{r}:{r+3}] offset:{128*i}')
    g.barrier()
    stamp(g, 10)
    y_tr(g, 0)
    for i in range(4): a(f'v_mov_b32 v{132+i}, s62')
    r = Rec(g); p3(r, 0, 0); g.add(r)
    for k in range(28):
        g.vwait(f'w1_{k}')
        for ft2 in range(2):
            o = 224 + 16 * ft2
            c = f'v[{o}:{o+15}]' if k else '0'
            rr = w1_reg(ft2, k)
            a(f'v_mfma_f32_32x32x16_bf16 v[{o}:{o+15}], a[{rr}:{rr+3}], v[132:135], {c}')
            g.fill(99, 7)
        g.pump(1)
    g.flush()
    a('s_mov_b32 exec_lo, 1')
    a('s_mov_b32 exec_hi, 1')
    for q in range(8):
        g.ds(f'ds_write_b128 v{V_CS}, v[{224+4*q}:{227+4*q}] offset:{(q//4)*128 + (q%4)*16}')
    a('s_mov_b64 exec, -1')
    for layer in range(2):
        sb = 12 + 16 * layer
        g.barrier()
        stamp(g, sb)
        r = Rec(g)
        if layer == 0:
            y_tr(r, 1)
            r.barrier()
            for k in range(12, 24):
                for x in range(2): g.bg.append(w2ld(k, x))
        else:
            r.at(2); poll_issue(r, f'v{V_FL}', poll_op(3), 76, 'pf')
            r.at(22)
            poll_check(r, 'PX1', f'v{V_FL}', 76, 'pf')
            st_loads(r, 1)
            x_loads(r, 1)
        g.add(r)
        m1f(g, layer, 0, bgp=1 if layer == 0 else 0, bg_from=8)
        stamp(g, sb + 1)
        if layer == 1:
            ln1_combine(g, 1)
            g.vwait('x1')
        r = Rec(g); p3(r, layer, 1, plain=False)
        for i, (_, f) in enumerate(r.items):
            f()
            if i == 150: publish(g, 'hst0', pub_op(4 * layer))
            if layer == 0 and i > 150 and i % 16 == 0: g.pump(1)
        g.barrier()
        stamp(g, sb + 2)
        r = Rec(g)
        r.at(20); poll_issue(r, f'v{V_FL}', poll_op(4 * layer), 126, 'pf')
        g.add(r)
        m1f(g, layer, 1, bgp=1 if layer == 0 else 0)
        stamp(g, sb + 3)
        g.pump(100)
        poll_check(g, f'PH{layer}0', f'v{V_FL}', 126, 'pf')
        stamp(g, sb + 4)
        r = Rec(g)
        publish(r, 'hst1', pub_op(4 * layer + 1))
        r.at(36); poll_issue(r, f'v{V_FL}', poll_op(4 * layer + 1), 76, 'pf')
        g.add(r)
        m2b(g, layer, 0, 5, 0)
        stamp(g, sb + 5)
        g.flush()
        e2_head(g, layer, 0)
        poll_check(g, f'PH{layer}1', f'v{V_FL}', 76, 'pf')
        if layer == 1:
            for k in range(NSL): h_load(g, layer, 1, k)
        e2_tail(g, layer, 0)
        stamp(g, sb + 6)
        r = Rec(g)
        if layer == 0:
            publish(r, 'xst0', pub_op(2))
            r.at(36); poll_issue(r, f'v{V_FL}', poll_op(2), 44, 'pf')
            r.at(52); poll_check(r, 'PX0', f'v{V_FL}', 44, 'pf')
            x_loads(r, 0)
        g.add(r)
        m2b(g, layer, 1, 5, NSL if layer == 1 else 0)
        stamp(g, sb + 7)
        g.flush()
        e2_head(g, layer, 1)
        if layer == 0:
            st_loads(g, 0)
            y_loads(g, 0)
        e2_tail(g, layer, 1)
        stamp(g, sb + 8)
        if layer == 0:
            ln1_combine(g, 0)
            g.vwait('y0')
            stamp(g, sb + 9)
            def yb(e, i):
                if i < 4: return
                for ii in (range(5) if i == 4 else [i]):
                    def f(g, ii=ii):
                        g.a(f's_add_u32 s72, s71, {WS_YX + 4*7168 + 1024*ii}')
                        g.vmem(f'buffer_load_dwordx4 v[{YR+4*ii}:{YR+4*ii+3}], v2, {WSR}, s72 offen sc1', 'y1')
                    e.group(f)
            r = Rec(g); p3(r, 1, 0, plain=False, after_group=yb)
            for i, (_, f) in enumerate(r.items):
                f()
                if i == 125: publish(g, 'xst1', pub_op(3))
            stamp(g, sb + 10)
    prof_end(g, 0x10000)
    g.label('MAIN_END')
    a('s_endpgm')


def main(out):
    asm = Asm()
    main_kernel(asm)
    hdr = open(f'cdna_kernels/{NAME}.s.ref').read().split('; Override launch')[0]
    hdr += f"""; @launch grid=(224,1,1) block=(256,1,1) lds={LDS_BYTES}
.amdgcn_target "amdgcn-amd-amdhsa--gfx950"
.text
"""
    tail = '.section .rodata,"a"\n' + kernel_desc(KNAME, 512, sgpr=102, accum=256)
    open(out, 'w').write(hdr + asm.text() + tail)


if __name__ == '__main__':
    gen4.PROF = '--prof' in sys.argv
    main(sys.argv[1] if len(sys.argv) > 1 and not sys.argv[1].startswith('--') else f'cdna_kernels/{NAME}.s')
```
